```python
import torch

def _softmax(x, axis=-1):
    return torch.softmax(x, dim=axis)

def _gelu(x):
    return torch.nn.functional.gelu(x, approximate='tanh')

def _silu(x):
    return torch.nn.functional.silu(x)

def _sigmoid(x):
    return torch.sigmoid(x)

def _layernorm(x, axis=-1, eps=1e-05):
    m = x.mean(dim=axis, keepdim=True)
    v = x.var(dim=axis, keepdim=True, unbiased=False)
    return (x - m) / torch.sqrt(v + eps)

def _scatter_add(tgt, idx, src, axis=0):
    return tgt.clone().index_add_(axis, idx, src)

def _segment_sum(src, seg, n):
    out = torch.zeros((n,) + src.shape[1:], dtype=src.dtype)
    return out.index_add_(0, seg, src)

def _pad(x, pw):
    flat = tuple((v for pair in reversed(pw) for v in pair))
    return torch.nn.functional.pad(x, flat)
kernel_name = 'gather_scatter__molecular_angular_painn__graph'

def setup_inputs():

    _w = lambda a: (lambda t: t.to(torch.bfloat16) if t.is_floating_point() else t)(torch.as_tensor(a))
    N, deg, D = (12500, 64, 64)
    n_rbf = max(16, 4)
    E = N * deg
    cutoff = 5.0
    freqs = (torch.arange(1, n_rbf + 1) * torch.pi / cutoff).to(float)
    return {'sv': _w((lambda *s: torch.randn(*s, dtype=torch.bfloat16) * 0.4)(N, 4, D) * 0.3), 'pos': _w((lambda *s: torch.randn(*s, dtype=torch.bfloat16) * 0.8)(N, 3) * 1.2), 'src': _w((lambda lo, hi, *s: torch.randint(lo, hi, s))(0, N, E).to(torch.int64)), 'dst': _w((lambda lo, hi, *s: torch.randint(lo, hi, s))(0, N, E).to(torch.int64)), 'freqs': _w(freqs), 'w_phi1': _w((lambda *s: torch.randn(*s, dtype=torch.bfloat16) * 3.2)(D, D) / D ** 0.5), 'w_phi2': _w((lambda *s: torch.randn(*s, dtype=torch.bfloat16) * 0.8)(D, 3 * D) / D ** 0.5), 'w_rbf': _w((lambda *s: torch.randn(*s, dtype=torch.bfloat16) * 0.8)(n_rbf, 3 * D) / n_rbf ** 0.5)}

def reference(sv, pos, src, dst, freqs, w_phi1, w_phi2, w_rbf):
    N, _, D = sv.shape
    E = src.shape[0]
    PI, cutoff = (3.141592653589793, 5.0)
    s, v = (sv[:, 0, :].clone(), sv[:, 1:, :].clone())
    r_vec = pos[src] - pos[dst]
    d = torch.sqrt((r_vec * r_vec).sum(-1) + 1e-08)
    r_hat = r_vec / d[:, None]
    rbf = torch.sin(d[:, None] * freqs[None, :]) / d[:, None]
    fcut = 0.5 * (torch.cos(PI * d / cutoff) + 1.0)
    fcut = torch.where(d < cutoff, fcut, 0.0 * d)
    Wf = rbf @ w_rbf * fcut[:, None]
    phi = (_silu(s @ w_phi1) @ w_phi2)[src]
    m = phi * Wf
    m_s, m_vv, m_vr = (m[:, :D].clone(), m[:, D:2 * D].clone(), m[:, 2 * D:].clone())
    ds = _segment_sum(m_s, dst, N)
    dv_e = m_vv[:, None, :] * v[src] + m_vr[:, None, :] * r_hat[:, :, None]
    dv = _segment_sum(dv_e.reshape(E, 3 * D), dst, N).reshape(N, 3, D)
    return sv + torch.concatenate([ds[:, None, :], dv], axis=1)
```

```python
import re

TRANS = ('v_exp_f32','v_log_f32','v_rcp_f32','v_rsq_f32','v_sqrt_f32','v_sin_f32','v_cos_f32','v_rcp_iflag_f32')

def regs_of(tok):
    tok = tok.strip()
    neg = tok.lstrip('-')
    if neg.startswith('abs(') or neg.startswith('|'):
        neg = neg.replace('abs(','').replace(')','').replace('|','')
    tok = neg
    m = re.fullmatch(r'([vsa])(\d+)', tok)
    if m: return {(m.group(1), int(m.group(2)))}
    m = re.fullmatch(r'([vsa])\[(\d+):(\d+)\]', tok)
    if m: return {(m.group(1), i) for i in range(int(m.group(2)), int(m.group(3))+1)}
    if tok in ('vcc','vcc_lo','vcc_hi'): return {('vcc',0)}
    if tok in ('exec','exec_lo','exec_hi'): return {('exec',0)}
    if tok == 'm0': return {('m0',0)}
    return set()

class Ins:
    def __init__(self, text):
        self.text = text
        t = text.split(';')[0].strip()
        parts = t.split(None, 1)
        self.op = parts[0] if parts else ''
        rest = parts[1] if len(parts) > 1 else ''
        ops = []; depth = 0; cur = ''
        for ch in rest:
            if ch == '[': depth += 1
            if ch == ']': depth -= 1
            if ch == ',' and depth == 0:
                ops.append(cur.strip()); cur = ''
            else: cur += ch
        if cur.strip(): ops.append(cur.strip())
        self.mods = ''
        if ops:
            l = ops[-1].split(None, 1)
            ops[-1] = l[0]
            self.mods = l[1] if len(l) > 1 else ''
        self.ops = ops
        op = self.op
        self.is_mfma = op.startswith('v_mfma')
        self.is_valu = op.startswith('v_') and not self.is_mfma
        self.is_vmem = op.startswith('buffer_') or op.startswith('global_')
        self.is_ds = op.startswith('ds_')
        self.is_salu = op.startswith('s_')
        self.is_trans = any(op.startswith(x) for x in TRANS)
        self.is_dpp = '_dpp' in op or 'row_' in self.mods or 'quad_perm' in self.mods
        self.is_readlane = op.startswith('v_readlane') or op.startswith('v_readfirstlane')
        self.is_permlane = op.startswith('v_permlane')
        self.dst = set(); self.src = set()
        R = [regs_of(o) for o in ops]
        if self.is_mfma:
            self.dst = R[0]; self.srcA = R[1]; self.srcB = R[2]; self.srcC = R[3]
            self.src = R[1] | R[2] | R[3]
        elif self.is_valu:
            if op.startswith('v_cmp'):
                self.dst = R[0]; self.src = set().union(*R[1:])
                if op.startswith('v_cmpx'): self.dst |= {('exec',0)}
            elif self.is_permlane and 'swap' in op:
                self.dst = R[0] | R[1]; self.src = R[0] | R[1]
            elif op.startswith('v_add_co') or op.startswith('v_sub_co') or op.startswith('v_addc_co') or op.startswith('v_subb_co') or op.startswith('v_mad_u64'):
                self.dst = R[0] | R[1]; self.src = set().union(*R[2:])
            else:
                self.dst = R[0]; self.src = set().union(*R[1:]) if len(R) > 1 else set()
                if op.startswith('v_fmac') or op.startswith('v_writelane') or op.startswith('v_dot2c') or '_sdwa' in op or self.is_dpp:
                    self.src |= R[0]
                if op.startswith('v_cndmask') and len(ops) == 3:
                    self.src |= {('vcc',0)}
        elif self.is_vmem:
            allr = set().union(*R) if R else set()
            if 'store' in op or ('atomic' in op):
                self.src = allr
                self.store_data = R[0] if op.startswith('buffer_') else R[1]
            elif ' lds' in (' ' + self.mods) or '_lds_' in op:
                self.src = allr | {('m0',0)}
            else:
                self.dst = R[0]; self.src = set().union(*R[1:])
        elif self.is_ds:
            if op.startswith('ds_read') or '_rtn' in op or op.startswith('ds_bpermute') or op.startswith('ds_swizzle') or op.startswith('ds_permute'):
                self.dst = R[0]; self.src = set().union(*R[1:])
            else:
                self.src = set().union(*R)
        elif self.is_salu:
            if op.startswith('s_cmp') or op.startswith('s_cbranch') or op in ('s_branch','s_barrier','s_waitcnt','s_nop','s_endpgm','s_setprio','s_sleep'):
                self.src = set().union(*R) if R else set()
            else:
                self.dst = R[0] if R else set(); self.src = set().union(*R[1:]) if len(R) > 1 else set()
                if 'saveexec' in op: self.dst |= {('exec',0)}; self.src |= {('exec',0)}
        self.wide_store = self.is_vmem and 'store' in op and ('x3' in op or 'x4' in op)

    def states(self):
        if self.op == 's_nop': return int(self.ops[0], 0) + 1
        return 1

def need(p, c):
    n = 0
    vd = {r for r in p.dst if r[0] in 'va' and r[0] != 'vcc'}
    sd = {r for r in p.dst if r[0] in ('s','vcc')}
    cv_src = {r for r in c.src if r[0] in ('v','a')}
    cv_dst = {r for r in c.dst if r[0] in ('v','a')}
    if p.is_valu:
        if c.is_mfma and (vd & cv_src): n = max(n, 2)
        if p.is_trans and c.is_valu and not c.is_trans and (vd & cv_src): n = max(n, 1)
        if p.is_trans and c.is_mfma and (vd & cv_src): n = max(n, 2)
        if sd & c.src:
            if c.is_valu: n = max(n, 4 if (c.is_readlane and False) else 2)
            if c.is_valu and (c.op.startswith('v_readlane') or c.op.startswith('v_writelane')): n = max(n, 4)
            if c.is_vmem: n = max(n, 5)
            if c.is_salu: n = max(n, 1)
            if c.is_ds: n = max(n, 2)
        if c.is_readlane and (vd & cv_src): n = max(n, 1)
        if c.is_dpp and (vd & cv_src): n = max(n, 2)
        if c.is_permlane and (vd & cv_src): n = max(n, 2)
        if ('exec',0) in p.dst and (c.is_valu or c.is_mfma): n = max(n, 5)
        if ('_sdwa' in p.op or 'op_sel' in p.mods) and c.is_valu and (vd & (cv_src|cv_dst)): n = max(n, 1)
    if p.is_mfma:
        passes8 = '32x32' in p.op
        full = 12 if passes8 else 8
        part = 10 if passes8 else 6
        if c.is_mfma:
            if vd & (c.srcA | c.srcB): n = max(n, full)
            if vd & c.srcC:
                if not (c.srcC == p.dst and c.op == p.op): n = max(n, part)
            elif vd & cv_dst: n = max(n, full)
        else:
            if vd & (cv_src | cv_dst): n = max(n, full)
        if c.is_valu and (p.srcC & cv_dst): n = max(n, 7 if passes8 else 3)
    if p.wide_store and (p.store_data & cv_dst):
        n = max(n, 2 if c.is_valu else 1)
    if p.is_salu and ('m0',0) in p.dst and ('m0',0) in c.src: n = max(n, 1)
    if p.is_salu and ('exec',0) in p.dst and c.is_mfma: n = max(n, 0)
    return n

class Asm:
    def __init__(self):
        self.lines = []
    def raw(self, s): self.lines.append(s)
    def label(self, s): self.lines.append(s + ':')
    def __call__(self, s, *a):
        if a: s = s % a
        for l in s.split('\n'):
            l = l.strip()
            if not l: continue
            if l.startswith(';'): self.lines.append('    ' + l); continue
            if l.endswith(':'): self.lines.append(l); continue
            self.lines.append(Ins(l))
    def finish(self, window=20):
        out = []; hist = []
        nins = 0
        for l in self.lines:
            if not isinstance(l, Ins):
                out.append(l); continue
            req = 0; dist = 0
            for p in reversed(hist[-window:]):
                r = need(p, l)
                if r > dist: req = max(req, r - dist)
                dist += p.states()
                if dist >= 20: break
            while req > 0:
                k = min(req, 16)
                nop = Ins('s_nop %d' % (k-1)); out.append('    ' + nop.text); hist.append(nop); req -= k; nins += 1
            out.append('    ' + l.text); hist.append(l)
        self.nops_inserted = nins
        return '\n'.join(out) + '\n'
    def safe(self):
        self('s_nop 11')
```

```python
import gen as G

N = 12500
DS_BASE = 0
NSLOT = 49*128 + 32
WV_BASE = NSLOT*4
W2IMG = WV_BASE + NSLOT*16
WRIMG = W2IMG + 16384
CNT = WRIMG + 12288
MISC = CNT + 256
K2_LDS = MISC + 128
PADMARK = 0x7000

vLANE16, vFREQ, vKGWV, vKGDS, vWVA, vDSA, vOUTOFF = 1, 2, 3, 4, 5, 6, 7
SV = 8
vIMG = 12
vT0, vT1, vT2 = 13, 14, 15
DS = 16
POOL = 24
GR = 56
L0 = 72; L1 = 104
ACCV = 136; ACCH = 184
vSEGLO, vSEGHI = 248, 249
vM1, vM2 = 250, 251
sTAB, sWS, sSV, sOUT = 12, 16, 20, 24
sMASK, sSELLO, sSELHI, s512 = 28, 29, 30, 31
sN0, sNN = 32, 33
sJC, sNSTC, sJN, sNSTN, sK, sBASE, sNBASE, sJNN, sLAST = 34, 35, 36, 37, 38, 39, 40, 41, 42
sC0, sSPAN, sI0, sSUB, sFIRST, sRLAST, sSEGC = 44, 45, 46, 47, 48, 49, 43
sEX = 50
sT = 52
sMK = 56
sOVF = 88
sT2 = 90

def Gr(w, p): return GR + 4*w + p
def accV(k, tau): return ACCV + 16*k + 4*tau
def accH(w, t): return ACCH + 16*w + 4*t
def rng(b, n=4): return f'v[{b}:{b+n-1}]'

def step(a, first):
    S = [POOL + j for j in range(8)]
    WVa, WVb = POOL + 8, POOL + 16
    TMP = POOL + 24
    WVB = [WVa, WVb]
    def rd_pair(p):
        b = WVB[p % 2]
        a(f'ds_read_b128 {rng(b)}, v{vWVA} offset:{(2*p)*16}')
        a(f'ds_read_b128 {rng(b+4)}, v{vWVA} offset:{(2*p+1)*16}')
    if first:
        a(f'v_mov_b32 v{vT0}, {MISC}')
        a(f'v_mov_b32 v{vT1}, 1')
        a(f's_min_u32 s{sT}, s{sJN}, 49')
        a(f's_lshl_b32 s{sT}, s{sT}, 2')
        a(f's_add_u32 s{sT}, s{sT}, {CNT}')
        a(f'v_mov_b32 v{vT2}, s{sT}')
        a(f's_mov_b64 s[{sEX}:{sEX+1}], exec')
        a('s_mov_b64 exec, 1')
        a(f'ds_add_rtn_u32 v{vM1}, v{vT0}, v{vT1}')
        a(f'ds_read_b32 v{vM2}, v{vT2}')
        a(f's_mov_b64 exec, s[{sEX}:{sEX+1}]')
    rd_pair(0); rd_pair(1)
    a(f's_add_u32 s{sT}, s{sK}, 1')
    a(f's_cmp_eq_u32 s{sT}, s{sNSTC}')
    a(f's_cselect_b32 s{sLAST}, 1, 0')
    a(f's_min_u32 s{sT+1}, s{sJN}, 49')
    a(f's_lshl_b32 s{sT+1}, s{sT+1}, 7')
    a(f's_add_u32 s{sT+2}, s{sBASE}, 32')
    a(f's_cmp_eq_u32 s{sLAST}, 1')
    a(f's_cselect_b32 s{sNBASE}, s{sT+1}, s{sT+2}')
    for p in range(4):
        j0, j1 = 2*p, 2*p+1
        t0, t1, tp = TMP + (p % 2)*4, TMP + (p % 2)*4 + 1, TMP + (p % 2)*4 + 2
        a(f'v_and_b32 v{t0}, s{sMASK}, v{DS+j0}')
        a(f'v_and_b32 v{t1}, s{sMASK}, v{DS+j1}')
        a(f'v_mul_f32 v{t0}, v{t0}, v{vFREQ}')
        a(f'v_mul_f32 v{t1}, v{t1}, v{vFREQ}')
        a(f'v_cvt_pk_bf16_f32 v{tp}, v{t0}, v{t1}')
        a(f'v_lshlrev_b32 v{t0}, 16, v{tp}')
        a(f'v_and_b32 v{t1}, s{sMASK}, v{tp}')
        a(f'v_mul_f32 v{t0}, 0.15915494, v{t0}')
        a(f'v_mul_f32 v{t1}, 0.15915494, v{t1}')
        a(f'v_sin_f32 v{S[j0]}, v{t0}')
        a(f'v_sin_f32 v{S[j1]}, v{t1}')
    a(f's_lshl_b32 s{sT}, s{sNBASE}, 2')
    a(f'v_add_u32 v{vDSA}, s{sT}, v{vKGDS}')
    for p in range(4):
        j0, j1 = 2*p, 2*p+1
        b = WVB[p % 2]
        a('s_waitcnt lgkmcnt(2)')
        for w in range(4):
            t0, t1 = TMP + 2*(w % 2), TMP + 2*(w % 2) + 1
            a(f'v_mul_f32 v{t0}, v{S[j0]}, v{b+w}')
            a(f'v_mul_f32 v{t1}, v{S[j1]}, v{b+4+w}')
            a(f'v_cvt_pk_bf16_f32 v{Gr(w,p)}, v{t0}, v{t1}')
        if p < 2: rd_pair(p+2)
        elif p == 2:
            a(f'ds_read_b128 {rng(DS)}, v{vDSA}')
            a(f'ds_read_b128 {rng(DS+4)}, v{vDSA} offset:16')
    if first:
        a(f'v_readfirstlane_b32 s{sJNN}, v{vM1}')
        a(f'v_readfirstlane_b32 s{sNSTN}, v{vM2}')
        a(f's_add_u32 s{sNSTN}, s{sNSTN}, 31')
        a(f's_lshr_b32 s{sNSTN}, s{sNSTN}, 5')
        a(f's_max_u32 s{sNSTN}, s{sNSTN}, 1')
    TB = [POOL + 4*i for i in range(4)]
    ADDR = POOL + 16
    def perms(L, q, half, dst):
        sel = sSELHI if half else sSELLO
        for p in range(4):
            a(f'v_perm_b32 v{dst+p}, v{L+4*(2*p+1)+q}, v{L+4*(2*p)+q}, s{sel}')
    def mf(acc, A, B):
        c = '0' if first else rng(acc)
        a(f'v_mfma_f32_16x16x32_bf16 {rng(acc)}, {rng(A)}, {rng(B)}, {c}')
    a('s_waitcnt vmcnt(8)')
    for t in range(8):
        perms(L0, t >> 1, t & 1, TB[t % 4])
        if t >= 1:
            mf(accV((t-1) >> 2, (t-1) & 3), Gr(0,0), TB[(t-1) % 4])
    a('s_waitcnt lgkmcnt(0)')
    for j in range(8):
        a(f'v_mad_u32_u16 v{ADDR+j}, v{DS+j}, s{s512}, v{vLANE16}')
        if j == 1: mf(accV(1, 3), Gr(0,0), TB[7 % 4])
    for j in range(8):
        a(f'buffer_load_dwordx4 {rng(L0+4*j)}, v{ADDR+j}, s[{sTAB}:{sTAB+3}], 0 offen')
    a('s_waitcnt vmcnt(8)')
    order = [('h', t) for t in range(4)] + [('z', t) for t in range(4)]
    def tile_perm_list(kind, t, dst):
        q = (2 + (t >> 1)) if kind == 'h' else (t >> 1)
        half = t & 1
        sel = sSELHI if half else sSELLO
        return [f'v_perm_b32 v{dst+p}, v{L1+4*(2*p+1)+q}, v{L1+4*(2*p)+q}, s{sel}' for p in range(4)]
    def tile_mfma_list(kind, t, src):
        out = []
        if kind == 'h':
            for w in range(4):
                acc = accH(w, t); c = '0' if first else rng(acc)
                out.append(f'v_mfma_f32_16x16x32_bf16 {rng(acc)}, {rng(src)}, {rng(Gr(w,0))}, {c}')
        else:
            acc = accV(2, t); c = '0' if first else rng(acc)
            out.append(f'v_mfma_f32_16x16x32_bf16 {rng(acc)}, {rng(Gr(0,0))}, {rng(src)}, {c}')
        return out
    for l in tile_perm_list(*order[0], TB[0]): a(l)
    for i in range(1, 8):
        pl = tile_perm_list(*order[i], TB[i % 4])
        ml = tile_mfma_list(*order[i-1], TB[(i-1) % 4])
        if len(ml) == 4:
            a(pl[0]); a(pl[1]); a(ml[0]); a(pl[2]); a(ml[1]); a(pl[3]); a(ml[2]); a(ml[3])
        else:
            for l in pl: a(l)
            a(ml[0])
    ml = tile_mfma_list(*order[7], TB[7 % 4])
    for j in range(8):
        a(f'buffer_load_dwordx4 {rng(L1+4*j)}, v{ADDR+j}, s[{sTAB}:{sTAB+3}], 0 offen offset:256')
        if j == 1: a(ml[0])
    a(f's_mov_b32 s{sBASE}, s{sNBASE}')
    a(f's_lshl_b32 s{sT}, s{sBASE}, 4')
    a(f'v_add_u32 v{vWVA}, s{sT}, v{vKGWV}')

def epilogue(a):
    F = [accH(w, t) for w in range(4) for t in (1, 3)]
    WRB = F[0:4]
    O = F[4:8]
    W2 = POOL
    def rd_w2(part):
        for kp in range(2):
            for tau in range(4):
                a(f'ds_read_b128 {rng(W2+16*kp+4*tau)}, v{vIMG} offset:{part*8192+kp*4096+tau*1024}')
    def rd_wr(p):
        for tau in range(4):
            a(f'ds_read_b128 {rng(WRB[tau])}, v{vIMG} offset:{16384+p*4096+tau*1024}')
    rd_w2(0)
    for w in range(4):
        for kp in range(2):
            e, o = accH(w, 2*kp), accH(w, 2*kp+1)
            a(f'v_cvt_pk_bf16_f32 v{e}, v{e}, v{e+1}')
            a(f'v_cvt_pk_bf16_f32 v{e+1}, v{e+2}, v{e+3}')
            a(f'v_cvt_pk_bf16_f32 v{e+2}, v{o}, v{o+1}')
            a(f'v_cvt_pk_bf16_f32 v{e+3}, v{o+2}, v{o+3}')
    rd_wr(1)
    a('s_waitcnt lgkmcnt(4)')
    for tau in range(4):
        a(f'v_mfma_f32_16x16x32_bf16 {rng(GR+4*tau)}, {rng(accH(0,0))}, {rng(W2+4*tau)}, 0')
    for tau in range(4):
        a(f'v_mfma_f32_16x16x32_bf16 {rng(GR+4*tau)}, {rng(accH(0,2))}, {rng(W2+16+4*tau)}, {rng(GR+4*tau)}')
    rd_w2(1)
    a('s_waitcnt lgkmcnt(8)')
    for k in range(3):
        for tau in range(4):
            o = O[1+k] + tau; s = accV(k, tau); c = WRB[tau]
            a(f'v_mul_f32 v{o}, v{c}, v{s}')
        for q in range(1, 4):
            for tau in range(4):
                o = O[1+k] + tau; s = accV(k, tau); c = WRB[tau]
                a(f'v_fmac_f32 v{o}, v{c+q}, v{s+q}')
    rd_wr(0)
    a('s_waitcnt lgkmcnt(4)')
    for k in range(3):
        for tau in range(4):
            a(f'v_mfma_f32_16x16x32_bf16 {rng(accV(k,tau))}, {rng(accH(1+k,0))}, {rng(W2+4*tau)}, 0')
        for tau in range(4):
            a(f'v_mfma_f32_16x16x32_bf16 {rng(accV(k,tau))}, {rng(accH(1+k,2))}, {rng(W2+16+4*tau)}, {rng(accV(k,tau))}')
    a('s_waitcnt lgkmcnt(0)')
    for tau in range(4):
        a(f'v_mul_f32 v{O[0]+tau}, v{WRB[tau]}, v{GR+4*tau}')
    for q in range(1, 4):
        for tau in range(4):
            a(f'v_fmac_f32 v{O[0]+tau}, v{WRB[tau]+q}, v{GR+4*tau+q}')
    rd_wr(2)
    a('s_waitcnt lgkmcnt(0)')
    for k in range(3):
        for q in range(4):
            for tau in range(4):
                a(f'v_fmac_f32 v{O[1+k]+tau}, v{WRB[tau]+q}, v{accV(k,tau)+q}')
    for w in range(4):
        a(f'v_permlane32_swap_b32 v{O[w]}, v{O[w]+2}')
        a(f'v_permlane32_swap_b32 v{O[w]+1}, v{O[w]+3}')
    for w in range(4):
        a(f'v_add_f32 v{O[w]}, v{O[w]}, v{O[w]+2}')
        a(f'v_add_f32 v{O[w]+1}, v{O[w]+1}, v{O[w]+3}')
    for w in range(4):
        a(f'v_permlane16_swap_b32 v{O[w]}, v{O[w]+1}')
    for w in range(4):
        a(f'v_add_f32 v{O[w]}, v{O[w]}, v{O[w]+1}')
    R = [O[w] for w in range(4)]
    a(f's_add_u32 s{sT}, s{sN0}, s{sJC}')
    a(f's_and_b32 s{sT+1}, s{sFIRST}, s{sRLAST}')
    a(f's_cmp_eq_u32 s{sT+1}, 1')
    a('s_cbranch_scc1 K2_EPI_FINAL')
    a(f's_lshl_b32 s{sT+1}, s{sT}, 10')
    a(f's_add_u32 s{sT+1}, s{sT+1}, {G.PART_OFF}')
    a(f'v_and_b32 v{vT0}, 63, v0')
    a(f'v_lshlrev_b32 v{vT0}, 2, v{vT0}')
    a(f's_cmp_eq_u32 s{sFIRST}, 1')
    a('s_cbranch_scc1 K2_EPI_NOLOAD')
    for w in range(4):
        a(f'buffer_load_dword v{GR+w}, v{vT0}, s[{sWS}:{sWS+3}], s{sT+1} offen offset:{256*w}')
    a('s_waitcnt vmcnt(0)')
    for w in range(4):
        a(f'v_add_f32 v{R[w]}, v{R[w]}, v{GR+w}')
    a.label('K2_EPI_NOLOAD')
    a(f's_cmp_eq_u32 s{sRLAST}, 1')
    a('s_cbranch_scc1 K2_EPI_FINAL')
    for w in range(4):
        a(f'buffer_store_dword v{R[w]}, v{vT0}, s[{sWS}:{sWS+3}], s{sT+1} offen offset:{256*w}')
    a('s_waitcnt vmcnt(0)')
    a('s_branch K2_EPI_DONE')
    a.label('K2_EPI_FINAL')
    p01, p23 = GR, GR+1
    x = [GR+2+w for w in range(4)]
    a(f'v_cvt_pk_bf16_f32 v{p01}, v{R[0]}, v{R[1]}')
    a(f'v_cvt_pk_bf16_f32 v{p23}, v{R[2]}, v{R[3]}')
    a(f'v_lshlrev_b32 v{x[0]}, 16, v{p01}')
    a(f'v_and_b32 v{x[1]}, s{sMASK}, v{p01}')
    a(f'v_lshlrev_b32 v{x[2]}, 16, v{p23}')
    a(f'v_and_b32 v{x[3]}, s{sMASK}, v{p23}')
    for w in range(4):
        a(f'v_add_f32 v{x[w]}, v{x[w]}, v{SV+w}')
    a(f'v_cvt_pk_bf16_f32 v{p01}, v{x[0]}, v{x[1]}')
    a(f'v_cvt_pk_bf16_f32 v{p23}, v{x[2]}, v{x[3]}')
    a(f's_lshl_b32 s{sT+1}, s{sT}, 9')
    a(f'buffer_store_short v{p01}, v{vOUTOFF}, s[{sOUT}:{sOUT+3}], s{sT+1} offen')
    a(f'buffer_store_short_d16_hi v{p01}, v{vOUTOFF}, s[{sOUT}:{sOUT+3}], s{sT+1} offen offset:128')
    a(f'buffer_store_short v{p23}, v{vOUTOFF}, s[{sOUT}:{sOUT+3}], s{sT+1} offen offset:256')
    a(f'buffer_store_short_d16_hi v{p23}, v{vOUTOFF}, s[{sOUT}:{sOUT+3}], s{sT+1} offen offset:384')
    a.label('K2_EPI_DONE')

def sv_loads(a, sj):
    a(f's_add_u32 s{sT}, s{sN0}, s{sj}')
    a(f's_lshl_b32 s{sT}, s{sT}, 9')
    for w in range(4):
        a(f'buffer_load_short_d16_hi v{SV+w}, v{vOUTOFF}, s[{sSV}:{sSV+3}], s{sT} offen offset:{128*w}')

def gen_k2(a):
    a.raw('.globl k2_kernel\n.p2align 8\n.type k2_kernel,@function')
    a.label('k2_kernel')
    a('s_load_dwordx2 s[4:5], s[0:1], 0')
    a('s_load_dwordx2 s[6:7], s[0:1], 32')
    a('s_load_dwordx2 s[8:9], s[0:1], 64')
    a('s_load_dwordx2 s[10:11], s[0:1], 80')
    a(f's_cmp_ge_u32 s2, {G.NB}')
    a('s_cbranch_scc1 K2_END')
    a(f's_mov_b32 s{sMASK}, 0xffff0000')
    a(f's_mov_b32 s{sSELLO}, 0x05040100')
    a(f's_mov_b32 s{sSELHI}, 0x07060302')
    a(f's_mov_b32 s{s512}, 512')
    a(f's_mul_i32 s{sN0}, s2, 12500')
    a(f's_add_u32 s{sNN}, s{sN0}, {12500+255}')
    a(f's_add_u32 s{sN0}, s{sN0}, 255')
    a(f's_lshr_b32 s{sN0}, s{sN0}, 8')
    a(f's_lshr_b32 s{sNN}, s{sNN}, 8')
    a(f's_sub_u32 s{sNN}, s{sNN}, s{sN0}')
    a('s_waitcnt lgkmcnt(0)')
    G.srd(a, sTAB, 10, G.TAB_SZ); G.srd(a, sWS, 10, G.WS_USED); G.srd(a, sSV, 4, N*512); G.srd(a, sOUT, 8, N*512)
    st = G.Stamper(a, 60 if False else 0, 10, 1)
    a(f'v_and_b32 v{vT0}, 63, v0')
    a(f'v_and_b32 v{vT1}, 15, v{vT0}')
    a(f'v_lshrrev_b32 v{vT2}, 4, v{vT0}')
    a(f'v_lshlrev_b32 v{vLANE16}, 4, v{vT1}')
    a(f'v_lshlrev_b32 v{vKGWV}, 7, v{vT2}')
    a(f'v_add_u32 v{vKGWV}, {WV_BASE}, v{vKGWV}')
    a(f'v_lshlrev_b32 v{vKGDS}, 5, v{vT2}')
    a(f'v_lshl_add_u32 v{vOUTOFF}, v{vT1}, 2, v{vT2}')
    a(f'v_lshlrev_b32 v{vOUTOFF}, 1, v{vOUTOFF}')
    a(f'v_lshlrev_b32 v{vIMG}, 4, v{vT0}')
    a(f'v_add_u32 v{vIMG}, {W2IMG}, v{vIMG}')
    for w in range(4): a(f'v_mov_b32 v{SV+w}, 0')
    a(f'v_mov_b32 v{vFREQ}, 0')
    a(f'v_lshlrev_b32 v{vT1}, 1, v{vT1}')
    a(f'global_load_short_d16_hi v{vFREQ}, v{vT1}, s[6:7]')
    a(f'v_lshrrev_b32 v16, 1, v0')
    a(f'v_lshlrev_b32 v17, 10, v16')
    a(f's_lshl_b32 s{sT}, s2, 1')
    a(f's_add_u32 s{sT}, s{sT}, {G.OFFS_OFF}')
    a(f'v_mov_b32 v{vSEGLO}, 0')
    a(f'v_mov_b32 v{vSEGHI}, 0')
    a(f'v_cmp_gt_u32 vcc, {G.NCH}, v16')
    a(f's_and_saveexec_b64 s[{sEX}:{sEX+1}], vcc')
    a(f'buffer_load_ushort v{vSEGLO}, v17, s[{sWS}:{sWS+3}], s{sT} offen')
    a(f'buffer_load_ushort v{vSEGHI}, v17, s[{sWS}:{sWS+3}], s{sT} offen offset:2')
    a(f's_mov_b64 exec, s[{sEX}:{sEX+1}]')
    a('v_lshlrev_b32 v18, 4, v0')
    a(f's_mov_b32 s{sT}, {G.CIMG_OFF}')
    for i in range(4):
        a(f'buffer_load_dwordx4 v[{200+4*i}:{203+4*i}], v18, s[{sWS}:{sWS+3}], s{sT} offen')
        if i < 3: a(f's_add_u32 s{sT}, s{sT}, 8192')
    a(f's_mov_b32 s{sC0}, 0')
    a(f's_mov_b32 s{sSPAN}, {G.NCH}')
    a(f's_mov_b32 s{sI0}, 0')
    a(f's_mov_b32 s{sSUB}, 0')
    a(f's_mov_b32 s{sFIRST}, 1')
    a.label('K2_ROUND')
    a('s_barrier')
    a('v_lshlrev_b32 v18, 4, v0')
    a(f'v_mov_b32 v20, {PADMARK}\nv_mov_b32 v21, {PADMARK}\nv_mov_b32 v22, {PADMARK}\nv_mov_b32 v23, {PADMARK}')
    a('v_mov_b32 v24, 0\nv_mov_b32 v25, 0\nv_mov_b32 v26, 0\nv_mov_b32 v27, 0')
    for i in range(3):
        a(f'ds_write_b128 v18, v[20:23] offset:{i*8192}')
    a(f'v_cmp_gt_u32 vcc, {1576-1536}, v0')
    a(f's_and_saveexec_b64 s[{sEX}:{sEX+1}], vcc')
    a(f'ds_write_b128 v18, v[20:23] offset:{3*8192}')
    a(f's_mov_b64 exec, s[{sEX}:{sEX+1}]')
    a(f'v_add_u32 v19, {WV_BASE}, v18')
    for i in range(12):
        if i == 7: a(f'v_add_u32 v19, {7*8192}, v19')
        off = i*8192 if i < 7 else (i-7)*8192
        a(f'ds_write_b128 v19, v[24:27] offset:{off}')
    a(f'v_cmp_gt_u32 vcc, {6304-6144}, v0')
    a(f's_and_saveexec_b64 s[{sEX}:{sEX+1}], vcc')
    a(f'ds_write_b128 v19, v[24:27] offset:{5*8192}')
    a(f's_mov_b64 exec, s[{sEX}:{sEX+1}]')
    a(f'v_add_u32 v19, {CNT}, v18')
    a('v_cmp_gt_u32 vcc, 24, v0')
    a(f's_and_saveexec_b64 s[{sEX}:{sEX+1}], vcc')
    a('ds_write_b128 v19, v[24:27]')
    a(f's_mov_b64 exec, s[{sEX}:{sEX+1}]')
    a('s_waitcnt vmcnt(0)')
    a(f's_cmp_eq_u32 s{sFIRST}, 1')
    a('s_cbranch_scc0 K2_NOCONST')
    a(f'v_add_u32 v19, {W2IMG}, v18')
    for i in range(3):
        a(f'ds_write_b128 v19, v[{200+4*i}:{203+4*i}] offset:{i*8192}')
    a('v_cmp_gt_u32 vcc, 256, v0')
    a(f's_and_saveexec_b64 s[{sEX}:{sEX+1}], vcc')
    a(f'ds_write_b128 v19, v[212:215] offset:{3*8192}')
    a(f's_mov_b64 exec, s[{sEX}:{sEX+1}]')
    a.label('K2_NOCONST')
    a('s_waitcnt lgkmcnt(0)')
    a('s_barrier')
    a('v_lshrrev_b32 v16, 1, v0')
    a(f'v_add_u32 v17, s{sI0}, v{vSEGLO}')
    a(f's_cmp_eq_u32 s{sSUB}, 1')
    a(f's_movk_i32 s{sT+1}, 128')
    a(f's_cselect_b32 s{sT}, s{sT+1}, 0x7fff')
    a(f'v_add_u32 v18, s{sT}, v17')
    a(f'v_min_u32 v18, v18, v{vSEGHI}')
    a(f'v_subrev_u32 v19, s{sC0}, v16')
    a(f'v_cmp_gt_u32 vcc, s{sSPAN}, v19')
    a('v_and_b32 v20, 1, v0')
    a('v_add_u32 v17, v17, v20')
    a('v_sub_u32 v21, v18, v17')
    a('v_cndmask_b32 v21, 0, v21, vcc')
    a(f'v_sub_u32 v22, v{vSEGHI}, v{vSEGLO}')
    a(f's_lshl_b32 s{sT}, s{sC0}, 1')
    a(f'v_cmp_eq_u32 vcc, s{sT}, v0')
    a(f's_and_saveexec_b64 s[{sEX}:{sEX+1}], vcc')
    a(f'v_mov_b32 v23, {MISC+8}')
    a('ds_write_b32 v23, v22')
    a(f's_mov_b64 exec, s[{sEX}:{sEX+1}]')
    a(f'v_mul_u32_u24 v22, {G.CHE}, v16')
    a('v_add_lshl_u32 v22, v22, v17, 4')
    a(f's_mov_b64 s[{sOVF}:{sOVF+1}], 0')
    a(f's_mov_b32 s{sT2}, {G.REC_OFF}')
    U = 16
    RR = lambda u: 72 + 4*u
    RK = lambda u: 136 + u
    DL = lambda u: 152 + u
    a('v_mov_b32 v28, 1')
    a.label('K2_RECLOOP')
    for u in range(U):
        a(f'v_cmp_lt_i32 s[{sMK+2*u}:{sMK+2*u+1}], {2*u}, v21')
    a(f's_mov_b64 s[{sEX}:{sEX+1}], exec')
    for u in range(U):
        a(f's_cmp_eq_u64 s[{sMK+2*u}:{sMK+2*u+1}], 0')
        a('s_cbranch_scc1 K2_LD_DONE')
        a(f's_mov_b64 exec, s[{sMK+2*u}:{sMK+2*u+1}]')
        a(f'buffer_load_dwordx4 {rng(RR(u))}, v22, s[{sWS}:{sWS+3}], s{sT2} offen offset:{32*u}')
    a.label('K2_LD_DONE')
    a('s_waitcnt vmcnt(0)')
    for u in range(U):
        a(f's_cmp_eq_u64 s[{sMK+2*u}:{sMK+2*u+1}], 0')
        a('s_cbranch_scc1 K2_AT_DONE')
        a(f's_mov_b64 exec, s[{sMK+2*u}:{sMK+2*u+1}]')
        a(f'v_and_b32 v{DL(u)}, 0xffff, v{RR(u)+3}')
        a(f'v_subrev_u32 v{DL(u)}, s{sN0}, v{DL(u)}')
        a(f'v_lshlrev_b32 v29, 2, v{DL(u)}')
        a(f'v_add_u32 v29, {CNT}, v29')
        a(f'ds_add_rtn_u32 v{RK(u)}, v29, v28')
    a.label('K2_AT_DONE')
    a('s_waitcnt lgkmcnt(0)')
    for u in range(U):
        a(f's_cmp_eq_u64 s[{sMK+2*u}:{sMK+2*u+1}], 0')
        a('s_cbranch_scc1 K2_PL_DONE')
        a(f's_mov_b64 exec, s[{sMK+2*u}:{sMK+2*u+1}]')
        r = RR(u)
        a(f'v_cmp_gt_u32 vcc, 128, v{RK(u)}')
        a(f'v_lshlrev_b32 v30, 16, v{r+2}')
        a(f'v_and_b32 v31, s{sMASK}, v{r+2}')
        a(f'v_and_b32 v32, s{sMASK}, v{r+3}')
        a(f's_andn2_b64 s[{sT}:{sT+1}], exec, vcc')
        a(f's_or_b64 s[{sOVF}:{sOVF+1}], s[{sOVF}:{sOVF+1}], s[{sT}:{sT+1}]')
        a('s_and_b64 exec, exec, vcc')
        a(f'v_lshl_add_u32 v33, v{DL(u)}, 7, v{RK(u)}')
        a(f'v_lshlrev_b32 v34, 2, v33')
        a(f'ds_write_b32 v34, v{r}')
        a(f'v_mov_b32 v36, v{r+1}')
        a(f'v_mul_f32 v37, v{r+1}, v30')
        a(f'v_mul_f32 v38, v{r+1}, v31')
        a(f'v_mul_f32 v39, v{r+1}, v32')
        a(f'v_lshlrev_b32 v33, 4, v33')
        a(f'v_add_u32 v33, {WV_BASE}, v33')
        a('ds_write_b128 v33, v[36:39]')
    a.label('K2_PL_DONE')
    a(f's_mov_b64 exec, s[{sEX}:{sEX+1}]')
    a(f'v_cmp_lt_i32 vcc, {2*U}, v21')
    a('s_cbranch_vccz K2_REC_END')
    a(f'v_subrev_u32 v21, {2*U}, v21')
    a(f'v_add_u32 v22, {32*U}, v22')
    a('s_branch K2_RECLOOP')
    a.label('K2_REC_END')
    a(f's_cmp_eq_u64 s[{sOVF}:{sOVF+1}], 0')
    a('s_cbranch_scc1 K2_NOOVF')
    a(f'v_mov_b32 v23, {MISC+4}')
    a('ds_write_b32 v23, v28')
    a.label('K2_NOOVF')
    a('s_waitcnt lgkmcnt(0)')
    a('s_barrier')
    a(f'v_mov_b32 v23, {MISC}')
    a('ds_read_b64 v[30:31], v23 offset:4')
    a.lines.pop()
    a('ds_read_b32 v30, v23 offset:4')
    a('ds_read_b32 v31, v23 offset:8')
    a('s_waitcnt lgkmcnt(0)')
    a(f'v_readfirstlane_b32 s{sT}, v30')
    a(f'v_readfirstlane_b32 s{sSEGC}, v31')
    a(f's_cmp_eq_u32 s{sT}, 0')
    a('s_cbranch_scc1 K2_GO')
    a(f's_cmp_gt_u32 s{sSPAN}, 1')
    a('s_cbranch_scc0 K2_TOSUB')
    a(f's_add_u32 s{sSPAN}, s{sSPAN}, 1')
    a(f's_lshr_b32 s{sSPAN}, s{sSPAN}, 1')
    a('s_branch K2_ROUND')
    a.label('K2_TOSUB')
    a(f's_mov_b32 s{sSUB}, 1')
    a(f's_mov_b32 s{sI0}, 0')
    a('s_branch K2_ROUND')
    a.label('K2_GO')
    a(f's_add_u32 s{sT}, s{sC0}, s{sSPAN}')
    a(f's_cmp_ge_u32 s{sT}, {G.NCH}')
    a(f's_cselect_b32 s{sRLAST}, 1, 0')
    a(f's_cmp_eq_u32 s{sSUB}, 1')
    a('s_cbranch_scc0 K2_GO2')
    a(f's_add_u32 s{sT}, s{sI0}, 128')
    a(f's_cmp_ge_u32 s{sT}, s{sSEGC}')
    a(f's_cselect_b32 s{sT}, 1, 0')
    a(f's_and_b32 s{sRLAST}, s{sRLAST}, s{sT}')
    a.label('K2_GO2')
    a(f'v_mov_b32 v{vT0}, {MISC}')
    a(f'v_mov_b32 v{vT1}, 1')
    a('s_mov_b64 exec, 1')
    a(f'ds_add_rtn_u32 v{vM1}, v{vT0}, v{vT1}')
    a(f'ds_add_rtn_u32 v{vM2}, v{vT0}, v{vT1}')
    a(f's_mov_b64 exec, s[{sEX}:{sEX+1}]')
    a('s_waitcnt lgkmcnt(0)')
    a(f'v_readfirstlane_b32 s{sJC}, v{vM1}')
    a(f'v_readfirstlane_b32 s{sJN}, v{vM2}')
    a(f's_cmp_ge_u32 s{sJC}, s{sNN}')
    a('s_cbranch_scc1 K2_WAVE_DONE')
    a(f's_lshl_b32 s{sT}, s{sJC}, 2')
    a(f's_add_u32 s{sT}, s{sT}, {CNT}')
    a(f'v_mov_b32 v{vT2}, s{sT}')
    a(f'ds_read_b32 v{vM1}, v{vT2}')
    a(f's_lshl_b32 s{sBASE}, s{sJC}, 7')
    a(f's_lshl_b32 s{sT}, s{sBASE}, 2')
    a(f'v_add_u32 v{vDSA}, s{sT}, v{vKGDS}')
    a(f'ds_read_b128 {rng(DS)}, v{vDSA}')
    a(f'ds_read_b128 {rng(DS+4)}, v{vDSA} offset:16')
    a(f's_lshl_b32 s{sT}, s{sBASE}, 4')
    a(f'v_add_u32 v{vWVA}, s{sT}, v{vKGWV}')
    for w in range(4): a(f'v_mov_b32 v{SV+w}, 0')
    a('s_waitcnt lgkmcnt(0)')
    a(f'v_readfirstlane_b32 s{sNSTC}, v{vM1}')
    a(f's_add_u32 s{sNSTC}, s{sNSTC}, 31')
    a(f's_lshr_b32 s{sNSTC}, s{sNSTC}, 5')
    a(f's_max_u32 s{sNSTC}, s{sNSTC}, 1')
    ADDR = POOL + 16
    for j in range(8):
        a(f'v_mad_u32_u16 v{ADDR+j}, v{DS+j}, s{s512}, v{vLANE16}')
    for j in range(8):
        a(f'buffer_load_dwordx4 {rng(L0+4*j)}, v{ADDR+j}, s[{sTAB}:{sTAB+3}], 0 offen')
    for j in range(8):
        a(f'buffer_load_dwordx4 {rng(L1+4*j)}, v{ADDR+j}, s[{sTAB}:{sTAB+3}], 0 offen offset:256')
    sv_loads(a, sJC)
    a.label('K2_NODE')
    a(f's_mov_b32 s{sK}, 0')
    step(a, True)
    a(f's_cmp_eq_u32 s{sLAST}, 1')
    a('s_cbranch_scc1 K2_EPI')
    a.label('K2_STEP')
    a(f's_add_u32 s{sK}, s{sK}, 1')
    step(a, False)
    a(f's_cmp_eq_u32 s{sLAST}, 1')
    a('s_cbranch_scc0 K2_STEP')
    a.label('K2_EPI')
    a.safe()
    epilogue(a)
    sv_loads(a, sJN)
    a(f's_mov_b32 s{sJC}, s{sJN}')
    a(f's_mov_b32 s{sNSTC}, s{sNSTN}')
    a(f's_mov_b32 s{sJN}, s{sJNN}')
    a(f's_cmp_lt_u32 s{sJC}, s{sNN}')
    a('s_cbranch_scc1 K2_NODE')
    a.label('K2_WAVE_DONE')
    a(f's_cmp_eq_u32 s{sRLAST}, 1')
    a('s_cbranch_scc1 K2_END')
    a('s_waitcnt vmcnt(0) lgkmcnt(0)')
    a(f's_mov_b32 s{sFIRST}, 0')
    a(f's_cmp_eq_u32 s{sSUB}, 1')
    a('s_cbranch_scc0 K2_ADV_NORM')
    a(f's_add_u32 s{sI0}, s{sI0}, 128')
    a(f's_cmp_ge_u32 s{sI0}, s{sSEGC}')
    a('s_cbranch_scc0 K2_ROUND')
    a(f's_mov_b32 s{sSUB}, 0')
    a(f's_mov_b32 s{sI0}, 0')
    a(f's_add_u32 s{sC0}, s{sC0}, 1')
    a(f's_mov_b32 s{sSPAN}, 1')
    a('s_branch K2_ADV2')
    a.label('K2_ADV_NORM')
    a(f's_add_u32 s{sC0}, s{sC0}, s{sSPAN}')
    a(f's_lshl_b32 s{sSPAN}, s{sSPAN}, 1')
    a.label('K2_ADV2')
    a(f's_sub_u32 s{sT}, {G.NCH}, s{sC0}')
    a(f's_min_u32 s{sSPAN}, s{sSPAN}, s{sT}')
    a('s_branch K2_ROUND')
    a.label('K2_END')
    a('s_endpgm')
    return True
```

```python
import sys
from asmlib import Asm

NAME = 'gather_scatter__molecular_angular_painn__graph'
N = 12500; E = 800000
NCH = 250; CHE = 3200; NB = 256
TAB_OFF = 0; TAB_SZ = N * 512
CIMG_OFF = 0x620000
OFFS_OFF = 0x630000
REC_OFF = 0x700000
PART_OFF = 0x1400000
WS_USED = 0x2040000
NODE_WGS = 98
K1_GRID = NCH + NODE_WGS + 1
K1_LDS = 76816
HIST = 75776
MASKHI = 0xffff0000

def srd(a, d, base, size):
    a(f's_mov_b32 s{d}, s{base}')
    a(f's_and_b32 s{d+1}, s{base+1}, 0xffff')
    a(f's_mov_b32 s{d+2}, {size}')
    a(f's_mov_b32 s{d+3}, 0x20000')

def srd_off(a, d, base, off, size):
    a(f's_add_u32 s{d}, s{base}, {off}')
    a(f's_addc_u32 s{d+1}, s{base+1}, 0')
    a(f's_and_b32 s{d+1}, s{d+1}, 0xffff')
    a(f's_mov_b32 s{d+2}, {size}')
    a(f's_mov_b32 s{d+3}, 0x20000')

import os
STAMP = os.environ.get('STAMP','0') == '1'
STAMP_OFF = 0x3000000
class Stamper:
    def __init__(self, a, base, wsreg, kid):
        self.a=a; self.base=base; self.n=0; self.ws=wsreg; self.kid=kid
    def mark(self, real=False):
        if not STAMP: return
        a=self.a
        r=self.base+2*self.n
        a(f"{'s_memrealtime' if real else 's_memtime'} s[{r}:{r+1}]")
        a('s_waitcnt lgkmcnt(0)')
        self.n+=1
    def dump(self, vt0, wgreg='s2'):
        if not STAMP: return
        a=self.a
        b=self.base+2*self.n
        b=(b+3)//4*4
        a(f's_add_u32 s{b}, s{self.ws}, {STAMP_OFF+self.kid*0x100000}')
        a(f's_addc_u32 s{b+1}, s{self.ws+1}, 0')
        a(f's_and_b32 s{b+1}, s{b+1}, 0xffff')
        a(f's_mov_b32 s{b+2}, 0x100000')
        a(f's_mov_b32 s{b+3}, 0x20000')
        a('s_mov_b64 exec, 1')
        a(f'v_lshrrev_b32 v{vt0}, 6, v0')
        a(f'v_lshlrev_b32 v{vt0}, 7, v{vt0}')
        a(f's_lshl_b32 s{b+4}, {wgreg}, 11')
        a(f'v_add_u32 v{vt0}, s{b+4}, v{vt0}')
        for i in range(self.n):
            a(f'v_mov_b32 v{vt0+1}, s{self.base+2*i}')
            a(f'buffer_store_dword v{vt0+1}, v{vt0}, s[{b}:{b+3}], 0 offen offset:{4*i}')
        a('s_waitcnt vmcnt(0)')

def gen_k1(a):
    a.raw('.globl k1_kernel\n.p2align 8\n.type k1_kernel,@function')
    a.label('k1_kernel')
    a('s_load_dwordx4 s[4:7], s[0:1], 0')
    a('s_load_dwordx4 s[8:11], s[0:1], 16')
    a('s_load_dwordx4 s[12:15], s[0:1], 32')
    a('s_load_dwordx4 s[16:19], s[0:1], 48')
    a('s_load_dwordx2 s[20:21], s[0:1], 80')
    a(f's_cmp_ge_u32 s2, {K1_GRID}')
    a('s_cbranch_scc1 K1_END')
    a('s_mov_b32 s22, 0xffff0000')
    a('s_waitcnt lgkmcnt(0)')
    a(f's_cmp_ge_u32 s2, {NCH}')
    a('s_cbranch_scc1 K1_NOTEDGE')
    srd(a, 24, 8, E*4); srd(a, 28, 10, E*4); srd(a, 32, 6, N*6); srd(a, 36, 20, WS_USED)
    st = Stamper(a, 48, 20, 0)
    st.mark(True); st.mark()
    a(f's_mul_i32 s3, s2, {CHE*4}')
    a('v_lshlrev_b32 v1, 4, v0')
    a('v_cmp_gt_u32 vcc, 400, v0')
    a('s_and_saveexec_b64 s[40:41], vcc')
    a('s_mov_b64 s[42:43], exec')
    a('buffer_load_dwordx4 v[4:7], v1, s[28:31], s3 offen')
    a('buffer_load_dwordx4 v[12:15], v1, s[24:27], s3 offen')
    a(f's_add_u32 s4, s3, {1600*4}')
    a('buffer_load_dwordx4 v[8:11], v1, s[28:31], s4 offen')
    a('buffer_load_dwordx4 v[16:19], v1, s[24:27], s4 offen')
    a('s_mov_b64 exec, s[40:41]')
    for i in range(10):
        a(f's_mov_b32 s4, {i*8192}')
        a(f'buffer_load_dwordx4 v[{20+4*i}:{23+4*i}], v1, s[32:35], s4 offen')
    a('v_mov_b32 v60, 0\nv_mov_b32 v61, 0\nv_mov_b32 v62, 0\nv_mov_b32 v63, 0')
    a('v_cmp_gt_u32 vcc, 65, v0')
    a('s_and_saveexec_b64 s[44:45], vcc')
    a(f'v_add_u32 v2, {HIST}, v1')
    a('ds_write_b128 v2, v[60:63]')
    a('s_mov_b64 exec, s[40:41]')
    a(f'v_add_u32 v2, {8*8192}, v1')
    for i in range(10):
        a(f's_waitcnt vmcnt({9-i})')
        if i < 8:
            a(f'ds_write_b128 v1, v[{20+4*i}:{23+4*i}] offset:{i*8192}')
        elif i == 8:
            a(f'ds_write_b128 v2, v[{20+4*i}:{23+4*i}]')
        else:
            a('v_cmp_gt_u32 vcc, 128, v0')
            a('s_and_saveexec_b64 s[44:45], vcc')
            a(f'ds_write_b128 v2, v[{20+4*i}:{23+4*i}] offset:8192')
            a('s_mov_b64 exec, s[40:41]')
    a('s_waitcnt lgkmcnt(0)')
    st.mark()
    a('s_barrier')
    st.mark()
    a('s_mov_b64 exec, s[42:43]')
    DST = lambda e: 4+e
    SRC = lambda e: 12+e
    BK = lambda e: 20+e
    RK = lambda e: 28+e
    REC = lambda e: 44+4*e
    PS = lambda e: 76+4*e
    PD = lambda e: 0
    a('s_mov_b32 s46, 87960931')
    a('v_mov_b32 v40, 1')
    for e in range(8):
        a(f'v_mul_hi_u32 v{BK(e)}, v{DST(e)}, s46')
        a(f'v_lshlrev_b32 v{BK(e)}, 2, v{BK(e)}')
        a(f'v_add_u32 v{BK(e)}, {HIST}, v{BK(e)}')
        a(f'ds_add_rtn_u32 v{RK(e)}, v{BK(e)}, v40')
    for grp in range(2):
        es = [4*grp+i for i in range(4)]
        SP = lambda i, c: 76 + 3*i + c
        DP = lambda i, c: 88 + 3*i + c
        for i in range(4):
            for c in range(3):
                a(f'v_mov_b32 v{SP(i,c)}, 0')
                a(f'v_mov_b32 v{DP(i,c)}, 0')
        for i, e in enumerate(es):
            a(f'v_mul_u32_u24 v100, 6, v{SRC(e)}')
            a(f'v_mul_u32_u24 v101, 6, v{DST(e)}')
            for c in range(3):
                a(f'ds_read_u16_d16_hi v{SP(i,c)}, v100 offset:{2*c}')
                a(f'ds_read_u16_d16_hi v{DP(i,c)}, v101 offset:{2*c}')
        a('s_waitcnt lgkmcnt(0)')
        for pr in range(2):
            ia, ib = 2*pr, 2*pr+1
            ea, eb = es[ia], es[ib]
            T = [102+k for k in range(16)]
            def rnd2(x, y, p=T[0]):
                a(f'v_cvt_pk_bf16_f32 v{p}, v{x}, v{y}')
                a(f'v_lshlrev_b32 v{x}, 16, v{p}')
                a(f'v_and_b32 v{y}, s22, v{p}')
            for c in range(3):
                a(f'v_sub_f32 v{SP(ia,c)}, v{SP(ia,c)}, v{DP(ia,c)}')
                a(f'v_sub_f32 v{SP(ib,c)}, v{SP(ib,c)}, v{DP(ib,c)}')
            for c in range(3):
                rnd2(SP(ia,c), SP(ib,c))
            for c in range(3):
                a(f'v_mul_f32 v{DP(ia,c)}, v{SP(ia,c)}, v{SP(ia,c)}')
                a(f'v_mul_f32 v{DP(ib,c)}, v{SP(ib,c)}, v{SP(ib,c)}')
            for c in range(3):
                rnd2(DP(ia,c), DP(ib,c))
            Sa, Sb = DP(ia,0), DP(ib,0)
            a(f'v_add_f32 v{Sa}, v{Sa}, v{DP(ia,1)}')
            a(f'v_add_f32 v{Sb}, v{Sb}, v{DP(ib,1)}')
            a(f'v_add_f32 v{Sa}, v{Sa}, v{DP(ia,2)}')
            a(f'v_add_f32 v{Sb}, v{Sb}, v{DP(ib,2)}')
            rnd2(Sa, Sb)
            a(f'v_add_f32 v{Sa}, 0x322bcc77, v{Sa}')
            a(f'v_add_f32 v{Sb}, 0x322bcc77, v{Sb}')
            rnd2(Sa, Sb)
            a(f'v_sqrt_f32 v{Sa}, v{Sa}')
            a(f'v_sqrt_f32 v{Sb}, v{Sb}')
            rnd2(Sa, Sb)
            da, db = Sa, Sb
            ia_inv, ib_inv = DP(ia,1), DP(ib,1)
            a(f'v_rcp_f32 v{ia_inv}, v{da}')
            a(f'v_rcp_f32 v{ib_inv}, v{db}')
            ta, tb = DP(ia,2), DP(ib,2)
            a(f'v_mul_f32 v{ta}, 0x40490fdb, v{da}')
            a(f'v_mul_f32 v{tb}, 0x40490fdb, v{db}')
            for c in range(3):
                a(f'v_mul_f32 v{SP(ia,c)}, v{SP(ia,c)}, v{ia_inv}')
                a(f'v_mul_f32 v{SP(ib,c)}, v{SP(ib,c)}, v{ib_inv}')
            rnd2(ta, tb)
            a(f'v_mul_f32 v{ta}, 0x3e4ccccd, v{ta}')
            a(f'v_mul_f32 v{tb}, 0x3e4ccccd, v{tb}')
            a(f'v_cvt_pk_bf16_f32 v{REC(ea)+2}, v{SP(ia,0)}, v{SP(ia,1)}')
            a(f'v_cvt_pk_bf16_f32 v{REC(eb)+2}, v{SP(ib,0)}, v{SP(ib,1)}')
            rnd2(ta, tb)
            a(f'v_mul_f32 v{ta}, 0.15915494, v{ta}')
            a(f'v_mul_f32 v{tb}, 0.15915494, v{tb}')
            a(f'v_cvt_pk_bf16_f32 v{T[1]}, v{SP(ia,2)}, v{SP(ib,2)}')
            a(f'v_cos_f32 v{ta}, v{ta}')
            a(f'v_cos_f32 v{tb}, v{tb}')
            a(f'v_lshl_or_b32 v{REC(ea)+3}, v{T[1]}, 16, v{DST(ea)}')
            a(f'v_and_or_b32 v{REC(eb)+3}, v{T[1]}, s22, v{DST(eb)}')
            rnd2(ta, tb)
            a(f'v_add_f32 v{ta}, 1.0, v{ta}')
            a(f'v_add_f32 v{tb}, 1.0, v{tb}')
            rnd2(ta, tb)
            a(f'v_mul_f32 v{ia_inv}, 0.5, v{ia_inv}')
            a(f'v_mul_f32 v{ib_inv}, 0.5, v{ib_inv}')
            a(f'v_mul_f32 v{ta}, v{ta}, v{ia_inv}')
            a(f'v_mul_f32 v{tb}, v{tb}, v{ib_inv}')
            a(f'v_cmp_gt_f32 vcc, 0x40a00000, v{da}')
            a(f'v_cmp_gt_f32 s[44:45], 0x40a00000, v{db}') if False else None
            a(f'v_cndmask_b32 v{REC(ea)+1}, 0, v{ta}, vcc')
            a(f'v_cndmask_b32 v{da}, 0, v{da}, vcc')
            a(f'v_cmp_gt_f32 vcc, 0x40a00000, v{db}')
            a(f'v_or_b32 v{REC(ea)}, v{da}, v{SRC(ea)}')
            a(f'v_cndmask_b32 v{REC(eb)+1}, 0, v{tb}, vcc')
            a(f'v_cndmask_b32 v{db}, 0, v{db}, vcc')
            a(f'v_or_b32 v{REC(eb)}, v{db}, v{SRC(eb)}')
    a('s_mov_b64 exec, s[40:41]')
    a('s_waitcnt lgkmcnt(0)')
    st.mark()
    a('s_barrier')
    st.mark()
    a('v_lshrrev_b32 v1, 6, v0')
    a('v_readfirstlane_b32 s4, v1')
    a('s_cmp_lg_u32 s4, 0')
    a('s_cbranch_scc1 K1_E_SCANDONE')
    a('v_lshlrev_b32 v1, 4, v0')
    a(f'v_add_u32 v2, {HIST}, v1')
    a('ds_read_b128 v[80:83], v2')
    a('s_waitcnt lgkmcnt(0)')
    a('v_add_u32 v84, v80, v81')
    a('v_add_u32 v85, v84, v82')
    a('v_add_u32 v86, v85, v83')
    a('v_mov_b32 v87, v86')
    for sh in (1, 2, 4, 8):
        a(f'v_add_u32_dpp v87, v87, v87 row_shr:{sh} row_mask:0xf bank_mask:0xf')
    a('v_add_u32_dpp v87, v87, v87 row_bcast:15 row_mask:0xa bank_mask:0xf')
    a('v_add_u32_dpp v87, v87, v87 row_bcast:31 row_mask:0xc bank_mask:0xf')
    a('v_sub_u32 v88, v87, v86')
    a('v_add_u32 v89, v88, v80')
    a('v_add_u32 v90, v88, v84')
    a('v_add_u32 v91, v88, v85')
    a('ds_write_b128 v2, v[88:91]')
    a('v_lshl_or_b32 v92, v89, 16, v88')
    a('v_lshl_or_b32 v93, v91, 16, v90')
    a('s_lshl_b32 s4, s2, 10')
    a(f's_add_u32 s4, s4, {OFFS_OFF}')
    a('v_lshlrev_b32 v1, 3, v0')
    a('buffer_store_dwordx2 v[92:93], v1, s[36:39], s4 offen')
    a(f'v_mov_b32 v94, {CHE}')
    a('v_mov_b32 v95, 512')
    a('v_cmp_eq_u32 vcc, 0, v0')
    a('s_and_saveexec_b64 s[44:45], vcc')
    a('buffer_store_dword v94, v95, s[36:39], s4 offen')
    a('s_mov_b64 exec, s[40:41]')
    a('s_waitcnt lgkmcnt(0)')
    a.label('K1_E_SCANDONE')
    a('s_barrier')
    st.mark()
    a('s_mov_b64 exec, s[42:43]')
    for e in range(8):
        a(f'ds_read_b32 v{BK(e)}, v{BK(e)}')
    for e in range(8):
        a(f's_waitcnt lgkmcnt({7-e})')
        a(f'v_add_lshl_u32 v{BK(e)}, v{BK(e)}, v{RK(e)}, 4')
        a(f'ds_write_b128 v{BK(e)}, v[{REC(e)}:{REC(e)+3}]')
    a('s_mov_b64 exec, s[40:41]')
    a('s_waitcnt lgkmcnt(0)')
    a('s_barrier')
    st.mark()
    a('v_lshlrev_b32 v1, 4, v0')
    a(f's_mul_i32 s4, s2, {CHE*16}')
    a(f's_add_u32 s4, s4, {REC_OFF}')
    for i in range(6):
        a(f'ds_read_b128 v[{80+4*i}:{83+4*i}], v1 offset:{i*8192}')
    a('v_cmp_gt_u32 vcc, 128, v0')
    a('s_and_saveexec_b64 s[44:45], vcc')
    a(f'ds_read_b128 v[104:107], v1 offset:{6*8192}')
    a('s_mov_b64 exec, s[40:41]')
    for i in range(6):
        a(f's_waitcnt lgkmcnt({6-i})')
        a(f'buffer_store_dwordx4 v[{80+4*i}:{83+4*i}], v1, s[36:39], s4 offen')
        a('s_add_u32 s4, s4, 8192')
    a('s_waitcnt lgkmcnt(0)')
    a('s_mov_b64 exec, s[44:45]') if False else None
    a('v_cmp_gt_u32 vcc, 128, v0')
    a('s_and_saveexec_b64 s[44:45], vcc')
    a('buffer_store_dwordx4 v[104:107], v1, s[36:39], s4 offen')
    if STAMP:
        st.mark()
        a('s_waitcnt vmcnt(0)')
        st.mark(); st.mark(True)
        st.dump(110)
    a('s_endpgm')

    a.label('K1_NOTEDGE')
    a(f's_cmp_ge_u32 s2, {NCH+NODE_WGS}')
    a('s_cbranch_scc1 K1_CONST')
    srd(a, 24, 4, N*512); srd(a, 28, 14, 64*64*2); srd(a, 32, 16, 64*192*2); srd(a, 36, 20, TAB_SZ)
    st = Stamper(a, 48, 20, 0)
    st.mark(True); st.mark()
    a('v_lshlrev_b32 v1, 4, v0')
    a('buffer_load_dwordx4 v[4:7], v1, s[28:31], 0 offen')
    a('v_lshrrev_b32 v2, 3, v0')
    a('v_mul_u32_u24 v2, 384, v2')
    a('v_and_b32 v3, 7, v0')
    a('v_lshl_add_u32 v2, v3, 4, v2')
    a('buffer_load_dwordx4 v[8:11], v2, s[32:35], 0 offen offset:128')
    a('v_and_b32 v12, 63, v0')
    a('v_lshrrev_b32 v13, 6, v0')
    a('v_and_b32 v14, 15, v12')
    a('v_lshrrev_b32 v15, 4, v12')
    a(f's_sub_u32 s3, s2, {NCH}')
    a('s_lshl_b32 s3, s3, 7')
    a('v_lshl_add_u32 v16, v13, 4, v14')
    a('v_add_u32 v16, s3, v16')
    a('v_lshlrev_b32 v17, 9, v16')
    a('v_lshl_add_u32 v18, v15, 4, v17')
    a('buffer_load_dwordx4 v[20:23], v18, s[24:27], 0 offen')
    a('buffer_load_dwordx4 v[24:27], v18, s[24:27], 0 offen offset:64')
    a('v_lshl_add_u32 v19, v15, 3, v17')
    VV = lambda k, t: 28 + 2*(4*k+t)
    for k in range(3):
        for t in range(4):
            a(f'buffer_load_dwordx2 v[{VV(k,t)}:{VV(k,t)+1}], v19, s[24:27], 0 offen offset:{128*(k+1)+32*t}')
    a('s_waitcnt vmcnt(14)')
    a('ds_write_b128 v1, v[4:7]')
    a('ds_write_b128 v1, v[8:11] offset:8192')
    a('s_waitcnt lgkmcnt(0)')
    st.mark()
    a('s_barrier')
    st.mark()
    a('v_lshrrev_b32 v2, 2, v14')
    a('v_and_b32 v3, 3, v14')
    a('v_lshl_add_u32 v4, v15, 3, v2')
    a('v_lshlrev_b32 v4, 7, v4')
    a('v_lshl_add_u32 v4, v3, 3, v4')
    a('v_lshl_add_u32 v5, v15, 2, v2')
    a('v_lshlrev_b32 v5, 7, v5')
    a('v_lshl_add_u32 v5, v3, 3, v5')
    a('v_add_u32 v5, 8192, v5')
    for t in range(4):
        for kp in range(2):
            r = 52 + 4*(2*t+kp)
            a(f'ds_read_b64_tr_b16 v[{r}:{r+1}], v4 offset:{kp*32*128 + t*32}')
            a(f'ds_read_b64_tr_b16 v[{r+2}:{r+3}], v4 offset:{kp*32*128 + 4*128 + t*32}')
    a('s_waitcnt vmcnt(12) lgkmcnt(0)')
    D1 = lambda t: 84 + 4*t
    for t in range(4):
        a(f'v_mfma_f32_16x16x32_bf16 v[{D1(t)}:{D1(t)+3}], v[{52+8*t}:{55+8*t}], v[20:23], 0')
    for t in range(4):
        a(f'v_mfma_f32_16x16x32_bf16 v[{D1(t)}:{D1(t)+3}], v[{56+8*t}:{59+8*t}], v[24:27], v[{D1(t)}:{D1(t)+3}]')
    for t in range(4):
        for kp in range(2):
            r = 52 + 4*(2*t+kp)
            a(f'ds_read_b64_tr_b16 v[{r}:{r+1}], v5 offset:{kp*32*128 + t*32}')
            a(f'ds_read_b64_tr_b16 v[{r+2}:{r+3}], v5 offset:{kp*32*128 + 16*128 + t*32}')
    HP = lambda t: 100 + 2*t
    for t in range(4):
        for hq in range(2):
            x, y = D1(t)+2*hq, D1(t)+2*hq+1
            a(f'v_cvt_pk_bf16_f32 v6, v{x}, v{y}')
            a(f'v_lshlrev_b32 v{x}, 16, v6')
            a(f'v_and_b32 v{y}, s22, v6')
            a(f'v_mul_f32 v7, 0xbfb8aa3b, v{x}')
            a(f'v_mul_f32 v8, 0xbfb8aa3b, v{y}')
            a('v_exp_f32 v7, v7')
            a('v_exp_f32 v8, v8')
            a('v_add_f32 v7, 1.0, v7')
            a('v_add_f32 v8, 1.0, v8')
            a('v_rcp_f32 v7, v7')
            a('v_rcp_f32 v8, v8')
            a(f'v_mul_f32 v7, v7, v{x}')
            a(f'v_mul_f32 v8, v8, v{y}')
            a(f'v_cvt_pk_bf16_f32 v{HP(t)+hq}, v7, v8')
    a('s_waitcnt lgkmcnt(0)')
    D2 = lambda t: 84 + 4*t
    for t in range(4):
        a(f'v_mfma_f32_16x16x32_bf16 v[{D2(t)}:{D2(t)+3}], v[{52+8*t}:{55+8*t}], v[100:103], 0')
    for t in range(4):
        a(f'v_mfma_f32_16x16x32_bf16 v[{D2(t)}:{D2(t)+3}], v[{56+8*t}:{59+8*t}], v[104:107], v[{D2(t)}:{D2(t)+3}]')
    a('s_waitcnt vmcnt(0)')
    a('v_lshl_add_u32 v18, v15, 4, v17')
    for t in range(4):
        for hq in range(2):
            x, y = D2(t)+2*hq, D2(t)+2*hq+1
            a(f'v_cvt_pk_bf16_f32 v6, v{x}, v{y}')
            a(f'v_lshlrev_b32 v{x}, 16, v6')
            a(f'v_and_b32 v{y}, s22, v6')
        o = 52 + 8*(t % 2)
        for k in range(3):
            for hq in range(2):
                vr = VV(k,t)+hq
                a(f'v_lshlrev_b32 v7, 16, v{vr}')
                a(f'v_and_b32 v8, s22, v{vr}')
                a(f'v_mul_f32 v7, v7, v{D2(t)+2*hq}')
                a(f'v_mul_f32 v8, v8, v{D2(t)+2*hq+1}')
                a(f'v_cvt_pk_bf16_f32 v{o+2*k+hq}, v7, v8')
        a(f'v_mov_b32 v{o+6}, v{HP(t)}')
        a(f'v_mov_b32 v{o+7}, v{HP(t)+1}')
        a(f'buffer_store_dwordx4 v[{o}:{o+3}], v18, s[36:39], 0 offen offset:{64*t}')
        a(f'buffer_store_dwordx4 v[{o+4}:{o+7}], v18, s[36:39], 0 offen offset:{256+64*t}')
    if STAMP:
        st.mark()
        a('s_waitcnt vmcnt(0)')
        st.mark(); st.mark(True)
        st.dump(110)
    a('s_endpgm')

    a.label('K1_CONST')
    srd(a, 28, 18, 16*192*2); srd(a, 32, 16, 64*192*2); srd_off(a, 36, 20, CIMG_OFF, 28672)
    a('v_and_b32 v1, 63, v0')
    a('v_and_b32 v2, 15, v1')
    a('v_lshrrev_b32 v3, 4, v1')
    a('v_bfe_u32 v4, v0, 6, 2')
    a('v_bfe_u32 v5, v0, 8, 1')
    a('v_lshlrev_b32 v6, 4, v3')
    a('v_lshl_add_u32 v6, v5, 1, v6')
    a('v_mul_u32_u24 v6, 384, v6')
    a('v_lshl_add_u32 v7, v2, 2, v4')
    a('v_lshl_add_u32 v6, v7, 1, v6')
    for part in range(2):
        for jj in range(8):
            off = (4*(jj & 3) + (jj >> 2))*384 + 256*part
            a(f'v_add_u32 v8, {off}, v6')
            a(f'buffer_load_ushort v{16+8*part+jj}, v8, s[32:35], 0 offen')
    a('v_lshlrev_b32 v9, 2, v3')
    a('v_mul_u32_u24 v9, 384, v9')
    a('v_lshl_add_u32 v9, v7, 1, v9')
    a('v_lshl_add_u32 v10, v5, 7, v9')
    for q in range(4):
        a(f'buffer_load_ushort v{32+q}, v10, s[28:31], 0 offen offset:{q*384}')
    for q in range(4):
        a(f'buffer_load_ushort v{36+q}, v9, s[28:31], 0 offen offset:{q*384+256}')
    a('s_waitcnt vmcnt(0)')
    a('v_lshlrev_b32 v11, 4, v0')
    for part in range(2):
        for h in range(4):
            a(f'v_lshl_or_b32 v{40+4*part+h}, v{16+8*part+2*h+1}, 16, v{16+8*part+2*h}')
        a(f'buffer_store_dwordx4 v[{40+4*part}:{43+4*part}], v11, s[36:39], 0 offen') if part == 0 else None
    a('v_add_u32 v12, 8192, v11')
    a('buffer_store_dwordx4 v[44:47], v12, s[36:39], 0 offen')
    for q in range(8):
        a(f'v_lshlrev_b32 v{32+q}, 16, v{32+q}')
    a('v_add_u32 v12, 16384, v11')
    a('buffer_store_dwordx4 v[32:35], v12, s[36:39], 0 offen')
    a('v_cmp_gt_u32 vcc, 256, v0')
    a('s_and_saveexec_b64 s[44:45], vcc')
    a('v_add_u32 v12, 24576, v11')
    a('buffer_store_dwordx4 v[36:39], v12, s[36:39], 0 offen')
    a.label('K1_END')
    a('s_endpgm')

def kd(name, vgpr, sgpr):
    return f'''.amdhsa_kernel {name}
  .amdhsa_next_free_vgpr {vgpr}
  .amdhsa_next_free_sgpr {sgpr}
  .amdhsa_accum_offset {(vgpr+3)//4*4}
  .amdhsa_group_segment_fixed_size 0
  .amdhsa_kernarg_size 88
  .amdhsa_user_sgpr_count 2
  .amdhsa_user_sgpr_kernarg_segment_ptr 1
  .amdhsa_system_sgpr_workgroup_id_x 1
.end_amdhsa_kernel
'''

def main():
    import gen_k2
    a = Asm()
    gen_k1(a)
    k2 = gen_k2.gen_k2(a)
    hdr = open('cdna_kernels/%s.s.ref' % NAME).read().split('; Override')[0]
    hdr += f'; @launch kernel=k1_kernel grid=({K1_GRID},1,1) block=(512,1,1) lds={K1_LDS}\n'
    if k2:
        hdr += f'; @launch kernel=k2_kernel grid=({NB},1,1) block=(512,1,1) lds={gen_k2.K2_LDS}\n'
    hdr += '.amdgcn_target "amdgcn-amd-amdhsa--gfx950"\n.text\n'
    body = a.finish()
    tail = '.section .rodata,"a"\n.p2align 6\n' + kd('k1_kernel', 120, 96)
    if k2:
        tail += '.p2align 6\n' + kd('k2_kernel', 256, 100)
    out = sys.argv[1] if len(sys.argv) > 1 else 'cdna_kernels/%s.s' % NAME
    open(out, 'w').write(hdr + body + tail)
    print('wrote', out, 'nops inserted', a.nops_inserted)

if __name__ == '__main__':
    main()
```

```python
import os
import gen as G

N = 12500
NSLOT = 49*128 + 32
DS_BASE = 0
POS = 12800
GS = POS + 75776
GSW = 2560
W2IMG = GS + 8*GSW
WRIMG = W2IMG + 16384
CNT = WRIMG + 12288
MISC = CNT + 256
K2_LDS = MISC + 128
PADMARK = 0x7000
MREG = GS
WCAP = 640

vLANE16, vFREQ, vKGWV, vKGDS, vWVA, vDSA, vOUTOFF = 1, 2, 3, 4, 5, 6, 7
SV = 8
vIMG = 12
vT0, vT1, vT2 = 13, 14, 15
DS = 16
vKGD, vDA, vLANE, vGSW = 20, 21, 22, 23
POOL = 24
GR = 56
L0 = 72; L1 = 104
ACCV = 136; ACCH = 184
vSEGLO, vSEGHI = 248, 249
vM1, vM2 = 250, 251
vPFX = 253
sTAB, sWS, sSV, sOUT = 12, 16, 20, 24
sMASK, sSELLO, sSELHI, s512 = 28, 29, 30, 31
sN0, sNN = 32, 33
sJC, sNSTC, sJN, sNSTN, sK, sBASE, sNBASE, sJNN, sLAST = 34, 35, 36, 37, 38, 39, 40, 41, 42
sWAVE, sF0, sW, sTOT, sNV, sFIRST, sRLAST = 43, 44, 45, 46, 47, 48, 49
sEX = 50
sT = 52
sMK = 56
sMORE, sCNTN, sFIVE, sGS = 76, 77, 78, 79
sPOSP = 80
sOVF = 88
sT2 = 90
sBK = 91

STAMP = os.environ.get('STAMP','0') == '1'
def mark(a, real=False):
    if not STAMP: return
    a(f"{'s_memrealtime' if real else 's_memtime'} s[100:101]")
    a('s_waitcnt lgkmcnt(0)')
    a('s_min_u32 s98, s98, 63')
    a('s_mov_b32 m0, s98')
    a('s_nop 1')
    a('v_writelane_b32 v252, s100, m0')
    a('s_add_u32 s98, s98, 1')
def dump(a):
    if not STAMP: return
    a('s_load_dwordx2 s[100:101], s[0:1], 80')
    a('s_waitcnt lgkmcnt(0)')
    a(f's_add_u32 s56, s100, {G.STAMP_OFF+0x100000}')
    a('s_addc_u32 s57, s101, 0')
    a('s_and_b32 s57, s57, 0xffff')
    a('s_mov_b32 s58, 0x100000')
    a('s_mov_b32 s59, 0x20000')
    a('s_mov_b64 exec, -1')
    a('v_lshrrev_b32 v13, 6, v0')
    a('v_lshlrev_b32 v13, 8, v13')
    a('v_and_b32 v14, 63, v0')
    a('v_lshl_add_u32 v13, v14, 2, v13')
    a('s_lshl_b32 s60, s2, 11')
    a('buffer_store_dword v252, v13, s[56:59], s60 offen')
    a('s_waitcnt vmcnt(0)')

def Gr(w, p): return GR + 4*w + p
def accV(k, tau): return ACCV + 16*k + 4*tau
def accH(w, t): return ACCH + 16*w + 4*t
def rng(b, n=4): return f'v[{b}:{b+n-1}]'

def addr_calc(a, ADDR):
    for j in range(8):
        a(f'v_mad_u32_u16 v{ADDR+j}, v{DS+(j>>1)}, s{s512}, v{vLANE16} op_sel:[{j&1},0,0,0]')

def step(a, first):
    S = [POOL + j for j in range(8)]
    WVa, WVb = POOL + 8, POOL + 16
    TMP = POOL + 24
    WVB = [WVa, WVb]
    def rd_pair(p):
        b = WVB[p % 2]
        a(f'ds_read_b128 {rng(b)}, v{vWVA} offset:{(2*p)*16}')
        a(f'ds_read_b128 {rng(b+4)}, v{vWVA} offset:{(2*p+1)*16}')
    if first:
        a(f'v_mov_b32 v{vT0}, {MISC}')
        a(f'v_mov_b32 v{vT1}, 1')
        a(f's_min_u32 s{sT}, s{sJN}, 49')
        a(f's_lshl_b32 s{sT}, s{sT}, 2')
        a(f's_add_u32 s{sT}, s{sT}, {CNT}')
        a(f'v_mov_b32 v{vT2}, s{sT}')
        a(f's_mov_b64 s[{sEX}:{sEX+1}], exec')
        a('s_mov_b64 exec, 1')
        a(f'ds_add_rtn_u32 v{vM1}, v{vT0}, v{vT1}')
        a(f'ds_read_b32 v{vM2}, v{vT2}')
        a(f's_mov_b64 exec, s[{sEX}:{sEX+1}]')
    a(f'ds_read_b128 {rng(S[0])}, v{vDA}')
    a(f'ds_read_b128 {rng(S[4])}, v{vDA} offset:16')
    rd_pair(0); rd_pair(1)
    a(f's_add_u32 s{sT}, s{sK}, 1')
    a(f's_cmp_eq_u32 s{sT}, s{sNSTC}')
    a(f's_cselect_b32 s{sLAST}, 1, 0')
    a(f's_min_u32 s{sT+1}, s{sJN}, 49')
    a(f's_lshl_b32 s{sT+1}, s{sT+1}, 7')
    a(f's_add_u32 s{sT+2}, s{sBASE}, 32')
    a(f's_cmp_eq_u32 s{sLAST}, 1')
    a(f's_cselect_b32 s{sNBASE}, s{sT+1}, s{sT+2}')
    a(f's_lshl_b32 s{sT}, s{sNBASE}, 1')
    a(f'v_add_u32 v{vDSA}, s{sT}, v{vKGDS}')
    a('s_waitcnt lgkmcnt(4)')
    for p in range(4):
        j0, j1 = 2*p, 2*p+1
        t0, t1, tp = TMP + (p % 2)*4, TMP + (p % 2)*4 + 1, TMP + (p % 2)*4 + 2
        a(f'v_mul_f32 v{t0}, v{S[j0]}, v{vFREQ}')
        a(f'v_mul_f32 v{t1}, v{S[j1]}, v{vFREQ}')
        a(f'v_cvt_pk_bf16_f32 v{tp}, v{t0}, v{t1}')
        a(f'v_lshlrev_b32 v{t0}, 16, v{tp}')
        a(f'v_and_b32 v{t1}, s{sMASK}, v{tp}')
        a(f'v_mul_f32 v{t0}, 0.15915494, v{t0}')
        a(f'v_mul_f32 v{t1}, 0.15915494, v{t1}')
        a(f'v_sin_f32 v{S[j0]}, v{t0}')
        a(f'v_sin_f32 v{S[j1]}, v{t1}')
    for p in range(4):
        j0, j1 = 2*p, 2*p+1
        b = WVB[p % 2]
        a(f's_waitcnt lgkmcnt({2 if p < 3 else 1})')
        for w in range(4):
            t0, t1 = TMP + 2*(w % 2), TMP + 2*(w % 2) + 1
            a(f'v_mul_f32 v{t0}, v{S[j0]}, v{b+w}')
            a(f'v_mul_f32 v{t1}, v{S[j1]}, v{b+4+w}')
            a(f'v_cvt_pk_bf16_f32 v{Gr(w,p)}, v{t0}, v{t1}')
        if p < 2: rd_pair(p+2)
        elif p == 2:
            a(f'ds_read_b128 {rng(DS)}, v{vDSA}')
    if first:
        a(f'v_readfirstlane_b32 s{sJNN}, v{vM1}')
        a(f'v_readfirstlane_b32 s{sCNTN}, v{vM2}')
        a(f's_add_u32 s{sNSTN}, s{sCNTN}, 31')
        a(f's_lshr_b32 s{sNSTN}, s{sNSTN}, 5')
        a(f's_max_u32 s{sNSTN}, s{sNSTN}, 1')
    TB = [POOL + 4*i for i in range(4)]
    ADDR = POOL + 16
    def perms(L, q, half, dst):
        sel = sSELHI if half else sSELLO
        for p in range(4):
            a(f'v_perm_b32 v{dst+p}, v{L+4*(2*p+1)+q}, v{L+4*(2*p)+q}, s{sel}')
    def mf(acc, A, B):
        c = '0' if first else rng(acc)
        a(f'v_mfma_f32_16x16x32_bf16 {rng(acc)}, {rng(A)}, {rng(B)}, {c}')
    a('s_waitcnt vmcnt(8)')
    for t in range(8):
        perms(L0, t >> 1, t & 1, TB[t % 4])
        if t >= 1:
            mf(accV((t-1) >> 2, (t-1) & 3), Gr(0,0), TB[(t-1) % 4])
    a('s_waitcnt lgkmcnt(0)')
    for j in range(8):
        a(f'v_mad_u32_u16 v{ADDR+j}, v{DS+(j>>1)}, s{s512}, v{vLANE16} op_sel:[{j&1},0,0,0]')
        if j == 1: mf(accV(1, 3), Gr(0,0), TB[7 % 4])
    for j in range(8):
        a(f'buffer_load_dwordx4 {rng(L0+4*j)}, v{ADDR+j}, s[{sTAB}:{sTAB+3}], 0 offen')
    a('s_waitcnt vmcnt(8)')
    order = [('h', t) for t in range(4)] + [('z', t) for t in range(4)]
    def tile_perm_list(kind, t, dst):
        q = (2 + (t >> 1)) if kind == 'h' else (t >> 1)
        half = t & 1
        sel = sSELHI if half else sSELLO
        return [f'v_perm_b32 v{dst+p}, v{L1+4*(2*p+1)+q}, v{L1+4*(2*p)+q}, s{sel}' for p in range(4)]
    def tile_mfma_list(kind, t, src):
        out = []
        if kind == 'h':
            for w in range(4):
                acc = accH(w, t); c = '0' if first else rng(acc)
                out.append(f'v_mfma_f32_16x16x32_bf16 {rng(acc)}, {rng(src)}, {rng(Gr(w,0))}, {c}')
        else:
            acc = accV(2, t); c = '0' if first else rng(acc)
            out.append(f'v_mfma_f32_16x16x32_bf16 {rng(acc)}, {rng(Gr(0,0))}, {rng(src)}, {c}')
        return out
    for l in tile_perm_list(*order[0], TB[0]): a(l)
    for i in range(1, 8):
        pl = tile_perm_list(*order[i], TB[i % 4])
        ml = tile_mfma_list(*order[i-1], TB[(i-1) % 4])
        if len(ml) == 4:
            a(pl[0]); a(pl[1]); a(ml[0]); a(pl[2]); a(ml[1]); a(pl[3]); a(ml[2]); a(ml[3])
        else:
            for l in pl: a(l)
            a(ml[0])
    ml = tile_mfma_list(*order[7], TB[7 % 4])
    for j in range(8):
        a(f'buffer_load_dwordx4 {rng(L1+4*j)}, v{ADDR+j}, s[{sTAB}:{sTAB+3}], 0 offen offset:256')
        if j == 1: a(ml[0])
    a(f's_mov_b32 s{sBASE}, s{sNBASE}')
    a(f'v_add_u32 v{vWVA}, 512, v{vWVA}')
    a(f'v_add_u32 v{vDA}, 128, v{vDA}')

def geometry(a, sJ, sCNT, tag):
    P = POOL
    src = [P, P+1]; D = [P+2, P+4]
    dp = [P+6, P+7, P+8]
    T = list(range(P+10, P+32))
    a(f's_lshl_b32 s{sT}, s{sJ}, 8')
    a(f'v_lshlrev_b32 v{T[0]}, 1, v{vLANE}')
    a(f'v_add_u32 v{T[0]}, s{sT}, v{T[0]}')
    a(f'ds_read_u16 v{src[0]}, v{T[0]}')
    a(f'ds_read_u16 v{src[1]}, v{T[0]} offset:128')
    a(f's_add_u32 s{sT}, s{sN0}, s{sJ}')
    a(f's_mul_i32 s{sT}, s{sT}, 6')
    a(f's_add_u32 s{sT}, s{sT}, {POS}')
    a(f's_min_u32 s{sT}, s{sT}, {POS+75000-6}')
    a(f'v_mov_b32 v{T[1]}, s{sT}')
    for c in range(3): a(f'v_mov_b32 v{dp[c]}, 0')
    for c in range(3): a(f'ds_read_u16_d16_hi v{dp[c]}, v{T[1]} offset:{2*c}')
    for it in range(2):
        if it == 1:
            a(f's_cmp_le_u32 s{sCNT}, 64')
            a(f's_cbranch_scc1 K2_GEO_END_{tag}')
        if it == 0: a('s_waitcnt lgkmcnt(3)')
        s = src[it]
        a(f's_sub_i32 s{sT+1}, s{sCNT}, {64*it}')
        a(f'v_cmp_gt_i32 s[{sT+2}:{sT+3}], s{sT+1}, v{vLANE}')
        a(f'v_cndmask_b32 v{s}, 0, v{s}, s[{sT+2}:{sT+3}]')
        a(f'v_mul_u32_u24 v{T[0]}, 6, v{s}')
        a(f'v_and_b32 v{T[1]}, 1, v{s}')
        a(f'v_and_b32 v{T[0]}, -4, v{T[0]}')
        a(f'v_add_u32 v{T[0]}, {POS}, v{T[0]}')
        a(f'ds_read2_b32 v[{D[it]}:{D[it]+1}], v{T[0]} offset0:0 offset1:1')
        a(f'v_lshlrev_b32 v{T[1]}, 4, v{T[1]}')
        a('s_waitcnt lgkmcnt(0)')
        rx, ry, rz, p = T[2], T[3], T[4], T[5]
        a(f'v_alignbit_b32 v{ry}, v{D[it]+1}, v{D[it]}, v{T[1]}')
        a(f'v_lshrrev_b32 v{rz}, v{T[1]}, v{D[it]+1}')
        a(f'v_lshlrev_b32 v{rx}, 16, v{ry}')
        a(f'v_and_b32 v{ry}, s{sMASK}, v{ry}')
        a(f'v_lshlrev_b32 v{rz}, 16, v{rz}')
        a(f'v_sub_f32 v{rx}, v{rx}, v{dp[0]}')
        a(f'v_sub_f32 v{ry}, v{ry}, v{dp[1]}')
        a(f'v_sub_f32 v{rz}, v{rz}, v{dp[2]}')
        def rnd2(x, y):
            a(f'v_cvt_pk_bf16_f32 v{p}, v{x}, v{y}')
            a(f'v_lshlrev_b32 v{x}, 16, v{p}')
            a(f'v_and_b32 v{y}, s{sMASK}, v{p}')
        def rnd1(x):
            a(f'v_cvt_pk_bf16_f32 v{x}, v{x}, v{x}')
            a(f'v_and_b32 v{x}, s{sMASK}, v{x}')
        rnd2(rx, ry); rnd1(rz)
        qx, qy, qz = T[6], T[7], T[8]
        a(f'v_mul_f32 v{qx}, v{rx}, v{rx}')
        a(f'v_mul_f32 v{qy}, v{ry}, v{ry}')
        a(f'v_mul_f32 v{qz}, v{rz}, v{rz}')
        rnd2(qx, qy); rnd1(qz)
        d = T[9]
        a(f'v_add_f32 v{d}, v{qx}, v{qy}')
        a(f'v_add_f32 v{d}, v{d}, v{qz}')
        rnd1(d)
        a(f'v_add_f32 v{d}, 0x322bcc77, v{d}')
        rnd1(d)
        a(f'v_sqrt_f32 v{d}, v{d}')
        rnd1(d)
        inv, t = qx, qy
        a(f'v_rcp_f32 v{inv}, v{d}')
        a(f'v_mul_f32 v{t}, 0x40490fdb, v{d}')
        rnd1(t)
        a(f'v_mul_f32 v{rx}, v{rx}, v{inv}')
        a(f'v_mul_f32 v{ry}, v{ry}, v{inv}')
        a(f'v_mul_f32 v{rz}, v{rz}, v{inv}')
        a(f'v_mul_f32 v{t}, 0x3e4ccccd, v{t}')
        rnd2(rx, ry)
        rnd1(t)
        rnd1(rz)
        a(f'v_mul_f32 v{t}, 0.15915494, v{t}')
        a(f'v_cos_f32 v{t}, v{t}')
        a(f'v_mul_f32 v{inv}, 0.5, v{inv}')
        rnd1(t)
        a(f'v_add_f32 v{t}, 1.0, v{t}')
        rnd1(t)
        a(f'v_cmp_gt_f32 vcc, 0x40a00000, v{d}')
        a(f'v_mul_f32 v{t}, v{t}, v{inv}')
        a(f's_and_b64 vcc, vcc, s[{sT+2}:{sT+3}]')
        O = P + 28
        a(f'v_cndmask_b32 v{O}, 0, v{t}, vcc')
        a(f'v_cndmask_b32 v{d}, 0, v{d}, vcc')
        a(f'v_mul_f32 v{O+1}, v{O}, v{rx}')
        a(f'v_mul_f32 v{O+2}, v{O}, v{ry}')
        a(f'v_mul_f32 v{O+3}, v{O}, v{rz}')
        a(f'v_lshl_add_u32 v{T[0]}, v{vLANE}, 2, v{vGSW}')
        a(f'ds_write_b32 v{T[0]}, v{d} offset:{256*it}')
        a(f'v_lshl_add_u32 v{T[1]}, v{vLANE}, 4, v{vGSW}')
        a(f'ds_write_b128 v{T[1]}, {rng(O)} offset:{512+1024*it}')
    a.label(f'K2_GEO_END_{tag}')
    a(f'v_mov_b32 v{vWVA}, v{vKGWV}')
    a(f'v_mov_b32 v{vDA}, v{vKGD}')

def epilogue(a):
    F = [accH(w, t) for w in range(4) for t in (1, 3)]
    WRB = F[0:4]
    O = F[4:8]
    W2 = POOL
    def rd_w2(part):
        for kp in range(2):
            for tau in range(4):
                a(f'ds_read_b128 {rng(W2+16*kp+4*tau)}, v{vIMG} offset:{part*8192+kp*4096+tau*1024}')
    def rd_wr(p):
        for tau in range(4):
            a(f'ds_read_b128 {rng(WRB[tau])}, v{vIMG} offset:{16384+p*4096+tau*1024}')
    rd_w2(0)
    for w in range(4):
        for kp in range(2):
            e, o = accH(w, 2*kp), accH(w, 2*kp+1)
            a(f'v_cvt_pk_bf16_f32 v{e}, v{e}, v{e+1}')
            a(f'v_cvt_pk_bf16_f32 v{e+1}, v{e+2}, v{e+3}')
            a(f'v_cvt_pk_bf16_f32 v{e+2}, v{o}, v{o+1}')
            a(f'v_cvt_pk_bf16_f32 v{e+3}, v{o+2}, v{o+3}')
    rd_wr(1)
    a('s_waitcnt lgkmcnt(4)')
    for tau in range(4):
        a(f'v_mfma_f32_16x16x32_bf16 {rng(GR+4*tau)}, {rng(accH(0,0))}, {rng(W2+4*tau)}, 0')
    for tau in range(4):
        a(f'v_mfma_f32_16x16x32_bf16 {rng(GR+4*tau)}, {rng(accH(0,2))}, {rng(W2+16+4*tau)}, {rng(GR+4*tau)}')
    rd_w2(1)
    a('s_waitcnt lgkmcnt(8)')
    for k in range(3):
        for tau in range(4):
            o = O[1+k] + tau; s = accV(k, tau); c = WRB[tau]
            a(f'v_mul_f32 v{o}, v{c}, v{s}')
        for q in range(1, 4):
            for tau in range(4):
                o = O[1+k] + tau; s = accV(k, tau); c = WRB[tau]
                a(f'v_fmac_f32 v{o}, v{c+q}, v{s+q}')
    rd_wr(0)
    a('s_waitcnt lgkmcnt(4)')
    for k in range(3):
        for tau in range(4):
            a(f'v_mfma_f32_16x16x32_bf16 {rng(accV(k,tau))}, {rng(accH(1+k,0))}, {rng(W2+4*tau)}, 0')
        for tau in range(4):
            a(f'v_mfma_f32_16x16x32_bf16 {rng(accV(k,tau))}, {rng(accH(1+k,2))}, {rng(W2+16+4*tau)}, {rng(accV(k,tau))}')
    a('s_waitcnt lgkmcnt(0)')
    for tau in range(4):
        a(f'v_mul_f32 v{O[0]+tau}, v{WRB[tau]}, v{GR+4*tau}')
    for q in range(1, 4):
        for tau in range(4):
            a(f'v_fmac_f32 v{O[0]+tau}, v{WRB[tau]+q}, v{GR+4*tau+q}')
    rd_wr(2)
    a('s_waitcnt lgkmcnt(0)')
    for k in range(3):
        for q in range(4):
            for tau in range(4):
                a(f'v_fmac_f32 v{O[1+k]+tau}, v{WRB[tau]+q}, v{accV(k,tau)+q}')
    for w in range(4):
        a(f'v_permlane32_swap_b32 v{O[w]}, v{O[w]+2}')
        a(f'v_permlane32_swap_b32 v{O[w]+1}, v{O[w]+3}')
    for w in range(4):
        a(f'v_add_f32 v{O[w]}, v{O[w]}, v{O[w]+2}')
        a(f'v_add_f32 v{O[w]+1}, v{O[w]+1}, v{O[w]+3}')
    for w in range(4):
        a(f'v_permlane16_swap_b32 v{O[w]}, v{O[w]+1}')
    for w in range(4):
        a(f'v_add_f32 v{O[w]}, v{O[w]}, v{O[w]+1}')
    R = [O[w] for w in range(4)]
    a(f's_add_u32 s{sT}, s{sN0}, s{sJC}')
    a(f's_and_b32 s{sT+1}, s{sFIRST}, s{sRLAST}')
    a(f's_cmp_eq_u32 s{sT+1}, 1')
    a('s_cbranch_scc1 K2_EPI_FINAL')
    a(f's_lshl_b32 s{sT+1}, s{sT}, 10')
    a(f's_add_u32 s{sT+1}, s{sT+1}, {G.PART_OFF}')
    a(f'v_lshlrev_b32 v{vT0}, 2, v{vLANE}')
    a(f's_cmp_eq_u32 s{sFIRST}, 1')
    a('s_cbranch_scc1 K2_EPI_NOLOAD')
    for w in range(4):
        a(f'buffer_load_dword v{GR+w}, v{vT0}, s[{sWS}:{sWS+3}], s{sT+1} offen offset:{256*w}')
    a('s_waitcnt vmcnt(0)')
    for w in range(4):
        a(f'v_add_f32 v{R[w]}, v{R[w]}, v{GR+w}')
    a.label('K2_EPI_NOLOAD')
    a(f's_cmp_eq_u32 s{sRLAST}, 1')
    a('s_cbranch_scc1 K2_EPI_FINAL')
    for w in range(4):
        a(f'buffer_store_dword v{R[w]}, v{vT0}, s[{sWS}:{sWS+3}], s{sT+1} offen offset:{256*w}')
    a('s_waitcnt vmcnt(0)')
    a('s_branch K2_EPI_DONE')
    a.label('K2_EPI_FINAL')
    p01, p23 = GR, GR+1
    x = [GR+2+w for w in range(4)]
    a(f'v_cvt_pk_bf16_f32 v{p01}, v{R[0]}, v{R[1]}')
    a(f'v_cvt_pk_bf16_f32 v{p23}, v{R[2]}, v{R[3]}')
    a(f'v_lshlrev_b32 v{x[0]}, 16, v{p01}')
    a(f'v_and_b32 v{x[1]}, s{sMASK}, v{p01}')
    a(f'v_lshlrev_b32 v{x[2]}, 16, v{p23}')
    a(f'v_and_b32 v{x[3]}, s{sMASK}, v{p23}')
    for w in range(4):
        a(f'v_add_f32 v{x[w]}, v{x[w]}, v{SV+w}')
    a(f'v_cvt_pk_bf16_f32 v{p01}, v{x[0]}, v{x[1]}')
    a(f'v_cvt_pk_bf16_f32 v{p23}, v{x[2]}, v{x[3]}')
    a(f's_lshl_b32 s{sT+1}, s{sT}, 9')
    a(f'buffer_store_short v{p01}, v{vOUTOFF}, s[{sOUT}:{sOUT+3}], s{sT+1} offen')
    a(f'buffer_store_short_d16_hi v{p01}, v{vOUTOFF}, s[{sOUT}:{sOUT+3}], s{sT+1} offen offset:128')
    a(f'buffer_store_short v{p23}, v{vOUTOFF}, s[{sOUT}:{sOUT+3}], s{sT+1} offen offset:256')
    a(f'buffer_store_short_d16_hi v{p23}, v{vOUTOFF}, s[{sOUT}:{sOUT+3}], s{sT+1} offen offset:384')
    a.label('K2_EPI_DONE')

def sv_loads(a, sj):
    a(f's_add_u32 s{sT}, s{sN0}, s{sj}')
    a(f's_lshl_b32 s{sT}, s{sT}, 9')
    for w in range(4):
        a(f'buffer_load_short_d16_hi v{SV+w}, v{vOUTOFF}, s[{sSV}:{sSV+3}], s{sT} offen offset:{128*w}')

def gen_k2(a):
    a.raw('.globl k2_kernel\n.p2align 8\n.type k2_kernel,@function')
    a.label('k2_kernel')
    a('s_load_dwordx4 s[4:7], s[0:1], 0')
    a('s_load_dwordx2 s[96:97], s[0:1], 32')
    a('s_load_dwordx2 s[8:9], s[0:1], 64')
    a('s_load_dwordx2 s[10:11], s[0:1], 80')
    a(f's_cmp_ge_u32 s2, {G.NB}')
    a('s_cbranch_scc1 K2_END')
    a(f's_mov_b32 s{sMASK}, 0xffff0000')
    a(f's_mov_b32 s{sSELLO}, 0x05040100')
    a(f's_mov_b32 s{sSELHI}, 0x07060302')
    a(f's_mov_b32 s{s512}, 512')
    a(f's_and_b32 s{sBK}, s2, 7')
    a(f's_lshl_b32 s{sBK}, s{sBK}, 5')
    a(f's_lshr_b32 s{sT}, s2, 3')
    a(f's_or_b32 s{sBK}, s{sBK}, s{sT}')
    a(f's_mul_i32 s{sN0}, s{sBK}, 12500')
    a(f's_add_u32 s{sNN}, s{sN0}, {12500+255}')
    a(f's_add_u32 s{sN0}, s{sN0}, 255')
    a(f's_lshr_b32 s{sN0}, s{sN0}, 8')
    a(f's_lshr_b32 s{sNN}, s{sNN}, 8')
    a(f's_sub_u32 s{sNN}, s{sNN}, s{sN0}')
    a(f'v_and_b32 v{vLANE}, 63, v0')
    a(f'v_and_b32 v{vT1}, 15, v{vLANE}')
    a(f'v_lshrrev_b32 v{vT2}, 4, v{vLANE}')
    a(f'v_lshlrev_b32 v{vLANE16}, 4, v{vT1}')
    a('v_lshrrev_b32 v16, 6, v0')
    a(f'v_readfirstlane_b32 s{sWAVE}, v16')
    a(f'v_lshlrev_b32 v{vKGDS}, 4, v{vT2}')
    a(f'v_lshl_add_u32 v{vOUTOFF}, v{vT1}, 2, v{vT2}')
    a(f'v_lshlrev_b32 v{vOUTOFF}, 1, v{vOUTOFF}')
    a(f'v_lshlrev_b32 v{vIMG}, 4, v{vLANE}')
    a(f'v_add_u32 v{vIMG}, {W2IMG}, v{vIMG}')
    a(f's_mul_i32 s{sGS}, s{sWAVE}, {GSW}')
    a(f's_add_u32 s{sGS}, s{sGS}, {GS}')
    a(f'v_mov_b32 v{vGSW}, s{sGS}')
    a(f'v_lshlrev_b32 v{vKGWV}, 7, v{vT2}')
    a(f'v_add_u32 v{vKGWV}, v{vKGWV}, v{vGSW}')
    a(f'v_add_u32 v{vKGWV}, 512, v{vKGWV}')
    a(f'v_lshlrev_b32 v{vKGD}, 5, v{vT2}')
    a(f'v_add_u32 v{vKGD}, v{vKGD}, v{vGSW}')
    a(f'v_mov_b32 v{vFREQ}, 0')
    a(f'v_lshlrev_b32 v{vT1}, 1, v{vT1}')
    a('s_waitcnt lgkmcnt(0)')
    G.srd(a, sWS, 10, G.WS_USED)
    if STAMP:
        a('s_mov_b32 s98, 0')
        a('v_mov_b32 v252, -1')
    mark(a, True); mark(a)
    a(f'v_lshl_add_u32 v17, v16, 5, v{vLANE}')
    a(f'v_cmp_gt_u32 vcc, 32, v{vLANE}')
    a(f'v_mov_b32 v{vSEGLO}, 0')
    a(f'v_mov_b32 v18, {G.NCH}')
    a(f'v_cmp_lt_u32 s[{sT}:{sT+1}], v17, v18')
    a(f's_and_b64 vcc, vcc, s[{sT}:{sT+1}]')
    a('v_lshlrev_b32 v18, 2, v17')
    a(f's_lshl_b32 s{sT}, s{sBK}, 10')
    a(f's_add_u32 s{sT}, s{sT}, {G.SEG_OFF}')
    a(f's_and_saveexec_b64 s[{sEX}:{sEX+1}], vcc')
    a(f'buffer_load_dword v{vSEGLO}, v18, s[{sWS}:{sWS+3}], s{sT} offen')
    a(f's_mov_b64 exec, s[{sEX}:{sEX+1}]')
    G.srd(a, sTAB, 10, G.TAB_SZ); G.srd(a, sSV, 4, N*512); G.srd(a, sOUT, 8, N*512); G.srd(a, sPOSP, 6, N*6)
    a(f'global_load_short_d16_hi v{vFREQ}, v{vT1}, s[96:97]')
    a(f's_mov_b32 s{sF0}, 0')
    a(f's_mov_b32 s{sW}, {WCAP}')
    a(f's_mov_b32 s{sFIRST}, 1')
    a(f'v_mul_u32_u24 v{vSEGHI}, {G.CHE}, v17')
    a('s_waitcnt vmcnt(1)')
    mark(a)
    a(f'v_and_b32 v18, 0xffff, v{vSEGLO}')
    a(f'v_add_u32 v{vSEGHI}, v{vSEGHI}, v18')
    a(f'v_lshrrev_b32 v{vSEGLO}, 16, v{vSEGLO}')
    a(f'v_mov_b32 v{vPFX}, v{vSEGLO}')
    for sh in (1, 2, 4, 8):
        a(f'v_add_u32_dpp v{vPFX}, v{vPFX}, v{vPFX} row_shr:{sh} row_mask:0xf bank_mask:0xf')
    a(f'v_add_u32_dpp v{vPFX}, v{vPFX}, v{vPFX} row_bcast:15 row_mask:0xa bank_mask:0xf')
    a(f'v_readlane_b32 s{sTOT}, v{vPFX}, 31')
    a(f'v_sub_u32 v{vPFX}, v{vPFX}, v{vSEGLO}')
    a('s_branch K2_ROUND_IN')
    a.label('K2_ROUND')
    a('s_barrier')
    a.label('K2_ROUND_IN')
    a('v_lshlrev_b32 v18, 4, v0')
    a('v_mov_b32 v24, 0\nv_mov_b32 v25, 0\nv_mov_b32 v26, 0\nv_mov_b32 v27, 0')
    a(f'v_add_u32 v19, {CNT}, v18')
    a('v_cmp_gt_u32 vcc, 24, v0')
    a(f's_and_saveexec_b64 s[{sEX}:{sEX+1}], vcc')
    a('ds_write_b128 v19, v[24:27]')
    a(f's_mov_b64 exec, s[{sEX}:{sEX+1}]')
    a(f'v_subrev_u32 v30, s{sF0}, v{vPFX}')
    a('v_sub_u32 v31, 0, v30')
    a('v_max_i32 v31, 0, v31')
    a(f'v_sub_u32 v32, s{sW}, v30')
    a(f'v_min_i32 v32, v32, v{vSEGLO}')
    a('v_add_u32 v33, v30, v31')
    a('v_lshlrev_b32 v33, 2, v33')
    a(f'v_add_u32 v33, s{sGS}, v33')
    a(f'v_add_lshl_u32 v28, v{vSEGHI}, v31, 2')
    a('v_sub_u32 v32, v32, v31')
    a.label('K2_MK')
    a('v_cmp_lt_i32 vcc, 0, v32')
    a('s_cbranch_vccz K2_MK_DONE')
    a(f's_and_saveexec_b64 s[{sEX}:{sEX+1}], vcc')
    a('ds_write_b32 v33, v28')
    a('v_add_u32 v29, 4, v28')
    a('v_cmp_lt_i32 vcc, 1, v32')
    a('s_and_b64 exec, exec, vcc')
    a('ds_write_b32 v33, v29 offset:4')
    a(f's_mov_b64 exec, s[{sEX}:{sEX+1}]')
    a('v_add_u32 v33, 8, v33')
    a('v_add_u32 v28, 8, v28')
    a('v_subrev_u32 v32, 2, v32')
    a('s_branch K2_MK')
    a.label('K2_MK_DONE')
    a(f's_sub_i32 s{sT}, s{sTOT}, s{sF0}')
    a(f's_max_i32 s{sT}, s{sT}, 0')
    a(f's_min_i32 s{sNV}, s{sT}, s{sW}')
    a(f's_cmp_gt_i32 s{sT}, s{sW}')
    a(f's_cselect_b32 s{sMORE}, 1, 0')
    U = WCAP // 64
    a(f'v_lshl_add_u32 v30, v{vLANE}, 2, v{vGSW}')
    RIDX = lambda u: 116 + u
    for u in range(U):
        a(f'ds_read_b32 v{RIDX(u)}, v30 offset:{256*u}')
    for u in range(U):
        a(f's_sub_i32 s{sT}, s{sNV}, {64*u}')
        a(f'v_cmp_gt_i32 s[{sMK+2*u}:{sMK+2*u+1}], s{sT}, v{vLANE}')
    a(f's_mov_b32 s{sT2}, {G.REC_OFF}')
    RR = lambda u: 136 + u
    a(f's_mov_b64 s[{sEX}:{sEX+1}], exec')
    for u in range(U):
        a(f's_waitcnt lgkmcnt({U-1-u})')
        a(f's_mov_b64 exec, s[{sMK+2*u}:{sMK+2*u+1}]')
        a(f'buffer_load_dword v{RR(u)}, v{RIDX(u)}, s[{sWS}:{sWS+3}], s{sT2} offen')
    a(f's_mov_b64 exec, s[{sEX}:{sEX+1}]')
    a(f's_cmp_eq_u32 s{sFIRST}, 1')
    a('s_cbranch_scc0 K2_NODMA')
    a(f'v_lshlrev_b32 v34, 4, v{vLANE}')
    a(f's_mul_i32 s{sT}, s2, 9')
    a(f's_add_u32 s{sT}, s{sT}, s{sWAVE}')
    for i in range(10):
        a(f's_add_u32 s{sT+1}, s{sT}, {8*i}')
        a(f's_mul_hi_u32 s{sT+2}, s{sT+1}, {(1<<32)//74+1}')
        a(f's_mul_i32 s{sT+2}, s{sT+2}, 74')
        a(f's_sub_u32 s{sT+1}, s{sT+1}, s{sT+2}')
        a(f's_lshl_b32 s{sT+1}, s{sT+1}, 10')
        a(f's_add_u32 s{sT+2}, s{sT+1}, {POS}')
        a(f's_mov_b32 m0, s{sT+2}')
        a('s_nop 0')
        a(f'buffer_load_dwordx4 v34, s[{sPOSP}:{sPOSP+3}], s{sT+1} offen lds')
    for i in range(4):
        if i == 3:
            a(f's_cmp_ge_u32 s{sWAVE}, 4')
            a('s_cbranch_scc1 K2_NODMA')
        a(f's_add_u32 s{sT+1}, s{sWAVE}, {8*i}')
        a(f's_lshl_b32 s{sT+1}, s{sT+1}, 10')
        a(f's_add_u32 s{sT+2}, s{sT+1}, {W2IMG}')
        a(f's_mov_b32 m0, s{sT+2}')
        a(f's_add_u32 s{sT+1}, s{sT+1}, {G.CIMG_OFF}')
        a(f'buffer_load_dwordx4 v34, s[{sWS}:{sWS+3}], s{sT+1} offen lds')
    a.label('K2_NODMA')
    a('s_waitcnt lgkmcnt(0)')
    mark(a)
    a('s_barrier')
    a(f's_cmp_eq_u32 s{sFIRST}, 1')
    a('s_cbranch_scc1 K2_WREC1')
    a('s_waitcnt vmcnt(0)')
    a('s_branch K2_WREC2')
    a.label('K2_WREC1')
    a('s_waitcnt vmcnt(13)')
    a.label('K2_WREC2')
    mark(a)
    DL = lambda u: 92 + u
    RK = lambda u: 102 + u
    a('v_mov_b32 v28, 1')
    for u in range(U):
        a(f's_cmp_eq_u64 s[{sMK+2*u}:{sMK+2*u+1}], 0')
        a('s_cbranch_scc1 K2_AT_DONE')
        a(f's_mov_b64 exec, s[{sMK+2*u}:{sMK+2*u+1}]')
        a(f'v_lshrrev_b32 v{DL(u)}, 16, v{RR(u)}')
        a(f'v_subrev_u32 v{DL(u)}, s{sN0}, v{DL(u)}')
        a(f'v_lshlrev_b32 v36, 2, v{DL(u)}')
        a(f'v_add_u32 v36, {CNT}, v36')
        a(f'ds_add_rtn_u32 v{RK(u)}, v36, v28')
    a.label('K2_AT_DONE')
    a('s_waitcnt lgkmcnt(0)')
    a(f's_mov_b64 s[{sOVF}:{sOVF+1}], 0')
    for u in range(U):
        a(f's_cmp_eq_u64 s[{sMK+2*u}:{sMK+2*u+1}], 0')
        a('s_cbranch_scc1 K2_PL_DONE')
        a(f's_mov_b64 exec, s[{sMK+2*u}:{sMK+2*u+1}]')
        a(f'v_cmp_gt_u32 vcc, 128, v{RK(u)}')
        a(f'v_lshl_add_u32 v34, v{DL(u)}, 7, v{RK(u)}')
        a(f's_andn2_b64 s[{sT}:{sT+1}], exec, vcc')
        a(f's_or_b64 s[{sOVF}:{sOVF+1}], s[{sOVF}:{sOVF+1}], s[{sT}:{sT+1}]')
        a('s_and_b64 exec, exec, vcc')
        a('v_lshlrev_b32 v34, 1, v34')
        a(f'ds_write_b16 v34, v{RR(u)}')
    a.label('K2_PL_DONE')
    a(f's_mov_b64 exec, s[{sEX}:{sEX+1}]')
    a(f'v_mov_b32 v35, {MISC}')
    a(f's_cmp_eq_u64 s[{sOVF}:{sOVF+1}], 0')
    a('s_cbranch_scc1 K2_NOOVF')
    a('ds_write_b32 v35, v28 offset:4')
    a.label('K2_NOOVF')
    a(f's_cmp_eq_u32 s{sMORE}, 0')
    a('s_cbranch_scc1 K2_NOMORE')
    a('ds_write_b32 v35, v28 offset:8')
    a.label('K2_NOMORE')
    a('s_waitcnt lgkmcnt(0)')
    mark(a)
    a('s_barrier')
    a('ds_read_b32 v30, v35 offset:4')
    a('ds_read_b32 v31, v35 offset:8')
    a(f'v_lshrrev_b32 v32, 5, v{vLANE}')
    a(f'v_and_b32 v33, 31, v{vLANE}')
    a(f's_lshl_b32 s{sT}, s{sWAVE}, 1')
    a(f'v_add_u32 v32, s{sT}, v32')
    for i in range(4):
        a(f'v_lshlrev_b32 v{40+i}, 2, v32')
        a(f'v_add_u32 v{40+i}, {CNT+64*i}, v{40+i}')
        a(f'ds_read_b32 v{44+i}, v{40+i}')
    a('s_waitcnt lgkmcnt(4)')
    a(f'v_readfirstlane_b32 s{sT}, v30')
    a(f'v_readfirstlane_b32 s{sMORE}, v31')
    a(f's_cmp_eq_u32 s{sT}, 0')
    a('s_cbranch_scc1 K2_GO')
    a('s_waitcnt vmcnt(0) lgkmcnt(0)')
    a(f's_lshr_b32 s{sW}, s{sW}, 1')
    a('s_branch K2_ROUND')
    a.label('K2_GO')
    a(f's_xor_b32 s{sRLAST}, s{sMORE}, 1')
    a(f'v_mov_b32 v36, {PADMARK}')
    a('s_waitcnt lgkmcnt(0)')
    for i in range(4):
        c = 44+i
        a(f'v_add_u32 v37, 31, v{c}')
        a('v_lshrrev_b32 v37, 5, v37')
        a('v_max_u32 v37, 1, v37')
        a('v_subrev_u32 v37, 1, v37')
        a('v_lshl_add_u32 v37, v37, 5, v33')
        a(f'v_cmp_ge_u32 vcc, v37, v{c}')
        a(f'v_add_u32 v38, {16*i}, v32')
        a(f'v_cmp_gt_u32 s[{sT}:{sT+1}], 50, v38')
        a(f's_and_b64 vcc, vcc, s[{sT}:{sT+1}]')
        a('v_lshl_add_u32 v37, v38, 7, v37')
        a('s_and_b64 exec, exec, vcc')
        a('v_lshlrev_b32 v39, 1, v37')
        a('ds_write_b16 v39, v36')
        a(f's_mov_b64 exec, s[{sEX}:{sEX+1}]')
    a('s_waitcnt vmcnt(0) lgkmcnt(0)')
    mark(a)
    a('s_barrier')
    mark(a)
    a(f'v_mov_b32 v{vT0}, {MISC}')
    a(f'v_mov_b32 v{vT1}, 1')
    a('s_mov_b64 exec, 1')
    a(f'ds_add_rtn_u32 v{vM1}, v{vT0}, v{vT1}')
    a(f'ds_add_rtn_u32 v{vM2}, v{vT0}, v{vT1}')
    a(f's_mov_b64 exec, s[{sEX}:{sEX+1}]')
    a('s_waitcnt lgkmcnt(0)')
    a(f'v_readfirstlane_b32 s{sJC}, v{vM1}')
    a(f'v_readfirstlane_b32 s{sJN}, v{vM2}')
    a(f's_cmp_ge_u32 s{sJC}, s{sNN}')
    a('s_cbranch_scc1 K2_WAVE_DONE')
    a(f's_lshl_b32 s{sT}, s{sJC}, 2')
    a(f's_add_u32 s{sT}, s{sT}, {CNT}')
    a(f'v_mov_b32 v{vT2}, s{sT}')
    a(f'ds_read_b32 v{vM1}, v{vT2}')
    a(f's_lshl_b32 s{sBASE}, s{sJC}, 7')
    a(f's_lshl_b32 s{sT}, s{sBASE}, 1')
    a(f'v_add_u32 v{vDSA}, s{sT}, v{vKGDS}')
    a(f'ds_read_b128 {rng(DS)}, v{vDSA}')
    for w in range(4): a(f'v_mov_b32 v{SV+w}, 0')
    a('s_waitcnt lgkmcnt(0)')
    a(f'v_readfirstlane_b32 s{sCNTN}, v{vM1}')
    ADDR = POOL + 16
    addr_calc(a, ADDR)
    for j in range(8):
        a(f'buffer_load_dwordx4 {rng(L0+4*j)}, v{ADDR+j}, s[{sTAB}:{sTAB+3}], 0 offen')
    for j in range(8):
        a(f'buffer_load_dwordx4 {rng(L1+4*j)}, v{ADDR+j}, s[{sTAB}:{sTAB+3}], 0 offen offset:256')
    sv_loads(a, sJC)
    a(f's_add_u32 s{sNSTC}, s{sCNTN}, 31')
    a(f's_lshr_b32 s{sNSTC}, s{sNSTC}, 5')
    a(f's_max_u32 s{sNSTC}, s{sNSTC}, 1')
    geometry(a, sJC, sCNTN, 'P')
    a.label('K2_NODE')
    mark(a)
    a(f's_mov_b32 s{sK}, 0')
    step(a, True)
    a(f's_cmp_eq_u32 s{sLAST}, 1')
    a('s_cbranch_scc1 K2_EPI')
    a.label('K2_STEP')
    a(f's_add_u32 s{sK}, s{sK}, 1')
    step(a, False)
    a(f's_cmp_eq_u32 s{sLAST}, 1')
    a('s_cbranch_scc0 K2_STEP')
    a.label('K2_EPI')
    mark(a)
    a.safe()
    epilogue(a)
    sv_loads(a, sJN)
    a(f's_min_u32 s{sJC}, s{sJN}, 49')
    geometry(a, sJC, sCNTN, 'E')
    a(f's_mov_b32 s{sJC}, s{sJN}')
    a(f's_mov_b32 s{sNSTC}, s{sNSTN}')
    a(f's_mov_b32 s{sJN}, s{sJNN}')
    a(f's_cmp_lt_u32 s{sJC}, s{sNN}')
    a('s_cbranch_scc1 K2_NODE')
    a.label('K2_WAVE_DONE')
    a(f's_cmp_eq_u32 s{sRLAST}, 1')
    a('s_cbranch_scc1 K2_END')
    a('s_waitcnt vmcnt(0) lgkmcnt(0)')
    a(f's_mov_b32 s{sFIRST}, 0')
    a(f's_add_u32 s{sF0}, s{sF0}, s{sW}')
    a(f's_lshl_b32 s{sW}, s{sW}, 1')
    a(f's_min_u32 s{sW}, s{sW}, {WCAP}')
    a('s_branch K2_ROUND')
    a.label('K2_END')
    if STAMP:
        a(f's_cmp_ge_u32 s2, {G.NB}')
        a('s_cbranch_scc1 K2_END2')
        a('s_waitcnt vmcnt(0)')
        mark(a); mark(a, True)
        dump(a)
        a.label('K2_END2')
    a('s_endpgm')
    return True
```

```python
import sys
from asmlib import Asm

NAME = 'gather_scatter__molecular_angular_painn__graph'
N = 12500; E = 800000
NCH = 250; CHE = 3200; NB = 256
TAB_OFF = 0; TAB_SZ = N * 512
CIMG_OFF = 0x620000
SEG_OFF = 0x630000
REC_OFF = 0x700000
PART_OFF = 0x1400000
WS_USED = 0x2040000
NODE_WGS = 98
K1_GRID = NCH + NODE_WGS + 1
K1_LDS = 16384
HIST = 12800
MASKHI = 0xffff0000

def srd(a, d, base, size):
    a(f's_mov_b32 s{d}, s{base}')
    a(f's_and_b32 s{d+1}, s{base+1}, 0xffff')
    a(f's_mov_b32 s{d+2}, {size}')
    a(f's_mov_b32 s{d+3}, 0x20000')

def srd_off(a, d, base, off, size):
    a(f's_add_u32 s{d}, s{base}, {off}')
    a(f's_addc_u32 s{d+1}, s{base+1}, 0')
    a(f's_and_b32 s{d+1}, s{d+1}, 0xffff')
    a(f's_mov_b32 s{d+2}, {size}')
    a(f's_mov_b32 s{d+3}, 0x20000')

import os
STAMP = os.environ.get('STAMP','0') == '1'
STAMP_OFF = 0x3000000
class Stamper:
    def __init__(self, a, base, wsreg, kid):
        self.a=a; self.base=base; self.n=0; self.ws=wsreg; self.kid=kid
    def mark(self, real=False):
        if not STAMP: return
        a=self.a
        r=self.base+2*self.n
        a(f"{'s_memrealtime' if real else 's_memtime'} s[{r}:{r+1}]")
        a('s_waitcnt lgkmcnt(0)')
        self.n+=1
    def dump(self, vt0, wgreg='s2'):
        if not STAMP: return
        a=self.a
        b=self.base+2*self.n
        b=(b+3)//4*4
        a(f's_add_u32 s{b}, s{self.ws}, {STAMP_OFF+self.kid*0x100000}')
        a(f's_addc_u32 s{b+1}, s{self.ws+1}, 0')
        a(f's_and_b32 s{b+1}, s{b+1}, 0xffff')
        a(f's_mov_b32 s{b+2}, 0x100000')
        a(f's_mov_b32 s{b+3}, 0x20000')
        a('s_mov_b64 exec, 1')
        a(f'v_lshrrev_b32 v{vt0}, 6, v0')
        a(f'v_lshlrev_b32 v{vt0}, 7, v{vt0}')
        a(f's_lshl_b32 s{b+4}, {wgreg}, 11')
        a(f'v_add_u32 v{vt0}, s{b+4}, v{vt0}')
        for i in range(self.n):
            a(f'v_mov_b32 v{vt0+1}, s{self.base+2*i}')
            a(f'buffer_store_dword v{vt0+1}, v{vt0}, s[{b}:{b+3}], 0 offen offset:{4*i}')
        a('s_waitcnt vmcnt(0)')

def gen_k1(a):
    a.raw('.globl k1_kernel\n.p2align 8\n.type k1_kernel,@function')
    a.label('k1_kernel')
    a('s_load_dwordx4 s[4:7], s[0:1], 0')
    a('s_load_dwordx4 s[8:11], s[0:1], 16')
    a('s_load_dwordx4 s[12:15], s[0:1], 32')
    a('s_load_dwordx4 s[16:19], s[0:1], 48')
    a('s_load_dwordx2 s[20:21], s[0:1], 80')
    a(f's_cmp_ge_u32 s2, {K1_GRID}')
    a('s_cbranch_scc1 K1_END')
    a('s_mov_b32 s22, 0xffff0000')
    a('s_mov_b32 s47, 0x40a00000')
    a('s_mov_b32 s99, s2')
    a('s_waitcnt lgkmcnt(0)')
    a(f's_cmp_lt_u32 s2, {NODE_WGS+1}')
    a('s_cbranch_scc1 K1_NOTEDGE')
    a(f's_sub_u32 s2, s2, {NODE_WGS+1}')
    srd(a, 24, 8, E*4); srd(a, 28, 10, E*4); srd(a, 36, 20, WS_USED)
    st = Stamper(a, 48, 20, 0)
    st.mark(True); st.mark()
    a(f's_mul_i32 s3, s2, {CHE*4}')
    a('v_lshlrev_b32 v1, 4, v0')
    a('v_cmp_gt_u32 vcc, 400, v0')
    a('s_and_saveexec_b64 s[40:41], vcc')
    a('s_mov_b64 s[42:43], exec')
    a('buffer_load_dwordx4 v[4:7], v1, s[28:31], s3 offen')
    a('buffer_load_dwordx4 v[12:15], v1, s[24:27], s3 offen')
    a(f's_add_u32 s4, s3, {1600*4}')
    a('buffer_load_dwordx4 v[8:11], v1, s[28:31], s4 offen')
    a('buffer_load_dwordx4 v[16:19], v1, s[24:27], s4 offen')
    a('s_mov_b64 exec, s[40:41]')
    a('v_mov_b32 v60, 0\nv_mov_b32 v61, 0\nv_mov_b32 v62, 0\nv_mov_b32 v63, 0')
    a('v_cmp_gt_u32 vcc, 64, v0')
    a('s_and_saveexec_b64 s[44:45], vcc')
    a(f'v_add_u32 v2, {HIST}, v1')
    a('ds_write_b128 v2, v[60:63]')
    a('s_mov_b64 exec, s[40:41]')
    a('s_mov_b32 s46, 87960931')
    a('v_mov_b32 v40, 1')
    a('s_waitcnt lgkmcnt(0)')
    a('s_barrier')
    st.mark()
    a('s_mov_b64 exec, s[42:43]')
    DST = lambda e: 4+e
    SRC = lambda e: 12+e
    BK = lambda e: 20+e
    RK = lambda e: 28+e
    REC = lambda e: 44+e
    for e in range(8):
        if e == 0: a('s_waitcnt vmcnt(3)')
        if e == 4: a('s_waitcnt vmcnt(1)')
        a(f'v_mul_hi_u32 v{BK(e)}, v{DST(e)}, s46')
        a(f'v_lshlrev_b32 v{BK(e)}, 2, v{BK(e)}')
        a(f'v_add_u32 v{BK(e)}, {HIST}, v{BK(e)}')
        a(f'ds_add_rtn_u32 v{RK(e)}, v{BK(e)}, v40')
    a('s_waitcnt vmcnt(0)')
    for e in range(8):
        a(f'v_lshl_or_b32 v{REC(e)}, v{DST(e)}, 16, v{SRC(e)}')
    a('s_mov_b64 exec, s[40:41]')
    a('s_waitcnt lgkmcnt(0)')
    st.mark()
    a('s_barrier')
    st.mark()
    a('v_lshrrev_b32 v1, 6, v0')
    a('v_readfirstlane_b32 s4, v1')
    a('s_cmp_lg_u32 s4, 0')
    a('s_cbranch_scc1 K1_E_SCANDONE')
    a('v_lshlrev_b32 v1, 4, v0')
    a(f'v_add_u32 v2, {HIST}, v1')
    a('ds_read_b128 v[80:83], v2')
    a('s_waitcnt lgkmcnt(0)')
    a('v_add_u32 v84, v80, v81')
    a('v_add_u32 v85, v84, v82')
    a('v_add_u32 v86, v85, v83')
    a('v_mov_b32 v87, v86')
    for sh in (1, 2, 4, 8):
        a(f'v_add_u32_dpp v87, v87, v87 row_shr:{sh} row_mask:0xf bank_mask:0xf')
    a('v_add_u32_dpp v87, v87, v87 row_bcast:15 row_mask:0xa bank_mask:0xf')
    a('v_add_u32_dpp v87, v87, v87 row_bcast:31 row_mask:0xc bank_mask:0xf')
    a('v_sub_u32 v88, v87, v86')
    a('v_add_u32 v89, v88, v80')
    a('v_add_u32 v90, v88, v84')
    a('v_add_u32 v91, v88, v85')
    a('ds_write_b128 v2, v[88:91]')
    a('v_lshlrev_b32 v1, 12, v0')
    a('s_lshl_b32 s4, s2, 2')
    a(f's_add_u32 s4, s4, {SEG_OFF}')
    for i in range(4):
        a(f'v_lshl_or_b32 v{92+i}, v{80+i}, 16, v{88+i}')
        a(f'buffer_store_dword v{92+i}, v1, s[36:39], s4 offen offset:{1024*i}')
    a('s_waitcnt lgkmcnt(0)')
    a.label('K1_E_SCANDONE')
    a('s_barrier')
    st.mark()
    a('s_mov_b64 exec, s[42:43]')
    for e in range(8):
        a(f'ds_read_b32 v{BK(e)}, v{BK(e)}')
    for e in range(8):
        a(f's_waitcnt lgkmcnt({7-e})')
        a(f'v_add_lshl_u32 v{BK(e)}, v{BK(e)}, v{RK(e)}, 2')
        a(f'ds_write_b32 v{BK(e)}, v{REC(e)}')
    a('s_mov_b64 exec, s[40:41]')
    a('s_waitcnt lgkmcnt(0)')
    a('s_barrier')
    st.mark()
    a('v_lshlrev_b32 v1, 4, v0')
    a(f's_mul_i32 s4, s2, {CHE*4}')
    a(f's_add_u32 s4, s4, {REC_OFF}')
    a('ds_read_b128 v[80:83], v1')
    a('v_cmp_gt_u32 vcc, 288, v0')
    a('s_and_saveexec_b64 s[44:45], vcc')
    a('ds_read_b128 v[84:87], v1 offset:8192')
    a('s_mov_b64 exec, s[40:41]')
    a('s_waitcnt lgkmcnt(0)')
    a('buffer_store_dwordx4 v[80:83], v1, s[36:39], s4 offen')
    a('s_add_u32 s4, s4, 8192')
    a('s_mov_b64 exec, s[44:45]') if False else None
    a('v_cmp_gt_u32 vcc, 288, v0')
    a('s_and_saveexec_b64 s[44:45], vcc')
    a('buffer_store_dwordx4 v[84:87], v1, s[36:39], s4 offen')
    if STAMP:
        st.mark()
        a('s_waitcnt vmcnt(0)')
        st.mark(); st.mark(True)
        st.dump(110, 's99')
    a('s_endpgm')

    a.label('K1_NOTEDGE')
    a(f's_cmp_ge_u32 s2, {NODE_WGS}')
    a('s_cbranch_scc1 K1_CONST')
    srd(a, 24, 4, N*512); srd(a, 28, 14, 64*64*2); srd(a, 32, 16, 64*192*2); srd(a, 36, 20, TAB_SZ)
    st = Stamper(a, 48, 20, 0)
    st.mark(True); st.mark()
    a('v_lshlrev_b32 v1, 4, v0')
    a('buffer_load_dwordx4 v[4:7], v1, s[28:31], 0 offen')
    a('v_lshrrev_b32 v2, 3, v0')
    a('v_mul_u32_u24 v2, 384, v2')
    a('v_and_b32 v3, 7, v0')
    a('v_lshl_add_u32 v2, v3, 4, v2')
    a('buffer_load_dwordx4 v[8:11], v2, s[32:35], 0 offen offset:128')
    a('s_barrier')
    a('v_and_b32 v12, 63, v0')
    a('v_lshrrev_b32 v13, 6, v0')
    a('v_and_b32 v14, 15, v12')
    a('v_lshrrev_b32 v15, 4, v12')
    a('s_lshl_b32 s3, s2, 7')
    a('v_lshl_add_u32 v16, v13, 4, v14')
    a('v_add_u32 v16, s3, v16')
    a('v_lshlrev_b32 v17, 9, v16')
    a('v_lshl_add_u32 v18, v15, 4, v17')
    a('buffer_load_dwordx4 v[20:23], v18, s[24:27], 0 offen')
    a('buffer_load_dwordx4 v[24:27], v18, s[24:27], 0 offen offset:64')
    VV = lambda k, t2: 28 + 4*(2*k+t2)
    for k in range(3):
        for t2 in range(2):
            a(f'buffer_load_dwordx4 v[{VV(k,t2)}:{VV(k,t2)+3}], v18, s[24:27], 0 offen offset:{128*(k+1)+64*t2}')
    a('s_waitcnt vmcnt(8)')
    a('ds_write_b128 v1, v[4:7]')
    a('ds_write_b128 v1, v[8:11] offset:8192')
    a('v_lshrrev_b32 v2, 2, v14')
    a('v_and_b32 v3, 3, v14')
    a('v_lshl_add_u32 v4, v15, 3, v2')
    a('v_lshlrev_b32 v4, 7, v4')
    a('v_lshl_add_u32 v4, v3, 4, v4')
    a('s_waitcnt lgkmcnt(0)')
    st.mark()
    a('s_barrier')
    st.mark()
    def rd_ops(base):
        for t in range(4):
            t2, b = t >> 1, t & 1
            for kp in range(2):
                r = 52 + 4*(2*t+kp)
                o = base + kp*4096 + 64*t2 + 8*b
                a(f'ds_read_b64_tr_b16 v[{r}:{r+1}], v4 offset:{o}')
                a(f'ds_read_b64_tr_b16 v[{r+2}:{r+3}], v4 offset:{o+512}')
    rd_ops(0)
    a('s_waitcnt vmcnt(6) lgkmcnt(0)')
    D1 = lambda t: 84 + 4*t
    for t in range(4):
        a(f'v_mfma_f32_16x16x32_bf16 v[{D1(t)}:{D1(t)+3}], v[{52+8*t}:{55+8*t}], v[20:23], 0')
    for t in range(4):
        a(f'v_mfma_f32_16x16x32_bf16 v[{D1(t)}:{D1(t)+3}], v[{56+8*t}:{59+8*t}], v[24:27], v[{D1(t)}:{D1(t)+3}]')
    rd_ops(8192)
    HP = lambda t: 100 + 2*t
    for t in range(4):
        for hq in range(2):
            x, y = D1(t)+2*hq, D1(t)+2*hq+1
            t7, t8 = (7, 8) if hq == 0 else (9, 10)
            a(f'v_cvt_pk_bf16_f32 v6, v{x}, v{y}')
            a(f'v_lshlrev_b32 v{x}, 16, v6')
            a(f'v_and_b32 v{y}, s22, v6')
            a(f'v_mul_f32 v{t7}, 0xbfb8aa3b, v{x}')
            a(f'v_mul_f32 v{t8}, 0xbfb8aa3b, v{y}')
            a(f'v_exp_f32 v{t7}, v{t7}')
            a(f'v_exp_f32 v{t8}, v{t8}')
            a(f'v_add_f32 v{t7}, 1.0, v{t7}')
            a(f'v_add_f32 v{t8}, 1.0, v{t8}')
            a(f'v_rcp_f32 v{t7}, v{t7}')
            a(f'v_rcp_f32 v{t8}, v{t8}')
            a(f'v_mul_f32 v{t7}, v{t7}, v{x}')
            a(f'v_mul_f32 v{t8}, v{t8}, v{y}')
            a(f'v_cvt_pk_bf16_f32 v{HP(t)+hq}, v{t7}, v{t8}')
    a('s_waitcnt lgkmcnt(0)')
    D2 = lambda t: 84 + 4*t
    for t in range(4):
        a(f'v_mfma_f32_16x16x32_bf16 v[{D2(t)}:{D2(t)+3}], v[{52+8*t}:{55+8*t}], v[100:103], 0')
    for t in range(4):
        a(f'v_mfma_f32_16x16x32_bf16 v[{D2(t)}:{D2(t)+3}], v[{56+8*t}:{59+8*t}], v[104:107], v[{D2(t)}:{D2(t)+3}]')
    a('s_waitcnt vmcnt(0)')
    a('v_lshl_add_u32 v18, v15, 5, v17')
    for t in range(4):
        t2, b = t >> 1, t & 1
        for hq in range(2):
            x, y = D2(t)+2*hq, D2(t)+2*hq+1
            a(f'v_cvt_pk_bf16_f32 v6, v{x}, v{y}')
            a(f'v_lshlrev_b32 v{x}, 16, v6')
            a(f'v_and_b32 v{y}, s22, v6')
        o = 52 + 8*t
        for k in range(3):
            for hq in range(2):
                vr = VV(k,t2)+2*b+hq
                t7, t8 = (7, 8) if hq == 0 else (9, 10)
                a(f'v_lshlrev_b32 v{t7}, 16, v{vr}')
                a(f'v_and_b32 v{t8}, s22, v{vr}')
                a(f'v_mul_f32 v{t7}, v{t7}, v{D2(t)+2*hq}')
                a(f'v_mul_f32 v{t8}, v{t8}, v{D2(t)+2*hq+1}')
                a(f'v_cvt_pk_bf16_f32 v{o+2*k+hq}, v{t7}, v{t8}')
        a(f'v_mov_b32 v{o+6}, v{HP(t)}')
        a(f'v_mov_b32 v{o+7}, v{HP(t)+1}')
        a(f'buffer_store_dwordx4 v[{o}:{o+3}], v18, s[36:39], 0 offen offset:{128*t2+16*b}')
        a(f'buffer_store_dwordx4 v[{o+4}:{o+7}], v18, s[36:39], 0 offen offset:{256+128*t2+16*b}')
    if STAMP:
        st.mark()
        a('s_waitcnt vmcnt(0)')
        st.mark(); st.mark(True)
        st.dump(110, 's99')
    a('s_endpgm')

    a.label('K1_CONST')
    srd(a, 28, 18, 16*192*2); srd(a, 32, 16, 64*192*2); srd_off(a, 36, 20, CIMG_OFF, 28672)
    a('v_and_b32 v1, 63, v0')
    a('v_and_b32 v2, 15, v1')
    a('v_lshrrev_b32 v3, 4, v1')
    a('v_bfe_u32 v4, v0, 6, 2')
    a('v_bfe_u32 v5, v0, 8, 1')
    a('v_lshlrev_b32 v6, 4, v3')
    a('v_lshl_add_u32 v6, v5, 1, v6')
    a('v_mul_u32_u24 v6, 384, v6')
    a('v_lshl_add_u32 v7, v2, 2, v4')
    a('v_lshl_add_u32 v6, v7, 1, v6')
    for part in range(2):
        for jj in range(8):
            off = (4*(jj & 3) + (jj >> 2))*384 + 256*part
            a(f'v_add_u32 v8, {off}, v6')
            a(f'buffer_load_ushort v{16+8*part+jj}, v8, s[32:35], 0 offen')
    a('v_lshlrev_b32 v9, 2, v3')
    a('v_mul_u32_u24 v9, 384, v9')
    a('v_lshl_add_u32 v9, v7, 1, v9')
    a('v_lshl_add_u32 v10, v5, 7, v9')
    for q in range(4):
        a(f'buffer_load_ushort v{32+q}, v10, s[28:31], 0 offen offset:{q*384}')
    for q in range(4):
        a(f'buffer_load_ushort v{36+q}, v9, s[28:31], 0 offen offset:{q*384+256}')
    a('s_waitcnt vmcnt(0)')
    a('v_lshlrev_b32 v11, 4, v0')
    for part in range(2):
        for h in range(4):
            a(f'v_lshl_or_b32 v{40+4*part+h}, v{16+8*part+2*h+1}, 16, v{16+8*part+2*h}')
        a(f'buffer_store_dwordx4 v[{40+4*part}:{43+4*part}], v11, s[36:39], 0 offen') if part == 0 else None
    a('v_add_u32 v12, 8192, v11')
    a('buffer_store_dwordx4 v[44:47], v12, s[36:39], 0 offen')
    for q in range(8):
        a(f'v_lshlrev_b32 v{32+q}, 16, v{32+q}')
    a('v_add_u32 v12, 16384, v11')
    a('buffer_store_dwordx4 v[32:35], v12, s[36:39], 0 offen')
    a('v_cmp_gt_u32 vcc, 256, v0')
    a('s_and_saveexec_b64 s[44:45], vcc')
    a('v_add_u32 v12, 24576, v11')
    a('buffer_store_dwordx4 v[36:39], v12, s[36:39], 0 offen')
    a.label('K1_END')
    a('s_endpgm')

def kd(name, vgpr, sgpr):
    return f'''.amdhsa_kernel {name}
  .amdhsa_next_free_vgpr {vgpr}
  .amdhsa_next_free_sgpr {sgpr}
  .amdhsa_accum_offset {(vgpr+3)//4*4}
  .amdhsa_group_segment_fixed_size 0
  .amdhsa_kernarg_size 88
  .amdhsa_user_sgpr_count 2
  .amdhsa_user_sgpr_kernarg_segment_ptr 1
  .amdhsa_system_sgpr_workgroup_id_x 1
.end_amdhsa_kernel
'''

def main():
    import gen_k2
    a = Asm()
    gen_k1(a)
    k2 = gen_k2.gen_k2(a)
    hdr = open('cdna_kernels/%s.s.ref' % NAME).read().split('; Override')[0]
    hdr += f'; @launch kernel=k1_kernel grid=({K1_GRID},1,1) block=(512,1,1) lds={K1_LDS}\n'
    if k2:
        hdr += f'; @launch kernel=k2_kernel grid=({NB},1,1) block=(512,1,1) lds={gen_k2.K2_LDS}\n'
    hdr += '.amdgcn_target "amdgcn-amd-amdhsa--gfx950"\n.text\n'
    body = a.finish()
    tail = '.section .rodata,"a"\n.p2align 6\n' + kd('k1_kernel', 120, 102)
    if k2:
        tail += '.p2align 6\n' + kd('k2_kernel', 256, 102)
    out = sys.argv[1] if len(sys.argv) > 1 else 'cdna_kernels/%s.s' % NAME
    open(out, 'w').write(hdr + body + tail)
    print('wrote', out, 'nops inserted', a.nops_inserted)

if __name__ == '__main__':
    main()
```

```python
import os
import gen as G

N = 12500
NSLOT = 49*128 + 32
DS_BASE = 0
POS = 12800
GS = POS + 75776
GSW = 2048
W2IMG = GS + 8*GSW
WRIMG = W2IMG + 16384
GT = WRIMG + 12288
CNT = GT + 26*1024
MISC = CNT + 256
K2_LDS = MISC + 128
PADMARK = 0x7000
MREG = GS
WCAP = 512

vLANE16, vFREQ, vKGWV, vKGDS, vWVA, vDSA, vOUTOFF = 1, 2, 3, 4, 5, 6, 7
SV = 8
vIMG = 12
vT0, vT1, vT2 = 13, 14, 15
DS = 16
vKGD, vDA, vLANE, vGSW = 20, 21, 22, 23
vC8 = 254
POOL = 24
GR = 56
L0 = 72; L1 = 104
ACCV = 136; ACCH = 184
vSEGLO, vSEGHI = 248, 249
vM1, vM2 = 250, 251
vPFX = 253
sTAB, sWS, sSV, sOUT = 12, 16, 20, 24
sMASK, sSELLO, sSELHI, s512 = 28, 29, 30, 31
sN0, sNN = 32, 33
sJC, sNSTC, sJN, sNSTN, sK, sBASE, sNBASE, sJNN, sLAST = 34, 35, 36, 37, 38, 39, 40, 41, 42
sWAVE, sF0, sW, sTOT, sNV, sFIRST, sRLAST = 43, 44, 45, 46, 47, 48, 49
sEX = 50
sT = 52
sMK = 56
sMORE, sCNTN, sFIVE, sGS = 76, 77, 78, 79
sSLOW = 84
sPOSP = 80
sOVF = 88
sT2 = 90
sBK = 91

STAMP = os.environ.get('STAMP','0') == '1'
def mark(a, real=False):
    if not STAMP: return
    a(f"{'s_memrealtime' if real else 's_memtime'} s[100:101]")
    a('s_waitcnt lgkmcnt(0)')
    a('s_min_u32 s98, s98, 63')
    a('s_mov_b32 m0, s98')
    a('s_nop 1')
    a('v_writelane_b32 v252, s100, m0')
    a('s_add_u32 s98, s98, 1')
def dump(a):
    if not STAMP: return
    a('s_load_dwordx2 s[100:101], s[0:1], 80')
    a('s_waitcnt lgkmcnt(0)')
    a(f's_add_u32 s56, s100, {G.STAMP_OFF+0x100000}')
    a('s_addc_u32 s57, s101, 0')
    a('s_and_b32 s57, s57, 0xffff')
    a('s_mov_b32 s58, 0x100000')
    a('s_mov_b32 s59, 0x20000')
    a('s_mov_b64 exec, -1')
    a('v_lshrrev_b32 v13, 6, v0')
    a('v_lshlrev_b32 v13, 8, v13')
    a('v_and_b32 v14, 63, v0')
    a('v_lshl_add_u32 v13, v14, 2, v13')
    a('s_lshl_b32 s60, s2, 11')
    a('buffer_store_dword v252, v13, s[56:59], s60 offen')
    a('s_waitcnt vmcnt(0)')

def Gr(w, p): return GR + 4*w + p
def accV(k, tau): return ACCV + 16*k + 4*tau
def accH(w, t): return ACCH + 16*w + 4*t
def rng(b, n=4): return f'v[{b}:{b+n-1}]'

def addr_calc(a, ADDR):
    for j in range(8):
        a(f'v_mad_u32_u16 v{ADDR+j}, v{DS+(j>>1)}, s{s512}, v{vLANE16} op_sel:[{j&1},0,0,0]')

def step(a, first):
    tag = 'F' if first else 'R'
    RX, RY, RZ = POOL, POOL + 8, POOL + 16
    TMP = POOL + 24
    if first:
        a(f'v_mov_b32 v{vT0}, {MISC}')
        a(f'v_mov_b32 v{vT1}, 1')
        a(f's_min_u32 s{sT}, s{sJN}, 49')
        a(f's_lshl_b32 s{sT}, s{sT}, 2')
        a(f's_add_u32 s{sT}, s{sT}, {CNT}')
        a(f'v_mov_b32 v{vT2}, s{sT}')
        a(f's_mov_b64 s[{sEX}:{sEX+1}], exec')
        a('s_mov_b64 exec, 1')
        a(f'ds_add_rtn_u32 v{vM1}, v{vT0}, v{vT1}')
        a(f'ds_read_b32 v{vM2}, v{vT2}')
        a(f's_mov_b64 exec, s[{sEX}:{sEX+1}]')
    a(f's_add_u32 s{sT}, s{sK}, 1')
    a(f's_cmp_eq_u32 s{sT}, s{sNSTC}')
    a(f's_cselect_b32 s{sLAST}, 1, 0')
    a(f's_min_u32 s{sT+1}, s{sJN}, 49')
    a(f's_lshl_b32 s{sT+1}, s{sT+1}, 7')
    a(f's_add_u32 s{sT+2}, s{sBASE}, 32')
    a(f's_cmp_eq_u32 s{sLAST}, 1')
    a(f's_cselect_b32 s{sNBASE}, s{sT+1}, s{sT+2}')
    a(f's_lshl_b32 s{sT}, s{sNBASE}, 1')
    a(f'v_add_u32 v{vDSA}, s{sT}, v{vKGDS}')
    a(f's_cmp_eq_u32 s{sSLOW}, 1')
    a(f's_cbranch_scc1 K2_SLOWG_{tag}')
    a(f'ds_read2_b32 v[{TMP}:{TMP+1}], v{vWVA} offset0:0 offset1:4')
    for (R, off) in ((RX, 512), (RY, 1024), (RZ, 1536)):
        a(f'ds_read_b128 {rng(R)}, v{vDA} offset:{off}')
        a(f'ds_read_b128 {rng(R+4)}, v{vDA} offset:{off+16}')
    a('s_waitcnt lgkmcnt(6)')
    a(f'v_add_u32 v{TMP}, v{TMP}, v{vC8}')
    a(f'v_add_u32 v{TMP+1}, v{TMP+1}, v{vC8}')
    a(f'ds_read_b64_tr_b16 v[{Gr(0,0)}:{Gr(0,1)}], v{TMP}')
    a(f'ds_read_b64_tr_b16 v[{Gr(0,2)}:{Gr(0,3)}], v{TMP+1}')
    a(f'ds_read_b128 {rng(DS)}, v{vDSA}')
    a('s_waitcnt lgkmcnt(1)')
    a(f's_branch K2_G1_{tag}')
    a.label(f'K2_SLOWG_{tag}')
    a(f'ds_read_b128 {rng(RX)}, v{vDA}')
    a(f'ds_read_b128 {rng(RX+4)}, v{vDA} offset:16')
    a('s_waitcnt lgkmcnt(0)')
    for p in range(4):
        for h in range(2):
            d = RX + 2*p + h; t = TMP + 2 + h; iv = TMP + 4 + h; sn = TMP + 6 + h
            def rnd1(x):
                a(f'v_cvt_pk_bf16_f32 v{x}, v{x}, v{x}')
                a(f'v_and_b32 v{x}, s{sMASK}, v{x}')
            a(f'v_rcp_f32 v{iv}, v{d}')
            a(f'v_mul_f32 v{t}, 0x40490fdb, v{d}'); rnd1(t)
            a(f'v_mul_f32 v{t}, 0x3e4ccccd, v{t}'); rnd1(t)
            a(f'v_mul_f32 v{t}, 0.15915494, v{t}')
            a(f'v_cos_f32 v{t}, v{t}'); rnd1(t)
            a(f'v_add_f32 v{t}, 1.0, v{t}'); rnd1(t)
            a(f'v_mul_f32 v{iv}, 0.5, v{iv}')
            a(f'v_mul_f32 v{t}, v{t}, v{iv}')
            a(f'v_cmp_lt_f32 vcc, 0, v{d}')
            a(f'v_mul_f32 v{sn}, v{d}, v{vFREQ}'); rnd1(sn)
            a(f'v_cndmask_b32 v{t}, 0, v{t}, vcc')
            a(f'v_mul_f32 v{sn}, 0.15915494, v{sn}')
            a(f'v_sin_f32 v{sn}, v{sn}')
            a(f'v_mul_f32 v{sn}, v{sn}, v{t}')
        a(f'v_cvt_pk_bf16_f32 v{Gr(0,p)}, v{TMP+6}, v{TMP+7}')
    for (R, off) in ((RX, 512), (RY, 1024), (RZ, 1536)):
        a(f'ds_read_b128 {rng(R)}, v{vDA} offset:{off}')
        a(f'ds_read_b128 {rng(R+4)}, v{vDA} offset:{off+16}')
    a(f'ds_read_b128 {rng(DS)}, v{vDSA}')
    a('s_waitcnt lgkmcnt(1)')
    a.label(f'K2_G1_{tag}')
    for p in range(4):
        g0, g1 = TMP + 2, TMP + 3
        a(f'v_lshlrev_b32 v{g0}, 16, v{Gr(0,p)}')
        a(f'v_and_b32 v{g1}, s{sMASK}, v{Gr(0,p)}')
        for k, R in enumerate((RX, RY, RZ)):
            t0, t1 = TMP + 4 + 2*(k % 2), TMP + 5 + 2*(k % 2)
            a(f'v_mul_f32 v{t0}, v{g0}, v{R+2*p}')
            a(f'v_mul_f32 v{t1}, v{g1}, v{R+2*p+1}')
            a(f'v_cvt_pk_bf16_f32 v{Gr(1+k,p)}, v{t0}, v{t1}')
    if first:
        a(f'v_readfirstlane_b32 s{sJNN}, v{vM1}')
        a(f'v_readfirstlane_b32 s{sCNTN}, v{vM2}')
        a(f's_add_u32 s{sNSTN}, s{sCNTN}, 31')
        a(f's_lshr_b32 s{sNSTN}, s{sNSTN}, 5')
        a(f's_max_u32 s{sNSTN}, s{sNSTN}, 1')
    TB = [POOL + 4*i for i in range(4)]
    ADDR = POOL + 16
    def perms(L, q, half, dst):
        sel = sSELHI if half else sSELLO
        for p in range(4):
            a(f'v_perm_b32 v{dst+p}, v{L+4*(2*p+1)+q}, v{L+4*(2*p)+q}, s{sel}')
    def mf(acc, A, B):
        c = '0' if first else rng(acc)
        a(f'v_mfma_f32_16x16x32_bf16 {rng(acc)}, {rng(A)}, {rng(B)}, {c}')
    a('s_waitcnt vmcnt(8)')
    for t in range(8):
        perms(L0, t >> 1, t & 1, TB[t % 4])
        if t >= 1:
            mf(accV((t-1) >> 2, (t-1) & 3), Gr(0,0), TB[(t-1) % 4])
    a('s_waitcnt lgkmcnt(0)')
    for j in range(8):
        a(f'v_mad_u32_u16 v{ADDR+j}, v{DS+(j>>1)}, s{s512}, v{vLANE16} op_sel:[{j&1},0,0,0]')
        if j == 1: mf(accV(1, 3), Gr(0,0), TB[7 % 4])
    for j in range(8):
        a(f'buffer_load_dwordx4 {rng(L0+4*j)}, v{ADDR+j}, s[{sTAB}:{sTAB+3}], 0 offen')
    a('s_waitcnt vmcnt(8)')
    order = [('h', t) for t in range(4)] + [('z', t) for t in range(4)]
    def tile_perm_list(kind, t, dst):
        q = (2 + (t >> 1)) if kind == 'h' else (t >> 1)
        half = t & 1
        sel = sSELHI if half else sSELLO
        return [f'v_perm_b32 v{dst+p}, v{L1+4*(2*p+1)+q}, v{L1+4*(2*p)+q}, s{sel}' for p in range(4)]
    def tile_mfma_list(kind, t, src):
        out = []
        if kind == 'h':
            for w in range(4):
                acc = accH(w, t); c = '0' if first else rng(acc)
                out.append(f'v_mfma_f32_16x16x32_bf16 {rng(acc)}, {rng(src)}, {rng(Gr(w,0))}, {c}')
        else:
            acc = accV(2, t); c = '0' if first else rng(acc)
            out.append(f'v_mfma_f32_16x16x32_bf16 {rng(acc)}, {rng(Gr(0,0))}, {rng(src)}, {c}')
        return out
    for l in tile_perm_list(*order[0], TB[0]): a(l)
    for i in range(1, 8):
        pl = tile_perm_list(*order[i], TB[i % 4])
        ml = tile_mfma_list(*order[i-1], TB[(i-1) % 4])
        if len(ml) == 4:
            a(pl[0]); a(pl[1]); a(ml[0]); a(pl[2]); a(ml[1]); a(pl[3]); a(ml[2]); a(ml[3])
        else:
            for l in pl: a(l)
            a(ml[0])
    ml = tile_mfma_list(*order[7], TB[7 % 4])
    for j in range(8):
        a(f'buffer_load_dwordx4 {rng(L1+4*j)}, v{ADDR+j}, s[{sTAB}:{sTAB+3}], 0 offen offset:256')
        if j == 1: a(ml[0])
    a(f's_mov_b32 s{sBASE}, s{sNBASE}')
    a(f'v_add_u32 v{vWVA}, 128, v{vWVA}')
    a(f'v_add_u32 v{vDA}, 128, v{vDA}')

def geometry(a, sJ, sCNT, tag):
    P = POOL
    src = [P, P+1]; D = [P+2, P+4]
    dp = [P+6, P+7, P+8]
    ROWV = [P+9, P+10]; DV = [P+11, P+12]
    T = list(range(P+13, P+32))
    a(f's_lshl_b32 s{sT}, s{sJ}, 8')
    a(f'v_lshlrev_b32 v{T[0]}, 1, v{vLANE}')
    a(f'v_add_u32 v{T[0]}, s{sT}, v{T[0]}')
    a(f'ds_read_u16 v{src[0]}, v{T[0]}')
    a(f'ds_read_u16 v{src[1]}, v{T[0]} offset:128')
    a(f's_add_u32 s{sT}, s{sN0}, s{sJ}')
    a(f's_mul_i32 s{sT}, s{sT}, 6')
    a(f's_add_u32 s{sT}, s{sT}, {POS}')
    a(f's_min_u32 s{sT}, s{sT}, {POS+75000-6}')
    a(f'v_mov_b32 v{T[1]}, s{sT}')
    for c in range(3): a(f'v_mov_b32 v{dp[c]}, 0')
    for c in range(3): a(f'ds_read_u16_d16_hi v{dp[c]}, v{T[1]} offset:{2*c}')
    a(f's_mov_b32 s{sSLOW}, 0')
    a(f'v_mov_b32 v{ROWV[1]}, {GT}')
    a(f'v_mov_b32 v{DV[1]}, 0')
    a('s_waitcnt lgkmcnt(3)')
    for it in range(2):
        s_ = src[it]
        a(f's_sub_i32 s{sT+1}, s{sCNT}, {64*it}')
        a(f'v_cmp_gt_i32 s[{sMK+2*it}:{sMK+2*it+1}], s{sT+1}, v{vLANE}')
        a(f'v_cndmask_b32 v{s_}, 0, v{s_}, s[{sMK+2*it}:{sMK+2*it+1}]')
        a(f'v_mul_u32_u24 v{T[0]}, 6, v{s_}')
        a(f'v_and_b32 v{T[0]}, -4, v{T[0]}')
        a(f'v_add_u32 v{T[0]}, {POS}, v{T[0]}')
        a(f'ds_read2_b32 v[{D[it]}:{D[it]+1}], v{T[0]} offset0:0 offset1:1')
        a(f'v_and_b32 v{s_}, 1, v{s_}')
        a(f'v_lshlrev_b32 v{s_}, 4, v{s_}')
    for it in range(2):
        if it == 1:
            a(f's_cmp_le_u32 s{sCNT}, 64')
            a(f's_cbranch_scc1 K2_GEO_W_{tag}')
        a(f's_waitcnt lgkmcnt({1-it})')
        rx, ry, rz, p = T[2], T[3], T[4], T[5]
        a(f'v_alignbit_b32 v{ry}, v{D[it]+1}, v{D[it]}, v{src[it]}')
        a(f'v_lshrrev_b32 v{rz}, v{src[it]}, v{D[it]+1}')
        a(f'v_lshlrev_b32 v{rx}, 16, v{ry}')
        a(f'v_and_b32 v{ry}, s{sMASK}, v{ry}')
        a(f'v_lshlrev_b32 v{rz}, 16, v{rz}')
        a(f'v_sub_f32 v{rx}, v{rx}, v{dp[0]}')
        a(f'v_sub_f32 v{ry}, v{ry}, v{dp[1]}')
        a(f'v_sub_f32 v{rz}, v{rz}, v{dp[2]}')
        def rnd2(x, y):
            a(f'v_cvt_pk_bf16_f32 v{p}, v{x}, v{y}')
            a(f'v_lshlrev_b32 v{x}, 16, v{p}')
            a(f'v_and_b32 v{y}, s{sMASK}, v{p}')
        def rnd1(x):
            a(f'v_cvt_pk_bf16_f32 v{x}, v{x}, v{x}')
            a(f'v_and_b32 v{x}, s{sMASK}, v{x}')
        rnd2(rx, ry); rnd1(rz)
        qx, qy, qz = T[6], T[7], T[8]
        a(f'v_mul_f32 v{qx}, v{rx}, v{rx}')
        a(f'v_mul_f32 v{qy}, v{ry}, v{ry}')
        a(f'v_mul_f32 v{qz}, v{rz}, v{rz}')
        rnd2(qx, qy); rnd1(qz)
        d = T[9]
        a(f'v_add_f32 v{d}, v{qx}, v{qy}')
        a(f'v_add_f32 v{d}, v{d}, v{qz}')
        rnd1(d)
        a(f'v_add_f32 v{d}, 0x322bcc77, v{d}')
        rnd1(d)
        a(f'v_sqrt_f32 v{d}, v{d}')
        rnd1(d)
        inv = qx
        a(f'v_rcp_f32 v{inv}, v{d}')
        a(f'v_cmp_gt_f32 vcc, 0x40a00000, v{d}')
        a(f's_and_b64 s[{sT+2}:{sT+3}], vcc, s[{sMK+2*it}:{sMK+2*it+1}]')
        a(f'v_lshrrev_b32 v{qy}, 16, v{d}')
        a(f'v_mul_f32 v{rx}, v{rx}, v{inv}')
        a(f'v_mul_f32 v{ry}, v{ry}, v{inv}')
        a(f'v_mul_f32 v{rz}, v{rz}, v{inv}')
        a(f'v_cmp_gt_u32 vcc, {G.GT_T0}, v{qy}')
        a(f'v_lshlrev_b32 v{qy}, 5, v{qy}')
        a(f'v_add_u32 v{qy}, {GT + 32 - 32*G.GT_T0}, v{qy}')
        a(f's_and_b64 vcc, vcc, s[{sT+2}:{sT+3}]')
        a(f's_cmp_lg_u64 vcc, 0')
        a(f's_cselect_b32 s{sT}, 1, 0')
        a(f's_or_b32 s{sSLOW}, s{sSLOW}, s{sT}')
        rnd2(rx, ry); rnd1(rz)
        a(f'v_mov_b32 v{qz}, {GT}')
        a(f'v_cndmask_b32 v{ROWV[it]}, v{qz}, v{qy}, s[{sT+2}:{sT+3}]')
        a(f'v_cndmask_b32 v{DV[it]}, 0, v{d}, s[{sT+2}:{sT+3}]')
        a(f'v_lshl_add_u32 v{T[0]}, v{vLANE}, 2, v{vGSW}')
        a(f'ds_write_b32 v{T[0]}, v{rx} offset:{512+256*it}')
        a(f'ds_write_b32 v{T[0]}, v{ry} offset:{1024+256*it}')
        a(f'ds_write_b32 v{T[0]}, v{rz} offset:{1536+256*it}')
    a.label(f'K2_GEO_W_{tag}')
    a(f'v_lshl_add_u32 v{T[0]}, v{vLANE}, 2, v{vGSW}')
    a(f's_cmp_eq_u32 s{sSLOW}, 1')
    a(f's_cbranch_scc1 K2_GEO_S_{tag}')
    a(f'ds_write_b32 v{T[0]}, v{ROWV[0]}')
    a(f'ds_write_b32 v{T[0]}, v{ROWV[1]} offset:256')
    a(f's_branch K2_GEO_END_{tag}')
    a.label(f'K2_GEO_S_{tag}')
    a(f'ds_write_b32 v{T[0]}, v{DV[0]}')
    a(f'ds_write_b32 v{T[0]}, v{DV[1]} offset:256')
    a.label(f'K2_GEO_END_{tag}')
    a(f'v_mov_b32 v{vWVA}, v{vKGWV}')
    a(f'v_mov_b32 v{vDA}, v{vKGD}')

def epilogue(a):
    F = [accH(w, t) for w in range(4) for t in (1, 3)]
    WRB = F[0:4]
    O = F[4:8]
    W2 = POOL
    def rd_w2(part):
        for kp in range(2):
            for tau in range(4):
                a(f'ds_read_b128 {rng(W2+16*kp+4*tau)}, v{vIMG} offset:{part*8192+kp*4096+tau*1024}')
    def rd_wr(p):
        for tau in range(4):
            a(f'ds_read_b128 {rng(WRB[tau])}, v{vIMG} offset:{16384+p*4096+tau*1024}')
    rd_w2(0)
    for w in range(4):
        for kp in range(2):
            e, o = accH(w, 2*kp), accH(w, 2*kp+1)
            a(f'v_cvt_pk_bf16_f32 v{e}, v{e}, v{e+1}')
            a(f'v_cvt_pk_bf16_f32 v{e+1}, v{e+2}, v{e+3}')
            a(f'v_cvt_pk_bf16_f32 v{e+2}, v{o}, v{o+1}')
            a(f'v_cvt_pk_bf16_f32 v{e+3}, v{o+2}, v{o+3}')
    rd_wr(1)
    a('s_waitcnt lgkmcnt(4)')
    for tau in range(4):
        a(f'v_mfma_f32_16x16x32_bf16 {rng(GR+4*tau)}, {rng(accH(0,0))}, {rng(W2+4*tau)}, 0')
    for tau in range(4):
        a(f'v_mfma_f32_16x16x32_bf16 {rng(GR+4*tau)}, {rng(accH(0,2))}, {rng(W2+16+4*tau)}, {rng(GR+4*tau)}')
    rd_w2(1)
    a('s_waitcnt lgkmcnt(8)')
    for k in range(3):
        for tau in range(4):
            o = O[1+k] + tau; s = accV(k, tau); c = WRB[tau]
            a(f'v_mul_f32 v{o}, v{c}, v{s}')
        for q in range(1, 4):
            for tau in range(4):
                o = O[1+k] + tau; s = accV(k, tau); c = WRB[tau]
                a(f'v_fmac_f32 v{o}, v{c+q}, v{s+q}')
    rd_wr(0)
    a('s_waitcnt lgkmcnt(4)')
    for k in range(3):
        for tau in range(4):
            a(f'v_mfma_f32_16x16x32_bf16 {rng(accV(k,tau))}, {rng(accH(1+k,0))}, {rng(W2+4*tau)}, 0')
        for tau in range(4):
            a(f'v_mfma_f32_16x16x32_bf16 {rng(accV(k,tau))}, {rng(accH(1+k,2))}, {rng(W2+16+4*tau)}, {rng(accV(k,tau))}')
    a('s_waitcnt lgkmcnt(0)')
    for tau in range(4):
        a(f'v_mul_f32 v{O[0]+tau}, v{WRB[tau]}, v{GR+4*tau}')
    for q in range(1, 4):
        for tau in range(4):
            a(f'v_fmac_f32 v{O[0]+tau}, v{WRB[tau]+q}, v{GR+4*tau+q}')
    rd_wr(2)
    a('s_waitcnt lgkmcnt(0)')
    for k in range(3):
        for q in range(4):
            for tau in range(4):
                a(f'v_fmac_f32 v{O[1+k]+tau}, v{WRB[tau]+q}, v{accV(k,tau)+q}')
    for w in range(4):
        a(f'v_permlane32_swap_b32 v{O[w]}, v{O[w]+2}')
        a(f'v_permlane32_swap_b32 v{O[w]+1}, v{O[w]+3}')
    for w in range(4):
        a(f'v_add_f32 v{O[w]}, v{O[w]}, v{O[w]+2}')
        a(f'v_add_f32 v{O[w]+1}, v{O[w]+1}, v{O[w]+3}')
    for w in range(4):
        a(f'v_permlane16_swap_b32 v{O[w]}, v{O[w]+1}')
    for w in range(4):
        a(f'v_add_f32 v{O[w]}, v{O[w]}, v{O[w]+1}')
    R = [O[w] for w in range(4)]
    a(f's_add_u32 s{sT}, s{sN0}, s{sJC}')
    a(f's_and_b32 s{sT+1}, s{sFIRST}, s{sRLAST}')
    a(f's_cmp_eq_u32 s{sT+1}, 1')
    a('s_cbranch_scc1 K2_EPI_FINAL')
    a(f's_lshl_b32 s{sT+1}, s{sT}, 10')
    a(f's_add_u32 s{sT+1}, s{sT+1}, {G.PART_OFF}')
    a(f'v_lshlrev_b32 v{vT0}, 2, v{vLANE}')
    a(f's_cmp_eq_u32 s{sFIRST}, 1')
    a('s_cbranch_scc1 K2_EPI_NOLOAD')
    for w in range(4):
        a(f'buffer_load_dword v{GR+w}, v{vT0}, s[{sWS}:{sWS+3}], s{sT+1} offen offset:{256*w}')
    a('s_waitcnt vmcnt(0)')
    for w in range(4):
        a(f'v_add_f32 v{R[w]}, v{R[w]}, v{GR+w}')
    a.label('K2_EPI_NOLOAD')
    a(f's_cmp_eq_u32 s{sRLAST}, 1')
    a('s_cbranch_scc1 K2_EPI_FINAL')
    for w in range(4):
        a(f'buffer_store_dword v{R[w]}, v{vT0}, s[{sWS}:{sWS+3}], s{sT+1} offen offset:{256*w}')
    a('s_waitcnt vmcnt(0)')
    a('s_branch K2_EPI_DONE')
    a.label('K2_EPI_FINAL')
    p01, p23 = GR, GR+1
    x = [GR+2+w for w in range(4)]
    a(f'v_cvt_pk_bf16_f32 v{p01}, v{R[0]}, v{R[1]}')
    a(f'v_cvt_pk_bf16_f32 v{p23}, v{R[2]}, v{R[3]}')
    a(f'v_lshlrev_b32 v{x[0]}, 16, v{p01}')
    a(f'v_and_b32 v{x[1]}, s{sMASK}, v{p01}')
    a(f'v_lshlrev_b32 v{x[2]}, 16, v{p23}')
    a(f'v_and_b32 v{x[3]}, s{sMASK}, v{p23}')
    for w in range(4):
        a(f'v_add_f32 v{x[w]}, v{x[w]}, v{SV+w}')
    a(f'v_cvt_pk_bf16_f32 v{p01}, v{x[0]}, v{x[1]}')
    a(f'v_cvt_pk_bf16_f32 v{p23}, v{x[2]}, v{x[3]}')
    a(f's_lshl_b32 s{sT+1}, s{sT}, 9')
    a(f'buffer_store_short v{p01}, v{vOUTOFF}, s[{sOUT}:{sOUT+3}], s{sT+1} offen')
    a(f'buffer_store_short_d16_hi v{p01}, v{vOUTOFF}, s[{sOUT}:{sOUT+3}], s{sT+1} offen offset:128')
    a(f'buffer_store_short v{p23}, v{vOUTOFF}, s[{sOUT}:{sOUT+3}], s{sT+1} offen offset:256')
    a(f'buffer_store_short_d16_hi v{p23}, v{vOUTOFF}, s[{sOUT}:{sOUT+3}], s{sT+1} offen offset:384')
    a.label('K2_EPI_DONE')

def sv_loads(a, sj):
    a(f's_add_u32 s{sT}, s{sN0}, s{sj}')
    a(f's_lshl_b32 s{sT}, s{sT}, 9')
    for w in range(4):
        a(f'buffer_load_short_d16_hi v{SV+w}, v{vOUTOFF}, s[{sSV}:{sSV+3}], s{sT} offen offset:{128*w}')

def gen_k2(a):
    a.raw('.globl k2_kernel\n.p2align 8\n.type k2_kernel,@function')
    a.label('k2_kernel')
    a('s_load_dwordx4 s[4:7], s[0:1], 0')
    a('s_load_dwordx2 s[96:97], s[0:1], 32')
    a('s_load_dwordx2 s[8:9], s[0:1], 64')
    a('s_load_dwordx2 s[10:11], s[0:1], 80')
    a(f's_cmp_ge_u32 s2, {G.NB}')
    a('s_cbranch_scc1 K2_END')
    a(f's_mov_b32 s{sMASK}, 0xffff0000')
    a(f's_mov_b32 s{sSELLO}, 0x05040100')
    a(f's_mov_b32 s{sSELHI}, 0x07060302')
    a(f's_mov_b32 s{s512}, 512')
    a(f's_and_b32 s{sBK}, s2, 7')
    a(f's_lshl_b32 s{sBK}, s{sBK}, 5')
    a(f's_lshr_b32 s{sT}, s2, 3')
    a(f's_or_b32 s{sBK}, s{sBK}, s{sT}')
    a(f's_mul_i32 s{sN0}, s{sBK}, 12500')
    a(f's_add_u32 s{sNN}, s{sN0}, {12500+255}')
    a(f's_add_u32 s{sN0}, s{sN0}, 255')
    a(f's_lshr_b32 s{sN0}, s{sN0}, 8')
    a(f's_lshr_b32 s{sNN}, s{sNN}, 8')
    a(f's_sub_u32 s{sNN}, s{sNN}, s{sN0}')
    a(f'v_and_b32 v{vLANE}, 63, v0')
    a(f'v_and_b32 v{vT1}, 15, v{vLANE}')
    a(f'v_lshrrev_b32 v{vT2}, 4, v{vLANE}')
    a(f'v_lshlrev_b32 v{vLANE16}, 4, v{vT1}')
    a('v_lshrrev_b32 v16, 6, v0')
    a(f'v_readfirstlane_b32 s{sWAVE}, v16')
    a(f'v_lshlrev_b32 v{vKGDS}, 4, v{vT2}')
    a(f'v_lshl_add_u32 v{vOUTOFF}, v{vT1}, 2, v{vT2}')
    a(f'v_lshlrev_b32 v{vOUTOFF}, 1, v{vOUTOFF}')
    a(f'v_lshlrev_b32 v{vIMG}, 4, v{vLANE}')
    a(f'v_add_u32 v{vIMG}, {W2IMG}, v{vIMG}')
    a(f's_mul_i32 s{sGS}, s{sWAVE}, {GSW}')
    a(f's_add_u32 s{sGS}, s{sGS}, {GS}')
    a(f'v_mov_b32 v{vGSW}, s{sGS}')
    a(f'v_lshrrev_b32 v{vKGWV}, 2, v{vT1}')
    a(f'v_lshl_add_u32 v{vKGWV}, v{vT2}, 3, v{vKGWV}')
    a(f'v_lshl_add_u32 v{vKGWV}, v{vKGWV}, 2, v{vGSW}')
    a(f'v_and_b32 v{vC8}, 3, v{vLANE}')
    a(f'v_lshlrev_b32 v{vC8}, 3, v{vC8}')
    a(f'v_lshlrev_b32 v{vKGD}, 5, v{vT2}')
    a(f'v_add_u32 v{vKGD}, v{vKGD}, v{vGSW}')
    a(f'v_mov_b32 v{vFREQ}, 0')
    a(f'v_lshlrev_b32 v{vT1}, 1, v{vT1}')
    a('s_waitcnt lgkmcnt(0)')
    G.srd(a, sWS, 10, G.WS_USED)
    if STAMP:
        a('s_mov_b32 s98, 0')
        a('v_mov_b32 v252, -1')
    mark(a, True); mark(a)
    a(f'v_lshl_add_u32 v17, v16, 5, v{vLANE}')
    a(f'v_cmp_gt_u32 vcc, 32, v{vLANE}')
    a(f'v_mov_b32 v{vSEGLO}, 0')
    a(f'v_mov_b32 v18, {G.NCH}')
    a(f'v_cmp_lt_u32 s[{sT}:{sT+1}], v17, v18')
    a(f's_and_b64 vcc, vcc, s[{sT}:{sT+1}]')
    a('v_lshlrev_b32 v18, 2, v17')
    a(f's_lshl_b32 s{sT}, s{sBK}, 10')
    a(f's_add_u32 s{sT}, s{sT}, {G.SEG_OFF}')
    a(f's_and_saveexec_b64 s[{sEX}:{sEX+1}], vcc')
    a(f'buffer_load_dword v{vSEGLO}, v18, s[{sWS}:{sWS+3}], s{sT} offen')
    a(f's_mov_b64 exec, s[{sEX}:{sEX+1}]')
    G.srd(a, sTAB, 10, G.TAB_SZ); G.srd(a, sSV, 4, N*512); G.srd(a, sOUT, 8, N*512); G.srd(a, sPOSP, 6, N*6)
    a(f'global_load_short_d16_hi v{vFREQ}, v{vT1}, s[96:97]')
    a(f's_mov_b32 s{sF0}, 0')
    a(f's_mov_b32 s{sW}, {WCAP}')
    a(f's_mov_b32 s{sFIRST}, 1')
    a(f'v_mul_u32_u24 v{vSEGHI}, {G.CHE}, v17')
    a('s_waitcnt vmcnt(1)')
    mark(a)
    a(f'v_and_b32 v18, 0xffff, v{vSEGLO}')
    a(f'v_add_u32 v{vSEGHI}, v{vSEGHI}, v18')
    a(f'v_lshrrev_b32 v{vSEGLO}, 16, v{vSEGLO}')
    a(f'v_mov_b32 v{vPFX}, v{vSEGLO}')
    for sh in (1, 2, 4, 8):
        a(f'v_add_u32_dpp v{vPFX}, v{vPFX}, v{vPFX} row_shr:{sh} row_mask:0xf bank_mask:0xf')
    a(f'v_add_u32_dpp v{vPFX}, v{vPFX}, v{vPFX} row_bcast:15 row_mask:0xa bank_mask:0xf')
    a(f'v_readlane_b32 s{sTOT}, v{vPFX}, 31')
    a(f'v_sub_u32 v{vPFX}, v{vPFX}, v{vSEGLO}')
    a('s_branch K2_ROUND_IN')
    a.label('K2_ROUND')
    a('s_barrier')
    a.label('K2_ROUND_IN')
    a('v_lshlrev_b32 v18, 4, v0')
    a('v_mov_b32 v24, 0\nv_mov_b32 v25, 0\nv_mov_b32 v26, 0\nv_mov_b32 v27, 0')
    a(f'v_add_u32 v19, {CNT}, v18')
    a('v_cmp_gt_u32 vcc, 24, v0')
    a(f's_and_saveexec_b64 s[{sEX}:{sEX+1}], vcc')
    a('ds_write_b128 v19, v[24:27]')
    a(f's_mov_b64 exec, s[{sEX}:{sEX+1}]')
    a(f'v_subrev_u32 v30, s{sF0}, v{vPFX}')
    a('v_sub_u32 v31, 0, v30')
    a('v_max_i32 v31, 0, v31')
    a(f'v_sub_u32 v32, s{sW}, v30')
    a(f'v_min_i32 v32, v32, v{vSEGLO}')
    a('v_add_u32 v33, v30, v31')
    a('v_lshlrev_b32 v33, 2, v33')
    a(f'v_add_u32 v33, s{sGS}, v33')
    a(f'v_add_lshl_u32 v28, v{vSEGHI}, v31, 2')
    a('v_sub_u32 v32, v32, v31')
    a.label('K2_MK')
    a('v_cmp_lt_i32 vcc, 0, v32')
    a('s_cbranch_vccz K2_MK_DONE')
    a(f's_and_saveexec_b64 s[{sEX}:{sEX+1}], vcc')
    a('ds_write_b32 v33, v28')
    a('v_add_u32 v29, 4, v28')
    a('v_cmp_lt_i32 vcc, 1, v32')
    a('s_and_b64 exec, exec, vcc')
    a('ds_write_b32 v33, v29 offset:4')
    a(f's_mov_b64 exec, s[{sEX}:{sEX+1}]')
    a('v_add_u32 v33, 8, v33')
    a('v_add_u32 v28, 8, v28')
    a('v_subrev_u32 v32, 2, v32')
    a('s_branch K2_MK')
    a.label('K2_MK_DONE')
    a(f's_sub_i32 s{sT}, s{sTOT}, s{sF0}')
    a(f's_max_i32 s{sT}, s{sT}, 0')
    a(f's_min_i32 s{sNV}, s{sT}, s{sW}')
    a(f's_cmp_gt_i32 s{sT}, s{sW}')
    a(f's_cselect_b32 s{sMORE}, 1, 0')
    U = WCAP // 64
    a(f'v_lshl_add_u32 v30, v{vLANE}, 2, v{vGSW}')
    RIDX = lambda u: 116 + u
    for u in range(U):
        a(f'ds_read_b32 v{RIDX(u)}, v30 offset:{256*u}')
    for u in range(U):
        a(f's_sub_i32 s{sT}, s{sNV}, {64*u}')
        a(f'v_cmp_gt_i32 s[{sMK+2*u}:{sMK+2*u+1}], s{sT}, v{vLANE}')
    a(f's_mov_b32 s{sT2}, {G.REC_OFF}')
    RR = lambda u: 136 + u
    a(f's_mov_b64 s[{sEX}:{sEX+1}], exec')
    for u in range(U):
        a(f's_waitcnt lgkmcnt({U-1-u})')
        a(f's_mov_b64 exec, s[{sMK+2*u}:{sMK+2*u+1}]')
        a(f'buffer_load_dword v{RR(u)}, v{RIDX(u)}, s[{sWS}:{sWS+3}], s{sT2} offen')
    a(f's_mov_b64 exec, s[{sEX}:{sEX+1}]')
    a(f's_cmp_eq_u32 s{sFIRST}, 1')
    a('s_cbranch_scc0 K2_NODMA')
    a(f'v_lshlrev_b32 v34, 4, v{vLANE}')
    a(f's_mul_i32 s{sT}, s2, 9')
    a(f's_add_u32 s{sT}, s{sT}, s{sWAVE}')
    for i in range(10):
        a(f's_add_u32 s{sT+1}, s{sT}, {8*i}')
        a(f's_mul_hi_u32 s{sT+2}, s{sT+1}, {(1<<32)//74+1}')
        a(f's_mul_i32 s{sT+2}, s{sT+2}, 74')
        a(f's_sub_u32 s{sT+1}, s{sT+1}, s{sT+2}')
        a(f's_lshl_b32 s{sT+1}, s{sT+1}, 10')
        a(f's_add_u32 s{sT+2}, s{sT+1}, {POS}')
        a(f's_mov_b32 m0, s{sT+2}')
        a('s_nop 0')
        a(f'buffer_load_dwordx4 v34, s[{sPOSP}:{sPOSP+3}], s{sT+1} offen lds')
    for i in range(4):
        if i == 3:
            a(f's_cmp_ge_u32 s{sWAVE}, 4')
            a('s_cbranch_scc1 K2_DMA_GT')
        a(f's_add_u32 s{sT+1}, s{sWAVE}, {8*i}')
        a(f's_lshl_b32 s{sT+1}, s{sT+1}, 10')
        a(f's_add_u32 s{sT+2}, s{sT+1}, {W2IMG}')
        a(f's_mov_b32 m0, s{sT+2}')
        a(f's_add_u32 s{sT+1}, s{sT+1}, {G.CIMG_OFF}')
        a(f'buffer_load_dwordx4 v34, s[{sWS}:{sWS+3}], s{sT+1} offen lds')
    a.label('K2_DMA_GT')
    for i in range(4):
        if i == 3:
            a(f's_cmp_ge_u32 s{sWAVE}, 2')
            a('s_cbranch_scc1 K2_NODMA')
        a(f's_add_u32 s{sT+1}, s{sWAVE}, {8*i}')
        a(f's_lshl_b32 s{sT+1}, s{sT+1}, 10')
        a(f's_add_u32 s{sT+2}, s{sT+1}, {GT}')
        a(f's_mov_b32 m0, s{sT+2}')
        a(f's_add_u32 s{sT+1}, s{sT+1}, {G.GT_OFF}')
        a(f'buffer_load_dwordx4 v34, s[{sWS}:{sWS+3}], s{sT+1} offen lds')
    a.label('K2_NODMA')
    a('s_waitcnt lgkmcnt(0)')
    mark(a)
    a('s_barrier')
    a(f's_cmp_eq_u32 s{sFIRST}, 1')
    a('s_cbranch_scc1 K2_WREC1')
    a('s_waitcnt vmcnt(0)')
    a('s_branch K2_WREC2')
    a.label('K2_WREC1')
    a('s_waitcnt vmcnt(16)')
    a.label('K2_WREC2')
    mark(a)
    DL = lambda u: 92 + u
    RK = lambda u: 102 + u
    a('v_mov_b32 v28, 1')
    for u in range(U):
        a(f's_cmp_eq_u64 s[{sMK+2*u}:{sMK+2*u+1}], 0')
        a('s_cbranch_scc1 K2_AT_DONE')
        a(f's_mov_b64 exec, s[{sMK+2*u}:{sMK+2*u+1}]')
        a(f'v_lshrrev_b32 v{DL(u)}, 16, v{RR(u)}')
        a(f'v_subrev_u32 v{DL(u)}, s{sN0}, v{DL(u)}')
        a(f'v_lshlrev_b32 v36, 2, v{DL(u)}')
        a(f'v_add_u32 v36, {CNT}, v36')
        a(f'ds_add_rtn_u32 v{RK(u)}, v36, v28')
    a.label('K2_AT_DONE')
    a('s_waitcnt lgkmcnt(0)')
    a(f's_mov_b64 s[{sOVF}:{sOVF+1}], 0')
    for u in range(U):
        a(f's_cmp_eq_u64 s[{sMK+2*u}:{sMK+2*u+1}], 0')
        a('s_cbranch_scc1 K2_PL_DONE')
        a(f's_mov_b64 exec, s[{sMK+2*u}:{sMK+2*u+1}]')
        a(f'v_cmp_gt_u32 vcc, 128, v{RK(u)}')
        a(f'v_lshl_add_u32 v34, v{DL(u)}, 7, v{RK(u)}')
        a(f's_andn2_b64 s[{sT}:{sT+1}], exec, vcc')
        a(f's_or_b64 s[{sOVF}:{sOVF+1}], s[{sOVF}:{sOVF+1}], s[{sT}:{sT+1}]')
        a('s_and_b64 exec, exec, vcc')
        a('v_lshlrev_b32 v34, 1, v34')
        a(f'ds_write_b16 v34, v{RR(u)}')
    a.label('K2_PL_DONE')
    a(f's_mov_b64 exec, s[{sEX}:{sEX+1}]')
    a(f'v_mov_b32 v35, {MISC}')
    a(f's_cmp_eq_u64 s[{sOVF}:{sOVF+1}], 0')
    a('s_cbranch_scc1 K2_NOOVF')
    a('ds_write_b32 v35, v28 offset:4')
    a.label('K2_NOOVF')
    a(f's_cmp_eq_u32 s{sMORE}, 0')
    a('s_cbranch_scc1 K2_NOMORE')
    a('ds_write_b32 v35, v28 offset:8')
    a.label('K2_NOMORE')
    a('s_waitcnt lgkmcnt(0)')
    mark(a)
    a('s_barrier')
    a('ds_read_b32 v30, v35 offset:4')
    a('ds_read_b32 v31, v35 offset:8')
    a(f'v_lshrrev_b32 v32, 5, v{vLANE}')
    a(f'v_and_b32 v33, 31, v{vLANE}')
    a(f's_lshl_b32 s{sT}, s{sWAVE}, 1')
    a(f'v_add_u32 v32, s{sT}, v32')
    for i in range(4):
        a(f'v_lshlrev_b32 v{40+i}, 2, v32')
        a(f'v_add_u32 v{40+i}, {CNT+64*i}, v{40+i}')
        a(f'ds_read_b32 v{44+i}, v{40+i}')
    a('s_waitcnt lgkmcnt(4)')
    a(f'v_readfirstlane_b32 s{sT}, v30')
    a(f'v_readfirstlane_b32 s{sMORE}, v31')
    a(f's_cmp_eq_u32 s{sT}, 0')
    a('s_cbranch_scc1 K2_GO')
    a('s_waitcnt vmcnt(0) lgkmcnt(0)')
    a(f's_lshr_b32 s{sW}, s{sW}, 1')
    a('s_branch K2_ROUND')
    a.label('K2_GO')
    a(f's_xor_b32 s{sRLAST}, s{sMORE}, 1')
    a(f'v_mov_b32 v36, {PADMARK}')
    a('s_waitcnt lgkmcnt(0)')
    for i in range(4):
        c = 44+i
        a(f'v_add_u32 v37, 31, v{c}')
        a('v_lshrrev_b32 v37, 5, v37')
        a('v_max_u32 v37, 1, v37')
        a('v_subrev_u32 v37, 1, v37')
        a('v_lshl_add_u32 v37, v37, 5, v33')
        a(f'v_cmp_ge_u32 vcc, v37, v{c}')
        a(f'v_add_u32 v38, {16*i}, v32')
        a(f'v_cmp_gt_u32 s[{sT}:{sT+1}], 50, v38')
        a(f's_and_b64 vcc, vcc, s[{sT}:{sT+1}]')
        a('v_lshl_add_u32 v37, v38, 7, v37')
        a('s_and_b64 exec, exec, vcc')
        a('v_lshlrev_b32 v39, 1, v37')
        a('ds_write_b16 v39, v36')
        a(f's_mov_b64 exec, s[{sEX}:{sEX+1}]')
    a('s_waitcnt vmcnt(0) lgkmcnt(0)')
    mark(a)
    a('s_barrier')
    mark(a)
    a(f'v_mov_b32 v{vT0}, {MISC}')
    a(f'v_mov_b32 v{vT1}, 1')
    a('s_mov_b64 exec, 1')
    a(f'ds_add_rtn_u32 v{vM1}, v{vT0}, v{vT1}')
    a(f'ds_add_rtn_u32 v{vM2}, v{vT0}, v{vT1}')
    a(f's_mov_b64 exec, s[{sEX}:{sEX+1}]')
    a('s_waitcnt lgkmcnt(0)')
    a(f'v_readfirstlane_b32 s{sJC}, v{vM1}')
    a(f'v_readfirstlane_b32 s{sJN}, v{vM2}')
    a(f's_cmp_ge_u32 s{sJC}, s{sNN}')
    a('s_cbranch_scc1 K2_WAVE_DONE')
    a(f's_lshl_b32 s{sT}, s{sJC}, 2')
    a(f's_add_u32 s{sT}, s{sT}, {CNT}')
    a(f'v_mov_b32 v{vT2}, s{sT}')
    a(f'ds_read_b32 v{vM1}, v{vT2}')
    a(f's_lshl_b32 s{sBASE}, s{sJC}, 7')
    a(f's_lshl_b32 s{sT}, s{sBASE}, 1')
    a(f'v_add_u32 v{vDSA}, s{sT}, v{vKGDS}')
    a(f'ds_read_b128 {rng(DS)}, v{vDSA}')
    for w in range(4): a(f'v_mov_b32 v{SV+w}, 0')
    a('s_waitcnt lgkmcnt(0)')
    a(f'v_readfirstlane_b32 s{sCNTN}, v{vM1}')
    ADDR = POOL + 16
    addr_calc(a, ADDR)
    for j in range(8):
        a(f'buffer_load_dwordx4 {rng(L0+4*j)}, v{ADDR+j}, s[{sTAB}:{sTAB+3}], 0 offen')
    for j in range(8):
        a(f'buffer_load_dwordx4 {rng(L1+4*j)}, v{ADDR+j}, s[{sTAB}:{sTAB+3}], 0 offen offset:256')
    sv_loads(a, sJC)
    a(f's_add_u32 s{sNSTC}, s{sCNTN}, 31')
    a(f's_lshr_b32 s{sNSTC}, s{sNSTC}, 5')
    a(f's_max_u32 s{sNSTC}, s{sNSTC}, 1')
    geometry(a, sJC, sCNTN, 'P')
    a.label('K2_NODE')
    mark(a)
    a(f's_mov_b32 s{sK}, 0')
    step(a, True)
    a(f's_cmp_eq_u32 s{sLAST}, 1')
    a('s_cbranch_scc1 K2_EPI')
    a.label('K2_STEP')
    a(f's_add_u32 s{sK}, s{sK}, 1')
    step(a, False)
    a(f's_cmp_eq_u32 s{sLAST}, 1')
    a('s_cbranch_scc0 K2_STEP')
    a.label('K2_EPI')
    mark(a)
    a.safe()
    epilogue(a)
    sv_loads(a, sJN)
    a(f's_min_u32 s{sJC}, s{sJN}, 49')
    geometry(a, sJC, sCNTN, 'E')
    a(f's_mov_b32 s{sJC}, s{sJN}')
    a(f's_mov_b32 s{sNSTC}, s{sNSTN}')
    a(f's_mov_b32 s{sJN}, s{sJNN}')
    a(f's_cmp_lt_u32 s{sJC}, s{sNN}')
    a('s_cbranch_scc1 K2_NODE')
    a.label('K2_WAVE_DONE')
    a(f's_cmp_eq_u32 s{sRLAST}, 1')
    a('s_cbranch_scc1 K2_END')
    a('s_waitcnt vmcnt(0) lgkmcnt(0)')
    a(f's_mov_b32 s{sFIRST}, 0')
    a(f's_add_u32 s{sF0}, s{sF0}, s{sW}')
    a(f's_lshl_b32 s{sW}, s{sW}, 1')
    a(f's_min_u32 s{sW}, s{sW}, {WCAP}')
    a('s_branch K2_ROUND')
    a.label('K2_END')
    if STAMP:
        a(f's_cmp_ge_u32 s2, {G.NB}')
        a('s_cbranch_scc1 K2_END2')
        a('s_waitcnt vmcnt(0)')
        mark(a); mark(a, True)
        dump(a)
        a.label('K2_END2')
    a('s_endpgm')
    return True
```

```python
import sys
from asmlib import Asm

NAME = 'gather_scatter__molecular_angular_painn__graph'
N = 12500; E = 800000
NCH = 250; CHE = 3200; NB = 256
TAB_OFF = 0; TAB_SZ = N * 512
CIMG_OFF = 0x620000
SEG_OFF = 0x630000
REC_OFF = 0x700000
PART_OFF = 0x1400000
WS_USED = 0x2040000
NODE_WGS = 98
K1_GRID = NCH + NODE_WGS + 2
GT_OFF = 0x628000
GT_T0 = 0x3D80
GT_ROWS = 801
K1_LDS = 16384
HIST = 12800
MASKHI = 0xffff0000

def srd(a, d, base, size):
    a(f's_mov_b32 s{d}, s{base}')
    a(f's_and_b32 s{d+1}, s{base+1}, 0xffff')
    a(f's_mov_b32 s{d+2}, {size}')
    a(f's_mov_b32 s{d+3}, 0x20000')

def srd_off(a, d, base, off, size):
    a(f's_add_u32 s{d}, s{base}, {off}')
    a(f's_addc_u32 s{d+1}, s{base+1}, 0')
    a(f's_and_b32 s{d+1}, s{d+1}, 0xffff')
    a(f's_mov_b32 s{d+2}, {size}')
    a(f's_mov_b32 s{d+3}, 0x20000')

import os
STAMP = os.environ.get('STAMP','0') == '1'
STAMP_OFF = 0x3000000
class Stamper:
    def __init__(self, a, base, wsreg, kid):
        self.a=a; self.base=base; self.n=0; self.ws=wsreg; self.kid=kid
    def mark(self, real=False):
        if not STAMP: return
        a=self.a
        r=self.base+2*self.n
        a(f"{'s_memrealtime' if real else 's_memtime'} s[{r}:{r+1}]")
        a('s_waitcnt lgkmcnt(0)')
        self.n+=1
    def dump(self, vt0, wgreg='s2'):
        if not STAMP: return
        a=self.a
        b=self.base+2*self.n
        b=(b+3)//4*4
        a(f's_add_u32 s{b}, s{self.ws}, {STAMP_OFF+self.kid*0x100000}')
        a(f's_addc_u32 s{b+1}, s{self.ws+1}, 0')
        a(f's_and_b32 s{b+1}, s{b+1}, 0xffff')
        a(f's_mov_b32 s{b+2}, 0x100000')
        a(f's_mov_b32 s{b+3}, 0x20000')
        a('s_mov_b64 exec, 1')
        a(f'v_lshrrev_b32 v{vt0}, 6, v0')
        a(f'v_lshlrev_b32 v{vt0}, 7, v{vt0}')
        a(f's_lshl_b32 s{b+4}, {wgreg}, 11')
        a(f'v_add_u32 v{vt0}, s{b+4}, v{vt0}')
        for i in range(self.n):
            a(f'v_mov_b32 v{vt0+1}, s{self.base+2*i}')
            a(f'buffer_store_dword v{vt0+1}, v{vt0}, s[{b}:{b+3}], 0 offen offset:{4*i}')
        a('s_waitcnt vmcnt(0)')

def gen_k1(a):
    a.raw('.globl k1_kernel\n.p2align 8\n.type k1_kernel,@function')
    a.label('k1_kernel')
    a('s_load_dwordx4 s[4:7], s[0:1], 0')
    a('s_load_dwordx4 s[8:11], s[0:1], 16')
    a('s_load_dwordx4 s[12:15], s[0:1], 32')
    a('s_load_dwordx4 s[16:19], s[0:1], 48')
    a('s_load_dwordx2 s[20:21], s[0:1], 80')
    a(f's_cmp_ge_u32 s2, {K1_GRID}')
    a('s_cbranch_scc1 K1_END')
    a('s_mov_b32 s22, 0xffff0000')
    a('s_mov_b32 s47, 0x40a00000')
    a('s_mov_b32 s99, s2')
    a('s_waitcnt lgkmcnt(0)')
    a(f's_cmp_lt_u32 s2, {NODE_WGS+2}')
    a('s_cbranch_scc1 K1_NOTEDGE')
    a(f's_sub_u32 s2, s2, {NODE_WGS+2}')
    srd(a, 24, 8, E*4); srd(a, 28, 10, E*4); srd(a, 36, 20, WS_USED)
    st = Stamper(a, 48, 20, 0)
    st.mark(True); st.mark()
    a(f's_mul_i32 s3, s2, {CHE*4}')
    a('v_lshlrev_b32 v1, 4, v0')
    a('v_cmp_gt_u32 vcc, 400, v0')
    a('s_and_saveexec_b64 s[40:41], vcc')
    a('s_mov_b64 s[42:43], exec')
    a('buffer_load_dwordx4 v[4:7], v1, s[28:31], s3 offen')
    a('buffer_load_dwordx4 v[12:15], v1, s[24:27], s3 offen')
    a(f's_add_u32 s4, s3, {1600*4}')
    a('buffer_load_dwordx4 v[8:11], v1, s[28:31], s4 offen')
    a('buffer_load_dwordx4 v[16:19], v1, s[24:27], s4 offen')
    a('s_mov_b64 exec, s[40:41]')
    a('v_mov_b32 v60, 0\nv_mov_b32 v61, 0\nv_mov_b32 v62, 0\nv_mov_b32 v63, 0')
    a('v_cmp_gt_u32 vcc, 64, v0')
    a('s_and_saveexec_b64 s[44:45], vcc')
    a(f'v_add_u32 v2, {HIST}, v1')
    a('ds_write_b128 v2, v[60:63]')
    a('s_mov_b64 exec, s[40:41]')
    a('s_mov_b32 s46, 87960931')
    a('v_mov_b32 v40, 1')
    a('s_waitcnt lgkmcnt(0)')
    a('s_barrier')
    st.mark()
    a('s_mov_b64 exec, s[42:43]')
    DST = lambda e: 4+e
    SRC = lambda e: 12+e
    BK = lambda e: 20+e
    RK = lambda e: 28+e
    REC = lambda e: 44+e
    for e in range(8):
        if e == 0: a('s_waitcnt vmcnt(3)')
        if e == 4: a('s_waitcnt vmcnt(1)')
        a(f'v_mul_hi_u32 v{BK(e)}, v{DST(e)}, s46')
        a(f'v_lshlrev_b32 v{BK(e)}, 2, v{BK(e)}')
        a(f'v_add_u32 v{BK(e)}, {HIST}, v{BK(e)}')
        a(f'ds_add_rtn_u32 v{RK(e)}, v{BK(e)}, v40')
    a('s_waitcnt vmcnt(0)')
    for e in range(8):
        a(f'v_lshl_or_b32 v{REC(e)}, v{DST(e)}, 16, v{SRC(e)}')
    a('s_mov_b64 exec, s[40:41]')
    a('s_waitcnt lgkmcnt(0)')
    st.mark()
    a('s_barrier')
    st.mark()
    a('v_lshrrev_b32 v1, 6, v0')
    a('v_readfirstlane_b32 s4, v1')
    a('s_cmp_lg_u32 s4, 0')
    a('s_cbranch_scc1 K1_E_SCANDONE')
    a('v_lshlrev_b32 v1, 4, v0')
    a(f'v_add_u32 v2, {HIST}, v1')
    a('ds_read_b128 v[80:83], v2')
    a('s_waitcnt lgkmcnt(0)')
    a('v_add_u32 v84, v80, v81')
    a('v_add_u32 v85, v84, v82')
    a('v_add_u32 v86, v85, v83')
    a('v_mov_b32 v87, v86')
    for sh in (1, 2, 4, 8):
        a(f'v_add_u32_dpp v87, v87, v87 row_shr:{sh} row_mask:0xf bank_mask:0xf')
    a('v_add_u32_dpp v87, v87, v87 row_bcast:15 row_mask:0xa bank_mask:0xf')
    a('v_add_u32_dpp v87, v87, v87 row_bcast:31 row_mask:0xc bank_mask:0xf')
    a('v_sub_u32 v88, v87, v86')
    a('v_add_u32 v89, v88, v80')
    a('v_add_u32 v90, v88, v84')
    a('v_add_u32 v91, v88, v85')
    a('ds_write_b128 v2, v[88:91]')
    a('v_lshlrev_b32 v1, 12, v0')
    a('s_lshl_b32 s4, s2, 2')
    a(f's_add_u32 s4, s4, {SEG_OFF}')
    for i in range(4):
        a(f'v_lshl_or_b32 v{92+i}, v{80+i}, 16, v{88+i}')
        a(f'buffer_store_dword v{92+i}, v1, s[36:39], s4 offen offset:{1024*i}')
    a('s_waitcnt lgkmcnt(0)')
    a.label('K1_E_SCANDONE')
    a('s_barrier')
    st.mark()
    a('s_mov_b64 exec, s[42:43]')
    for e in range(8):
        a(f'ds_read_b32 v{BK(e)}, v{BK(e)}')
    for e in range(8):
        a(f's_waitcnt lgkmcnt({7-e})')
        a(f'v_add_lshl_u32 v{BK(e)}, v{BK(e)}, v{RK(e)}, 2')
        a(f'ds_write_b32 v{BK(e)}, v{REC(e)}')
    a('s_mov_b64 exec, s[40:41]')
    a('s_waitcnt lgkmcnt(0)')
    a('s_barrier')
    st.mark()
    a('v_lshlrev_b32 v1, 4, v0')
    a(f's_mul_i32 s4, s2, {CHE*4}')
    a(f's_add_u32 s4, s4, {REC_OFF}')
    a('ds_read_b128 v[80:83], v1')
    a('v_cmp_gt_u32 vcc, 288, v0')
    a('s_and_saveexec_b64 s[44:45], vcc')
    a('ds_read_b128 v[84:87], v1 offset:8192')
    a('s_mov_b64 exec, s[40:41]')
    a('s_waitcnt lgkmcnt(0)')
    a('buffer_store_dwordx4 v[80:83], v1, s[36:39], s4 offen')
    a('s_add_u32 s4, s4, 8192')
    a('s_mov_b64 exec, s[44:45]') if False else None
    a('v_cmp_gt_u32 vcc, 288, v0')
    a('s_and_saveexec_b64 s[44:45], vcc')
    a('buffer_store_dwordx4 v[84:87], v1, s[36:39], s4 offen')
    if STAMP:
        st.mark()
        a('s_waitcnt vmcnt(0)')
        st.mark(); st.mark(True)
        st.dump(110, 's99')
    a('s_endpgm')

    a.label('K1_NOTEDGE')
    a(f's_cmp_ge_u32 s2, {NODE_WGS}')
    a('s_cbranch_scc1 K1_CONST')
    srd(a, 24, 4, N*512); srd(a, 28, 14, 64*64*2); srd(a, 32, 16, 64*192*2); srd(a, 36, 20, TAB_SZ)
    st = Stamper(a, 48, 20, 0)
    st.mark(True); st.mark()
    a('v_lshlrev_b32 v1, 4, v0')
    a('buffer_load_dwordx4 v[4:7], v1, s[28:31], 0 offen')
    a('v_lshrrev_b32 v2, 3, v0')
    a('v_mul_u32_u24 v2, 384, v2')
    a('v_and_b32 v3, 7, v0')
    a('v_lshl_add_u32 v2, v3, 4, v2')
    a('buffer_load_dwordx4 v[8:11], v2, s[32:35], 0 offen offset:128')
    a('s_barrier')
    a('v_and_b32 v12, 63, v0')
    a('v_lshrrev_b32 v13, 6, v0')
    a('v_and_b32 v14, 15, v12')
    a('v_lshrrev_b32 v15, 4, v12')
    a('s_lshl_b32 s3, s2, 7')
    a('v_lshl_add_u32 v16, v13, 4, v14')
    a('v_add_u32 v16, s3, v16')
    a('v_lshlrev_b32 v17, 9, v16')
    a('v_lshl_add_u32 v18, v15, 4, v17')
    a('buffer_load_dwordx4 v[20:23], v18, s[24:27], 0 offen')
    a('buffer_load_dwordx4 v[24:27], v18, s[24:27], 0 offen offset:64')
    VV = lambda k, t2: 28 + 4*(2*k+t2)
    for k in range(3):
        for t2 in range(2):
            a(f'buffer_load_dwordx4 v[{VV(k,t2)}:{VV(k,t2)+3}], v18, s[24:27], 0 offen offset:{128*(k+1)+64*t2}')
    a('s_waitcnt vmcnt(8)')
    a('ds_write_b128 v1, v[4:7]')
    a('ds_write_b128 v1, v[8:11] offset:8192')
    a('v_lshrrev_b32 v2, 2, v14')
    a('v_and_b32 v3, 3, v14')
    a('v_lshl_add_u32 v4, v15, 3, v2')
    a('v_lshlrev_b32 v4, 7, v4')
    a('v_lshl_add_u32 v4, v3, 4, v4')
    a('s_waitcnt lgkmcnt(0)')
    st.mark()
    a('s_barrier')
    st.mark()
    def rd_ops(base):
        for t in range(4):
            t2, b = t >> 1, t & 1
            for kp in range(2):
                r = 52 + 4*(2*t+kp)
                o = base + kp*4096 + 64*t2 + 8*b
                a(f'ds_read_b64_tr_b16 v[{r}:{r+1}], v4 offset:{o}')
                a(f'ds_read_b64_tr_b16 v[{r+2}:{r+3}], v4 offset:{o+512}')
    rd_ops(0)
    a('s_waitcnt vmcnt(6) lgkmcnt(0)')
    D1 = lambda t: 84 + 4*t
    for t in range(4):
        a(f'v_mfma_f32_16x16x32_bf16 v[{D1(t)}:{D1(t)+3}], v[{52+8*t}:{55+8*t}], v[20:23], 0')
    for t in range(4):
        a(f'v_mfma_f32_16x16x32_bf16 v[{D1(t)}:{D1(t)+3}], v[{56+8*t}:{59+8*t}], v[24:27], v[{D1(t)}:{D1(t)+3}]')
    rd_ops(8192)
    HP = lambda t: 100 + 2*t
    for t in range(4):
        for hq in range(2):
            x, y = D1(t)+2*hq, D1(t)+2*hq+1
            t7, t8 = (7, 8) if hq == 0 else (9, 10)
            a(f'v_cvt_pk_bf16_f32 v6, v{x}, v{y}')
            a(f'v_lshlrev_b32 v{x}, 16, v6')
            a(f'v_and_b32 v{y}, s22, v6')
            a(f'v_mul_f32 v{t7}, 0xbfb8aa3b, v{x}')
            a(f'v_mul_f32 v{t8}, 0xbfb8aa3b, v{y}')
            a(f'v_exp_f32 v{t7}, v{t7}')
            a(f'v_exp_f32 v{t8}, v{t8}')
            a(f'v_add_f32 v{t7}, 1.0, v{t7}')
            a(f'v_add_f32 v{t8}, 1.0, v{t8}')
            a(f'v_rcp_f32 v{t7}, v{t7}')
            a(f'v_rcp_f32 v{t8}, v{t8}')
            a(f'v_mul_f32 v{t7}, v{t7}, v{x}')
            a(f'v_mul_f32 v{t8}, v{t8}, v{y}')
            a(f'v_cvt_pk_bf16_f32 v{HP(t)+hq}, v{t7}, v{t8}')
    a('s_waitcnt lgkmcnt(0)')
    D2 = lambda t: 84 + 4*t
    for t in range(4):
        a(f'v_mfma_f32_16x16x32_bf16 v[{D2(t)}:{D2(t)+3}], v[{52+8*t}:{55+8*t}], v[100:103], 0')
    for t in range(4):
        a(f'v_mfma_f32_16x16x32_bf16 v[{D2(t)}:{D2(t)+3}], v[{56+8*t}:{59+8*t}], v[104:107], v[{D2(t)}:{D2(t)+3}]')
    a('s_waitcnt vmcnt(0)')
    a('v_lshl_add_u32 v18, v15, 5, v17')
    for t in range(4):
        t2, b = t >> 1, t & 1
        for hq in range(2):
            x, y = D2(t)+2*hq, D2(t)+2*hq+1
            a(f'v_cvt_pk_bf16_f32 v6, v{x}, v{y}')
            a(f'v_lshlrev_b32 v{x}, 16, v6')
            a(f'v_and_b32 v{y}, s22, v6')
        o = 52 + 8*t
        for k in range(3):
            for hq in range(2):
                vr = VV(k,t2)+2*b+hq
                t7, t8 = (7, 8) if hq == 0 else (9, 10)
                a(f'v_lshlrev_b32 v{t7}, 16, v{vr}')
                a(f'v_and_b32 v{t8}, s22, v{vr}')
                a(f'v_mul_f32 v{t7}, v{t7}, v{D2(t)+2*hq}')
                a(f'v_mul_f32 v{t8}, v{t8}, v{D2(t)+2*hq+1}')
                a(f'v_cvt_pk_bf16_f32 v{o+2*k+hq}, v{t7}, v{t8}')
        a(f'v_mov_b32 v{o+6}, v{HP(t)}')
        a(f'v_mov_b32 v{o+7}, v{HP(t)+1}')
        a(f'buffer_store_dwordx4 v[{o}:{o+3}], v18, s[36:39], 0 offen offset:{128*t2+16*b}')
        a(f'buffer_store_dwordx4 v[{o+4}:{o+7}], v18, s[36:39], 0 offen offset:{256+128*t2+16*b}')
    if STAMP:
        st.mark()
        a('s_waitcnt vmcnt(0)')
        st.mark(); st.mark(True)
        st.dump(110, 's99')
    a('s_endpgm')

    a.label('K1_CONST')
    a(f's_cmp_eq_u32 s2, {NODE_WGS+1}')
    a('s_cbranch_scc1 K1_GT')
    srd(a, 28, 18, 16*192*2); srd(a, 32, 16, 64*192*2); srd_off(a, 36, 20, CIMG_OFF, 28672)
    a('v_and_b32 v1, 63, v0')
    a('v_and_b32 v2, 15, v1')
    a('v_lshrrev_b32 v3, 4, v1')
    a('v_bfe_u32 v4, v0, 6, 2')
    a('v_bfe_u32 v5, v0, 8, 1')
    a('v_lshlrev_b32 v6, 4, v3')
    a('v_lshl_add_u32 v6, v5, 1, v6')
    a('v_mul_u32_u24 v6, 384, v6')
    a('v_lshl_add_u32 v7, v2, 2, v4')
    a('v_lshl_add_u32 v6, v7, 1, v6')
    for part in range(2):
        for jj in range(8):
            off = (4*(jj & 3) + (jj >> 2))*384 + 256*part
            a(f'v_add_u32 v8, {off}, v6')
            a(f'buffer_load_ushort v{16+8*part+jj}, v8, s[32:35], 0 offen')
    a('v_lshlrev_b32 v9, 2, v3')
    a('v_mul_u32_u24 v9, 384, v9')
    a('v_lshl_add_u32 v9, v7, 1, v9')
    a('v_lshl_add_u32 v10, v5, 7, v9')
    for q in range(4):
        a(f'buffer_load_ushort v{32+q}, v10, s[28:31], 0 offen offset:{q*384}')
    for q in range(4):
        a(f'buffer_load_ushort v{36+q}, v9, s[28:31], 0 offen offset:{q*384+256}')
    a('s_waitcnt vmcnt(0)')
    a('v_lshlrev_b32 v11, 4, v0')
    for part in range(2):
        for h in range(4):
            a(f'v_lshl_or_b32 v{40+4*part+h}, v{16+8*part+2*h+1}, 16, v{16+8*part+2*h}')
        a(f'buffer_store_dwordx4 v[{40+4*part}:{43+4*part}], v11, s[36:39], 0 offen') if part == 0 else None
    a('v_add_u32 v12, 8192, v11')
    a('buffer_store_dwordx4 v[44:47], v12, s[36:39], 0 offen')
    for q in range(8):
        a(f'v_lshlrev_b32 v{32+q}, 16, v{32+q}')
    a('v_add_u32 v12, 16384, v11')
    a('buffer_store_dwordx4 v[32:35], v12, s[36:39], 0 offen')
    a('v_cmp_gt_u32 vcc, 256, v0')
    a('s_and_saveexec_b64 s[44:45], vcc')
    a('v_add_u32 v12, 24576, v11')
    a('buffer_store_dwordx4 v[36:39], v12, s[36:39], 0 offen')
    a('s_endpgm')
    a.label('K1_GT')
    srd_off(a, 36, 20, GT_OFF, GT_ROWS*32)
    a('s_load_dwordx8 s[24:31], s[12:13], 0')
    a('s_waitcnt lgkmcnt(0)')
    for it in range(2):
        a(f'v_add_u32 v1, {512*it}, v0')
        a(f'v_add_u32 v2, {GT_T0-1}, v1')
        a('v_lshlrev_b32 v2, 16, v2')
        def rnd1(x):
            a(f'v_cvt_pk_bf16_f32 v{x}, v{x}, v{x}')
            a(f'v_and_b32 v{x}, s22, v{x}')
        a('v_rcp_f32 v3, v2')
        a('v_mul_f32 v4, 0x40490fdb, v2'); rnd1(4)
        a('v_mul_f32 v4, 0x3e4ccccd, v4'); rnd1(4)
        a('v_mul_f32 v4, 0.15915494, v4')
        a('v_cos_f32 v4, v4'); rnd1(4)
        a('v_add_f32 v4, 1.0, v4'); rnd1(4)
        a('v_mul_f32 v3, 0.5, v3')
        a('v_mul_f32 v4, v4, v3')
        a('v_cmp_eq_u32 vcc, 0, v1')
        a('v_cndmask_b32 v4, v4, 0, vcc') if False else None
        a('v_mov_b32 v5, 0')
        a('v_cndmask_b32 v4, v4, v5, vcc')
        a('v_cndmask_b32 v2, v2, v5, vcc')
        for h in range(8):
            a(f's_lshl_b32 s4, s{24+h}, 16')
            a(f's_and_b32 s5, s{24+h}, s22')
            a('v_mul_f32 v6, s4, v2')
            a('v_mul_f32 v7, s5, v2')
            a('v_cvt_pk_bf16_f32 v8, v6, v7')
            a('v_lshlrev_b32 v6, 16, v8')
            a('v_and_b32 v7, s22, v8')
            a('v_mul_f32 v6, 0.15915494, v6')
            a('v_mul_f32 v7, 0.15915494, v7')
            a('v_sin_f32 v6, v6')
            a('v_sin_f32 v7, v7')
            a('v_mul_f32 v6, v6, v4')
            a('v_mul_f32 v7, v7, v4')
            a(f'v_cvt_pk_bf16_f32 v{16+h}, v6, v7')
        a('v_lshlrev_b32 v9, 5, v1')
        a('buffer_store_dwordx4 v[16:19], v9, s[36:39], 0 offen')
        a('buffer_store_dwordx4 v[20:23], v9, s[36:39], 0 offen offset:16')
        a('s_nop 2')
    a.label('K1_END')
    a('s_endpgm')

def kd(name, vgpr, sgpr):
    return f'''.amdhsa_kernel {name}
  .amdhsa_next_free_vgpr {vgpr}
  .amdhsa_next_free_sgpr {sgpr}
  .amdhsa_accum_offset {(vgpr+3)//4*4}
  .amdhsa_group_segment_fixed_size 0
  .amdhsa_kernarg_size 88
  .amdhsa_user_sgpr_count 2
  .amdhsa_user_sgpr_kernarg_segment_ptr 1
  .amdhsa_system_sgpr_workgroup_id_x 1
.end_amdhsa_kernel
'''

def main():
    import gen_k2
    a = Asm()
    gen_k1(a)
    k2 = gen_k2.gen_k2(a)
    hdr = open('cdna_kernels/%s.s.ref' % NAME).read().split('; Override')[0]
    hdr += f'; @launch kernel=k1_kernel grid=({K1_GRID},1,1) block=(512,1,1) lds={K1_LDS}\n'
    if k2:
        hdr += f'; @launch kernel=k2_kernel grid=({NB},1,1) block=(512,1,1) lds={gen_k2.K2_LDS}\n'
    hdr += '.amdgcn_target "amdgcn-amd-amdhsa--gfx950"\n.text\n'
    body = a.finish()
    tail = '.section .rodata,"a"\n.p2align 6\n' + kd('k1_kernel', 120, 102)
    if k2:
        tail += '.p2align 6\n' + kd('k2_kernel', 256, 102)
    out = sys.argv[1] if len(sys.argv) > 1 else 'cdna_kernels/%s.s' % NAME
    open(out, 'w').write(hdr + body + tail)
    print('wrote', out, 'nops inserted', a.nops_inserted)

if __name__ == '__main__':
    main()
```

```python
import sys, os
from asmlib import Asm

NAME = 'gather_scatter__molecular_angular_painn__graph'
N = 12500; E = 800000
NCH = 250; CHE = 3200; NB = 256
TAB_OFF = 0; TAB_SZ = N * 512
CIMG_OFF = 0x620000
SEG_OFF = 0x630000
REC_OFF = 0x700000
PART_OFF = 0x1400000
PART2_OFF = 0x1B00000
WS_USED = 0x2740000
NODE_WGS = 98
K1_GRID = NCH + NODE_WGS + 2
GT_OFF = 0x628000
GT_T0 = 0x3D80
GT_ROWS = 801
K1_LDS = 16384
HIST = 12800
TABB_OFF = 3200000
RECB = 12
MASKHI = 0xffff0000

def srd(a, d, base, size):
    a(f's_mov_b32 s{d}, s{base}')
    a(f's_and_b32 s{d+1}, s{base+1}, 0xffff')
    a(f's_mov_b32 s{d+2}, {size}')
    a(f's_mov_b32 s{d+3}, 0x20000')

def srd_off(a, d, base, off, size):
    a(f's_add_u32 s{d}, s{base}, {off}')
    a(f's_addc_u32 s{d+1}, s{base+1}, 0')
    a(f's_and_b32 s{d+1}, s{d+1}, 0xffff')
    a(f's_mov_b32 s{d+2}, {size}')
    a(f's_mov_b32 s{d+3}, 0x20000')

import os
STAMP = os.environ.get('STAMP','0') == '1'
STAMP_OFF = 0x3000000
class Stamper:
    def __init__(self, a, base, wsreg, kid):
        self.a=a; self.base=base; self.n=0; self.ws=wsreg; self.kid=kid
    def mark(self, real=False):
        if not STAMP: return
        a=self.a
        r=self.base+2*self.n
        a(f"{'s_memrealtime' if real else 's_memtime'} s[{r}:{r+1}]")
        a('s_waitcnt lgkmcnt(0)')
        self.n+=1
    def dump(self, vt0, wgreg='s2'):
        if not STAMP: return
        a=self.a
        b=self.base+2*self.n
        b=(b+3)//4*4
        a(f's_add_u32 s{b}, s{self.ws}, {STAMP_OFF+self.kid*0x100000}')
        a(f's_addc_u32 s{b+1}, s{self.ws+1}, 0')
        a(f's_and_b32 s{b+1}, s{b+1}, 0xffff')
        a(f's_mov_b32 s{b+2}, 0x100000')
        a(f's_mov_b32 s{b+3}, 0x20000')
        a('s_mov_b64 exec, 1')
        a(f'v_lshrrev_b32 v{vt0}, 6, v0')
        a(f'v_lshlrev_b32 v{vt0}, 7, v{vt0}')
        a(f's_lshl_b32 s{b+4}, {wgreg}, 11')
        a(f'v_add_u32 v{vt0}, s{b+4}, v{vt0}')
        for i in range(self.n):
            a(f'v_mov_b32 v{vt0+1}, s{self.base+2*i}')
            a(f'buffer_store_dword v{vt0+1}, v{vt0}, s[{b}:{b+3}], 0 offen offset:{4*i}')
        a('s_waitcnt vmcnt(0)')

def gen_k1(a):
    a.raw('.globl k1_kernel\n.p2align 8\n.type k1_kernel,@function')
    a.label('k1_kernel')
    a('s_load_dwordx4 s[4:7], s[0:1], 0')
    a('s_load_dwordx4 s[8:11], s[0:1], 16')
    a('s_load_dwordx4 s[12:15], s[0:1], 32')
    a('s_load_dwordx4 s[16:19], s[0:1], 48')
    a('s_load_dwordx2 s[20:21], s[0:1], 80')
    a(f's_cmp_ge_u32 s2, {K1_GRID}')
    a('s_cbranch_scc1 K1_END')
    a('s_mov_b32 s22, 0xffff0000')
    a('s_mov_b32 s47, 0x40a00000')
    a('s_mov_b32 s99, s2')
    a('s_waitcnt lgkmcnt(0)')
    if os.environ.get('NODEFIRST','0') == '1':
        a(f's_add_u32 s23, s2, {NCH}')
        a(f's_sub_u32 s2, s2, {NODE_WGS+2}')
        a(f's_cmp_lt_u32 s23, {NCH+NODE_WGS+2}')
        a('s_cselect_b32 s2, s23, s2')
    a(f's_cmp_ge_u32 s2, {NCH}')
    a('s_cbranch_scc1 K1_NOTEDGE')
    srd(a, 24, 8, E*4); srd(a, 28, 10, E*4); srd(a, 36, 20, WS_USED)
    st = Stamper(a, 48, 20, 0)
    st.mark(True); st.mark()
    a(f's_mul_i32 s3, s2, {CHE*4}')
    a('v_lshlrev_b32 v1, 4, v0')
    a('v_cmp_gt_u32 vcc, 400, v0')
    a('s_and_saveexec_b64 s[40:41], vcc')
    a('s_mov_b64 s[42:43], exec')
    a('buffer_load_dwordx4 v[4:7], v1, s[28:31], s3 offen')
    a('buffer_load_dwordx4 v[12:15], v1, s[24:27], s3 offen')
    a(f's_add_u32 s4, s3, {1600*4}')
    a('buffer_load_dwordx4 v[8:11], v1, s[28:31], s4 offen')
    a('buffer_load_dwordx4 v[16:19], v1, s[24:27], s4 offen')
    a('s_mov_b64 exec, s[40:41]')
    a('v_mov_b32 v60, 0\nv_mov_b32 v61, 0\nv_mov_b32 v62, 0\nv_mov_b32 v63, 0')
    a('v_cmp_gt_u32 vcc, 64, v0')
    a('s_and_saveexec_b64 s[44:45], vcc')
    a(f'v_add_u32 v2, {HIST}, v1')
    a('ds_write_b128 v2, v[60:63]')
    a('s_mov_b64 exec, s[40:41]')
    a('s_mov_b32 s46, 87960931')
    a('v_mov_b32 v40, 1')
    a('s_waitcnt lgkmcnt(0)')
    a('s_barrier')
    st.mark()
    a('s_mov_b64 exec, s[42:43]')
    DST = lambda e: 4+e
    SRC = lambda e: 12+e
    BK = lambda e: 20+e
    RK = lambda e: 28+e
    REC = lambda e: 44+e
    for e in range(8):
        if e == 0: a('s_waitcnt vmcnt(3)')
        if e == 4: a('s_waitcnt vmcnt(1)')
        a(f'v_mul_hi_u32 v{BK(e)}, v{DST(e)}, s46')
        a(f'v_lshlrev_b32 v{BK(e)}, 2, v{BK(e)}')
        a(f'v_add_u32 v{BK(e)}, {HIST}, v{BK(e)}')
        a(f'ds_add_rtn_u32 v{RK(e)}, v{BK(e)}, v40')
    a('s_waitcnt vmcnt(0)')
    for e in range(8):
        a(f'v_lshl_or_b32 v{REC(e)}, v{DST(e)}, 16, v{SRC(e)}')
    a('s_mov_b64 exec, s[40:41]')
    a('s_waitcnt lgkmcnt(0)')
    st.mark()
    a('s_barrier')
    st.mark()
    a('v_lshrrev_b32 v1, 6, v0')
    a('v_readfirstlane_b32 s4, v1')
    a('s_cmp_lg_u32 s4, 0')
    a('s_cbranch_scc1 K1_E_SCANDONE')
    a('v_lshlrev_b32 v1, 4, v0')
    a(f'v_add_u32 v2, {HIST}, v1')
    a('ds_read_b128 v[80:83], v2')
    a('s_waitcnt lgkmcnt(0)')
    a('v_add_u32 v84, v80, v81')
    a('v_add_u32 v85, v84, v82')
    a('v_add_u32 v86, v85, v83')
    a('v_mov_b32 v87, v86')
    for sh in (1, 2, 4, 8):
        a(f'v_add_u32_dpp v87, v87, v87 row_shr:{sh} row_mask:0xf bank_mask:0xf')
    a('v_add_u32_dpp v87, v87, v87 row_bcast:15 row_mask:0xa bank_mask:0xf')
    a('v_add_u32_dpp v87, v87, v87 row_bcast:31 row_mask:0xc bank_mask:0xf')
    a('v_sub_u32 v88, v87, v86')
    a('v_add_u32 v89, v88, v80')
    a('v_add_u32 v90, v88, v84')
    a('v_add_u32 v91, v88, v85')
    a('ds_write_b128 v2, v[88:91]')
    a('v_lshlrev_b32 v1, 12, v0')
    a('s_lshl_b32 s4, s2, 2')
    a(f's_add_u32 s4, s4, {SEG_OFF}')
    for i in range(4):
        a(f'v_lshl_or_b32 v{92+i}, v{80+i}, 16, v{88+i}')
        a(f'buffer_store_dword v{92+i}, v1, s[36:39], s4 offen offset:{1024*i}')
    a('s_waitcnt lgkmcnt(0)')
    a.label('K1_E_SCANDONE')
    a('s_barrier')
    st.mark()
    a('s_mov_b64 exec, s[42:43]')
    for e in range(8):
        a(f'ds_read_b32 v{BK(e)}, v{BK(e)}')
    for e in range(8):
        a(f's_waitcnt lgkmcnt({7-e})')
        a(f'v_add_lshl_u32 v{BK(e)}, v{BK(e)}, v{RK(e)}, 2')
        a(f'ds_write_b32 v{BK(e)}, v{REC(e)}')
    a('s_mov_b64 exec, s[40:41]')
    a('s_waitcnt lgkmcnt(0)')
    a('s_barrier')
    st.mark()
    a('v_lshlrev_b32 v1, 4, v0')
    a(f's_mul_i32 s4, s2, {CHE*4}')
    a(f's_add_u32 s4, s4, {REC_OFF}')
    a('ds_read_b128 v[80:83], v1')
    a('v_cmp_gt_u32 vcc, 288, v0')
    a('s_and_saveexec_b64 s[44:45], vcc')
    a('ds_read_b128 v[84:87], v1 offset:8192')
    a('s_mov_b64 exec, s[40:41]')
    a('s_waitcnt lgkmcnt(0)')
    a('buffer_store_dwordx4 v[80:83], v1, s[36:39], s4 offen')
    a('s_add_u32 s4, s4, 8192')
    a('s_mov_b64 exec, s[44:45]') if False else None
    a('v_cmp_gt_u32 vcc, 288, v0')
    a('s_and_saveexec_b64 s[44:45], vcc')
    a('buffer_store_dwordx4 v[84:87], v1, s[36:39], s4 offen')
    if STAMP:
        st.mark()
        a('s_waitcnt vmcnt(0)')
        st.mark(); st.mark(True)
        st.dump(110, 's99')
    a('s_endpgm')

    a.label('K1_NOTEDGE')
    a(f's_sub_u32 s2, s2, {NCH}')
    a(f's_cmp_ge_u32 s2, {NODE_WGS}')
    a('s_cbranch_scc1 K1_CONST')
    srd(a, 24, 4, N*512); srd(a, 28, 14, 64*64*2); srd(a, 32, 16, 64*192*2); srd(a, 36, 20, TAB_SZ)
    st = Stamper(a, 48, 20, 0)
    st.mark(True); st.mark()
    a('v_lshlrev_b32 v1, 4, v0')
    a('buffer_load_dwordx4 v[4:7], v1, s[28:31], 0 offen')
    a('v_lshrrev_b32 v2, 3, v0')
    a('v_mul_u32_u24 v2, 384, v2')
    a('v_and_b32 v3, 7, v0')
    a('v_lshl_add_u32 v2, v3, 4, v2')
    a('buffer_load_dwordx4 v[8:11], v2, s[32:35], 0 offen offset:128')
    a('s_barrier')
    a('v_and_b32 v12, 63, v0')
    a('v_lshrrev_b32 v13, 6, v0')
    a('v_and_b32 v14, 15, v12')
    a('v_lshrrev_b32 v15, 4, v12')
    a('s_lshl_b32 s3, s2, 7')
    a('v_lshl_add_u32 v16, v13, 4, v14')
    a('v_add_u32 v16, s3, v16')
    a('v_lshlrev_b32 v17, 9, v16')
    a('v_lshl_add_u32 v18, v15, 4, v17')
    a('buffer_load_dwordx4 v[20:23], v18, s[24:27], 0 offen')
    a('buffer_load_dwordx4 v[24:27], v18, s[24:27], 0 offen offset:64')
    VV = lambda k, t2: 28 + 4*(2*k+t2)
    for k in range(3):
        for t2 in range(2):
            a(f'buffer_load_dwordx4 v[{VV(k,t2)}:{VV(k,t2)+3}], v18, s[24:27], 0 offen offset:{128*(k+1)+64*t2}')
    a('s_waitcnt vmcnt(8)')
    a('ds_write_b128 v1, v[4:7]')
    a('ds_write_b128 v1, v[8:11] offset:8192')
    a('v_lshrrev_b32 v2, 2, v14')
    a('v_and_b32 v3, 3, v14')
    a('v_lshl_add_u32 v4, v15, 3, v2')
    a('v_lshlrev_b32 v4, 7, v4')
    a('v_lshl_add_u32 v4, v3, 4, v4')
    a('s_waitcnt lgkmcnt(0)')
    st.mark()
    a('s_barrier')
    st.mark()
    def rd_ops(base):
        for t in range(4):
            t2, b = t >> 1, t & 1
            for kp in range(2):
                r = 52 + 4*(2*t+kp)
                o = base + kp*4096 + 64*t2 + 8*b
                a(f'ds_read_b64_tr_b16 v[{r}:{r+1}], v4 offset:{o}')
                a(f'ds_read_b64_tr_b16 v[{r+2}:{r+3}], v4 offset:{o+512}')
    rd_ops(0)
    a('s_waitcnt vmcnt(6) lgkmcnt(0)')
    D1 = lambda t: 84 + 4*t
    for t in range(4):
        a(f'v_mfma_f32_16x16x32_bf16 v[{D1(t)}:{D1(t)+3}], v[{52+8*t}:{55+8*t}], v[20:23], 0')
    for t in range(4):
        a(f'v_mfma_f32_16x16x32_bf16 v[{D1(t)}:{D1(t)+3}], v[{56+8*t}:{59+8*t}], v[24:27], v[{D1(t)}:{D1(t)+3}]')
    rd_ops(8192)
    HP = lambda t: 100 + 2*t
    for t in range(4):
        for hq in range(2):
            x, y = D1(t)+2*hq, D1(t)+2*hq+1
            t7, t8 = (7, 8) if hq == 0 else (9, 10)
            a(f'v_cvt_pk_bf16_f32 v6, v{x}, v{y}')
            a(f'v_lshlrev_b32 v{x}, 16, v6')
            a(f'v_and_b32 v{y}, s22, v6')
            a(f'v_mul_f32 v{t7}, 0xbfb8aa3b, v{x}')
            a(f'v_mul_f32 v{t8}, 0xbfb8aa3b, v{y}')
            a(f'v_exp_f32 v{t7}, v{t7}')
            a(f'v_exp_f32 v{t8}, v{t8}')
            a(f'v_add_f32 v{t7}, 1.0, v{t7}')
            a(f'v_add_f32 v{t8}, 1.0, v{t8}')
            a(f'v_rcp_f32 v{t7}, v{t7}')
            a(f'v_rcp_f32 v{t8}, v{t8}')
            a(f'v_mul_f32 v{t7}, v{t7}, v{x}')
            a(f'v_mul_f32 v{t8}, v{t8}, v{y}')
            a(f'v_cvt_pk_bf16_f32 v{HP(t)+hq}, v{t7}, v{t8}')
    a('s_waitcnt lgkmcnt(0)')
    D2 = lambda t: 84 + 4*t
    for t in range(4):
        a(f'v_mfma_f32_16x16x32_bf16 v[{D2(t)}:{D2(t)+3}], v[{52+8*t}:{55+8*t}], v[100:103], 0')
    for t in range(4):
        a(f'v_mfma_f32_16x16x32_bf16 v[{D2(t)}:{D2(t)+3}], v[{56+8*t}:{59+8*t}], v[104:107], v[{D2(t)}:{D2(t)+3}]')
    a('s_waitcnt vmcnt(0)')
    a('v_lshlrev_b32 v18, 8, v16')
    a('v_lshl_add_u32 v18, v15, 5, v18')
    a(f's_mov_b32 s4, {TABB_OFF}')
    a(f'v_mov_b32 v19, {N}')
    a('v_cmp_lt_u32 vcc, v16, v19')
    a('s_and_saveexec_b64 s[44:45], vcc')
    for t in range(4):
        t2, b = t >> 1, t & 1
        for hq in range(2):
            x, y = D2(t)+2*hq, D2(t)+2*hq+1
            a(f'v_cvt_pk_bf16_f32 v6, v{x}, v{y}')
            a(f'v_lshlrev_b32 v{x}, 16, v6')
            a(f'v_and_b32 v{y}, s22, v6')
        o = 52 + 8*t
        dst = {0: o, 1: o+4, 2: o+6}
        for k in range(3):
            for hq in range(2):
                vr = VV(k,t2)+2*b+hq
                t7, t8 = (7, 8) if hq == 0 else (9, 10)
                a(f'v_lshlrev_b32 v{t7}, 16, v{vr}')
                a(f'v_and_b32 v{t8}, s22, v{vr}')
                a(f'v_mul_f32 v{t7}, v{t7}, v{D2(t)+2*hq}')
                a(f'v_mul_f32 v{t8}, v{t8}, v{D2(t)+2*hq+1}')
                a(f'v_cvt_pk_bf16_f32 v{dst[k]+hq}, v{t7}, v{t8}')
        a(f'v_mov_b32 v{o+2}, v{HP(t)}')
        a(f'v_mov_b32 v{o+3}, v{HP(t)+1}')
        a(f'buffer_store_dwordx4 v[{o}:{o+3}], v18, s[36:39], 0 offen offset:{128*t2+16*b}')
        a(f'buffer_store_dwordx4 v[{o+4}:{o+7}], v18, s[36:39], s4 offen offset:{128*t2+16*b}')
    if STAMP:
        st.mark()
        a('s_waitcnt vmcnt(0)')
        st.mark(); st.mark(True)
        st.dump(110, 's99')
    a('s_endpgm')

    a.label('K1_CONST')
    a(f's_cmp_eq_u32 s2, {NODE_WGS+1}')
    a('s_cbranch_scc1 K1_GT')
    srd(a, 28, 18, 16*192*2); srd(a, 32, 16, 64*192*2); srd_off(a, 36, 20, CIMG_OFF, 28672)
    a('v_and_b32 v1, 63, v0')
    a('v_and_b32 v2, 15, v1')
    a('v_lshrrev_b32 v3, 4, v1')
    a('v_bfe_u32 v4, v0, 6, 2')
    a('v_bfe_u32 v5, v0, 8, 1')
    a('v_lshlrev_b32 v6, 4, v3')
    a('v_lshl_add_u32 v6, v5, 1, v6')
    a('v_mul_u32_u24 v6, 384, v6')
    a('v_lshl_add_u32 v7, v2, 2, v4')
    a('v_lshl_add_u32 v6, v7, 1, v6')
    for part in range(2):
        for jj in range(8):
            off = (4*(jj & 3) + (jj >> 2))*384 + 256*part
            a(f'v_add_u32 v8, {off}, v6')
            a(f'buffer_load_ushort v{16+8*part+jj}, v8, s[32:35], 0 offen')
    a('v_lshlrev_b32 v9, 2, v3')
    a('v_mul_u32_u24 v9, 384, v9')
    a('v_lshl_add_u32 v9, v7, 1, v9')
    a('v_lshl_add_u32 v10, v5, 7, v9')
    for q in range(4):
        a(f'buffer_load_ushort v{32+q}, v10, s[28:31], 0 offen offset:{q*384}')
    for q in range(4):
        a(f'buffer_load_ushort v{36+q}, v9, s[28:31], 0 offen offset:{q*384+256}')
    a('s_waitcnt vmcnt(0)')
    a('v_lshlrev_b32 v11, 4, v0')
    for part in range(2):
        for h in range(4):
            a(f'v_lshl_or_b32 v{40+4*part+h}, v{16+8*part+2*h+1}, 16, v{16+8*part+2*h}')
        a(f'buffer_store_dwordx4 v[{40+4*part}:{43+4*part}], v11, s[36:39], 0 offen') if part == 0 else None
    a('v_add_u32 v12, 8192, v11')
    a('buffer_store_dwordx4 v[44:47], v12, s[36:39], 0 offen')
    for q in range(8):
        a(f'v_lshlrev_b32 v{32+q}, 16, v{32+q}')
    a('v_add_u32 v12, 16384, v11')
    a('buffer_store_dwordx4 v[32:35], v12, s[36:39], 0 offen')
    a('v_cmp_gt_u32 vcc, 256, v0')
    a('s_and_saveexec_b64 s[44:45], vcc')
    a('v_add_u32 v12, 24576, v11')
    a('buffer_store_dwordx4 v[36:39], v12, s[36:39], 0 offen')
    a('s_endpgm')
    a.label('K1_GT')
    srd_off(a, 36, 20, GT_OFF, GT_ROWS*32)
    a('s_load_dwordx8 s[24:31], s[12:13], 0')
    a('s_waitcnt lgkmcnt(0)')
    for it in range(2):
        a(f'v_add_u32 v1, {512*it}, v0')
        a(f'v_add_u32 v2, {GT_T0-1}, v1')
        a('v_lshlrev_b32 v2, 16, v2')
        def rnd1(x):
            a(f'v_cvt_pk_bf16_f32 v{x}, v{x}, v{x}')
            a(f'v_and_b32 v{x}, s22, v{x}')
        a('v_rcp_f32 v3, v2')
        a('v_mul_f32 v4, 0x40490fdb, v2'); rnd1(4)
        a('v_mul_f32 v4, 0x3e4ccccd, v4'); rnd1(4)
        a('v_mul_f32 v4, 0.15915494, v4')
        a('v_cos_f32 v4, v4'); rnd1(4)
        a('v_add_f32 v4, 1.0, v4'); rnd1(4)
        a('v_mul_f32 v3, 0.5, v3')
        a('v_mul_f32 v4, v4, v3')
        a('v_cmp_eq_u32 vcc, 0, v1')
        a('v_cndmask_b32 v4, v4, 0, vcc') if False else None
        a('v_mov_b32 v5, 0')
        a('v_cndmask_b32 v4, v4, v5, vcc')
        a('v_cndmask_b32 v2, v2, v5, vcc')
        for h in range(8):
            a(f's_lshl_b32 s4, s{24+h}, 16')
            a(f's_and_b32 s5, s{24+h}, s22')
            a('v_mul_f32 v6, s4, v2')
            a('v_mul_f32 v7, s5, v2')
            a('v_cvt_pk_bf16_f32 v8, v6, v7')
            a('v_lshlrev_b32 v6, 16, v8')
            a('v_and_b32 v7, s22, v8')
            a('v_mul_f32 v6, 0.15915494, v6')
            a('v_mul_f32 v7, 0.15915494, v7')
            a('v_sin_f32 v6, v6')
            a('v_sin_f32 v7, v7')
            a('v_mul_f32 v6, v6, v4')
            a('v_mul_f32 v7, v7, v4')
            a(f'v_cvt_pk_bf16_f32 v{16+h}, v6, v7')
        a('v_lshlrev_b32 v9, 5, v1')
        a('buffer_store_dwordx4 v[16:19], v9, s[36:39], 0 offen')
        a('buffer_store_dwordx4 v[20:23], v9, s[36:39], 0 offen offset:16')
        a('s_nop 2')
    a.label('K1_END')
    a('s_endpgm')

def kd(name, vgpr, sgpr):
    return f'''.amdhsa_kernel {name}
  .amdhsa_next_free_vgpr {vgpr}
  .amdhsa_next_free_sgpr {sgpr}
  .amdhsa_accum_offset {(vgpr+3)//4*4}
  .amdhsa_group_segment_fixed_size 0
  .amdhsa_kernarg_size 88
  .amdhsa_user_sgpr_count 2
  .amdhsa_user_sgpr_kernarg_segment_ptr 1
  .amdhsa_system_sgpr_workgroup_id_x 1
.end_amdhsa_kernel
'''

def main():
    import gen_k2
    a = Asm()
    gen_k1(a)
    k2 = gen_k2.gen_k2(a)
    hdr = open('cdna_kernels/%s.s.ref' % NAME).read().split('; Override')[0]
    hdr += f'; @launch kernel=k1_kernel grid=({K1_GRID},1,1) block=(512,1,1) lds={K1_LDS}\n'
    if k2:
        hdr += f'; @launch kernel=k2_kernel grid=({NB},1,1) block=({gen_k2.K2_THREADS},1,1) lds={gen_k2.K2_LDS}\n'
    hdr += '.amdgcn_target "amdgcn-amd-amdhsa--gfx950"\n.text\n'
    body = a.finish()
    tail = '.section .rodata,"a"\n.p2align 6\n' + kd('k1_kernel', 120, 102)
    if k2:
        tail += '.p2align 6\n' + kd('k2_kernel', gen_k2.K2_VGPRS, 102)
    out = sys.argv[1] if len(sys.argv) > 1 else 'cdna_kernels/%s.s' % NAME
    open(out, 'w').write(hdr + body + tail)
    print('wrote', out, 'nops inserted', a.nops_inserted)

if __name__ == '__main__':
    main()
```

```python
import os
import gen as G

N = 12500
NW = 12
K2_THREADS = NW*64
K2_VGPRS = 168
NSLOT = 49*128 + 32
S16 = 0
R16 = NSLOT*2
RX = 2*NSLOT*2
RSTR = NSLOT*4
W2IMG = RX + 3*RSTR
WRIMG = W2IMG + 16384
GT = WRIMG + 12288
CNT = GT + 26*1024
FLG = CNT + 256
MISC = FLG + 256
K2_LDS = MISC + 128
PADMARK = 0x7000
POS = RX
MREG = 0
DPOS = 20480
SEGW = 21
WCAP = 384
MSTR = WCAP*4

vT0, vLANE16, vKG16, vKGR, vGTC, vOUTOFF, vIMG, vLANE, SV0, SV1, vFREQ, vT1 = range(12)
DS = 12
GR = 16
L = 32
POOL = 64
ACCV = 88
ACCH = 104
PT0, PT1 = 136, 137
sTAB, sWS, sSV, sOUT = 12, 16, 20, 24
sMASK, sSELLO, sSELHI, s256 = 28, 29, 30, 31
sN0, sNN = 32, 33
sJC, sNSTC, sJN, sNSTN, sK, sBASE, sNBASE, sTNN, sLAST = 34, 35, 36, 37, 38, 39, 40, 41, 42
sWAVE, sF0, sW, sTOT, sNV, sFIRST, sRLAST = 43, 44, 45, 46, 47, 48, 49
sEX = 50
sT = 52
sMK = 56
sMORE, sSLOWN, sSLOW, sPH, sPHN, sNOFF, sPEND, sTC, sTN, sNN2 = 68, 69, 70, 71, 72, 73, 74, 75, 76, 77
sOVF = 78
sT2 = 80
sBK = 81
sCN = 82
sPOSP = 84

STAMP = os.environ.get('STAMP','0') == '1'
def mark(a, real=False):
    if not STAMP: return
    a(f"{'s_memrealtime' if real else 's_memtime'} s[100:101]")
    a('s_waitcnt lgkmcnt(0)')
    a('s_min_u32 s98, s98, 63')
    a('s_cmp_lt_u32 s98, 32')
    a('s_mov_b32 m0, s98')
    a('s_nop 1')
    a('v_writelane_b32 v10, s100, m0')
    a('s_add_u32 s98, s98, 1')
def dump(a):
    if not STAMP: return
    a('s_load_dwordx2 s[100:101], s[0:1], 80')
    a('s_waitcnt lgkmcnt(0)')
    a(f's_add_u32 s56, s100, {G.STAMP_OFF+0x100000}')
    a('s_addc_u32 s57, s101, 0')
    a('s_and_b32 s57, s57, 0xffff')
    a('s_mov_b32 s58, 0x100000')
    a('s_mov_b32 s59, 0x20000')
    a('s_mov_b64 exec, -1')
    a(f's_lshl_b32 s61, s{sWAVE}, 8')
    a(f'v_lshlrev_b32 v13, 2, v{vLANE}')
    a('v_add_u32 v13, s61, v13')
    a('s_lshl_b32 s60, s2, 12')
    a('buffer_store_dword v10, v13, s[56:59], s60 offen')
    a('s_waitcnt vmcnt(0)')

def Gr(w, p): return GR + 4*w + p
def accH(w, t): return ACCH + 16*w + 4*t
def rng(b, n=4): return f'v[{b}:{b+n-1}]'
def grp(base, i): return base + 4*i

def issue_loads(a, interleave=None):
    ADDR = POOL + 16
    for j in range(8):
        a(f'v_mad_u32_u16 v{ADDR+j}, v{DS+(j>>1)}, s{s256}, v{vLANE16} op_sel:[{j&1},0,0,0]')
        if interleave and j in interleave: a(interleave[j])
    for j in range(8):
        a(f'buffer_load_dwordx4 {rng(L+4*j)}, v{ADDR+j}, s[{sTAB}:{sTAB+3}], s{sNOFF} offen')

def step(a, ph, first):
    tag = ('A' if ph == 0 else 'B') + ('F' if first else 'R')
    RXr, RYr, RZr = POOL, POOL + 8, POOL + 16
    M1, M2 = (ACCV, ACCV+1) if ph == 0 else (ACCH, ACCH+1)
    if first:
        a(f'v_mov_b32 v{vT0}, {MISC}')
        a(f'v_mov_b32 v{vT1}, 1')
        a(f's_lshl_b32 s{sT}, s{sJN}, 2')
        a(f's_add_u32 s{sT}, s{sT}, {CNT}')
        a(f'v_mov_b32 v{DS+2}, s{sT}')
        a(f's_mov_b64 s[{sEX}:{sEX+1}], exec')
        a('s_mov_b64 exec, 1')
        a(f'ds_add_rtn_u32 v{M1}, v{vT0}, v{vT1}')
        a(f'ds_read_b32 v{M2}, v{DS+2}')
        a(f's_mov_b64 exec, s[{sEX}:{sEX+1}]')
    a(f's_add_u32 s{sT}, s{sK}, 1')
    a(f's_cmp_eq_u32 s{sT}, s{sNSTC}')
    a(f's_cselect_b32 s{sLAST}, 1, 0')
    a(f's_lshl_b32 s{sT+1}, s{sJN}, 7')
    a(f's_add_u32 s{sT+2}, s{sBASE}, 32')
    a(f's_cmp_eq_u32 s{sLAST}, 1')
    a(f's_cselect_b32 s{sNBASE}, s{sT+1}, s{sT+2}')
    a(f's_cselect_b32 s{sT}, s{sPHN}, s{sPH}')
    a(f's_mul_i32 s{sNOFF}, s{sT}, {G.TABB_OFF}')
    a(f's_lshl_b32 s{sT}, s{sBASE}, 1')
    a(f'v_add_u32 v{vT0}, s{sT}, v{vKGR}')
    if ph == 0:
        a(f's_lshl_b32 s{sT+1}, s{sBASE}, 2')
        a(f's_add_u32 s{sT+1}, s{sT+1}, {RX}')
        a(f'v_lshl_add_u32 v{vT1}, v{vKG16}, 1, s{sT+1}')
    a(f's_cmp_eq_u32 s{sSLOW}, 1')
    a(f's_cbranch_scc1 K2_SLOWG_{tag}')
    a(f'ds_read_u16 v{DS}, v{vT0}')
    a(f'ds_read_u16 v{DS+1}, v{vT0} offset:8')
    if ph == 0:
        for (R, off) in ((RXr, 0), (RYr, RSTR), (RZr, 2*RSTR)):
            a(f'ds_read_b128 {rng(R)}, v{vT1} offset:{off}')
            a(f'ds_read_b128 {rng(R+4)}, v{vT1} offset:{off+16}')
    a(f's_waitcnt lgkmcnt({6 if ph == 0 else 0})')
    a(f'v_mad_u32_u16 v{DS}, v{DS}, 32, v{vGTC}')
    a(f'v_mad_u32_u16 v{DS+1}, v{DS+1}, 32, v{vGTC}')
    a(f'ds_read_b64_tr_b16 v[{Gr(0,0)}:{Gr(0,1)}], v{DS}')
    a(f'ds_read_b64_tr_b16 v[{Gr(0,2)}:{Gr(0,3)}], v{DS+1}')
    if ph == 0: a('s_waitcnt lgkmcnt(0)')
    a(f's_branch K2_G1_{tag}')
    a.label(f'K2_SLOWG_{tag}')
    a(f's_lshl_b32 s{sT}, s{sBASE}, 1')
    a(f's_add_u32 s{sT}, s{sT}, {R16}')
    a(f'v_add_u32 v{vT0}, s{sT}, v{vKG16}')
    a(f'ds_read_b128 {rng(POOL)}, v{vT0}')
    a('s_waitcnt lgkmcnt(0)')
    for p in range(4):
        for h in range(2):
            d = POOL + 4 + h; t = POOL + 6 + h; iv = POOL + 8 + h; sn = POOL + 10 + h; u = POOL + 12
            def rnd1(x):
                a(f'v_cvt_pk_bf16_f32 v{x}, v{x}, v{x}')
                a(f'v_and_b32 v{x}, s{sMASK}, v{x}')
            if h == 0: a(f'v_and_b32 v{u}, 0xffff, v{POOL+p}')
            else: a(f'v_lshrrev_b32 v{u}, 16, v{POOL+p}')
            a(f'v_add_u32 v{d}, {G.GT_T0-1}, v{u}')
            a(f'v_and_b32 v{t}, 0x7fff, v{u}')
            a(f'v_cmp_lt_u32 vcc, 0x7fff, v{u}')
            a(f'v_cndmask_b32 v{d}, v{d}, v{t}, vcc')
            a(f'v_cmp_eq_u32 vcc, 0, v{u}')
            a(f'v_cndmask_b32 v{d}, v{d}, v{u}, vcc')
            a(f'v_lshlrev_b32 v{d}, 16, v{d}')
            a(f'v_rcp_f32 v{iv}, v{d}')
            a(f'v_mul_f32 v{t}, 0x40490fdb, v{d}'); rnd1(t)
            a(f'v_mul_f32 v{t}, 0x3e4ccccd, v{t}'); rnd1(t)
            a(f'v_mul_f32 v{t}, 0.15915494, v{t}')
            a(f'v_cos_f32 v{t}, v{t}'); rnd1(t)
            a(f'v_add_f32 v{t}, 1.0, v{t}'); rnd1(t)
            a(f'v_mul_f32 v{iv}, 0.5, v{iv}')
            a(f'v_mul_f32 v{t}, v{t}, v{iv}')
            a(f'v_cmp_lt_f32 vcc, 0, v{d}')
            a(f'v_mul_f32 v{sn}, v{d}, v{vFREQ}'); rnd1(sn)
            a(f'v_cndmask_b32 v{t}, 0, v{t}, vcc')
            a(f'v_mul_f32 v{sn}, 0.15915494, v{sn}')
            a(f'v_sin_f32 v{sn}, v{sn}')
            a(f'v_mul_f32 v{sn}, v{sn}, v{t}')
        a(f'v_cvt_pk_bf16_f32 v{Gr(0,p)}, v{POOL+10}, v{POOL+11}')
    if ph == 0:
        for (R, off) in ((RXr, 0), (RYr, RSTR), (RZr, 2*RSTR)):
            a(f'ds_read_b128 {rng(R)}, v{vT1} offset:{off}')
            a(f'ds_read_b128 {rng(R+4)}, v{vT1} offset:{off+16}')
        a('s_waitcnt lgkmcnt(0)')
    a.label(f'K2_G1_{tag}')
    if ph == 0:
        for p in range(4):
            g0, g1 = DS, DS+1
            a(f'v_lshlrev_b32 v{g0}, 16, v{Gr(0,p)}')
            a(f'v_and_b32 v{g1}, s{sMASK}, v{Gr(0,p)}')
            for k, R in enumerate((RXr, RYr, RZr)):
                t0, t1 = (DS+2, DS+3) if k % 2 == 0 else (vT0, vT1)
                a(f'v_mul_f32 v{t0}, v{g0}, v{R+2*p}')
                a(f'v_mul_f32 v{t1}, v{g1}, v{R+2*p+1}')
                a(f'v_cvt_pk_bf16_f32 v{Gr(1+k,p)}, v{t0}, v{t1}')
    a(f's_lshl_b32 s{sT}, s{sNBASE}, 1')
    a(f'v_add_u32 v{vT0}, s{sT}, v{vKG16}')
    a(f'ds_read_b128 {rng(DS)}, v{vT0}')
    if first:
        a(f'v_readfirstlane_b32 s{sTNN}, v{M1}')
        a(f'v_readfirstlane_b32 s{sCN}, v{M2}')
        a(f's_lshr_b32 s{sSLOWN}, s{sCN}, 16')
        a(f's_and_b32 s{sCN}, s{sCN}, 0xffff')
        a(f's_add_u32 s{sNSTN}, s{sCN}, 31')
        a(f's_lshr_b32 s{sNSTN}, s{sNSTN}, 5')
        a(f's_max_u32 s{sNSTN}, s{sNSTN}, 1')
        a(f's_min_u32 s{sSLOWN}, s{sSLOWN}, 1')
    TB = [POOL + 4*i for i in range(4)]
    a(f's_waitcnt vmcnt({4 if first else 0})')
    if ph == 0:
        order = [('h', t) for t in range(4)] + [('v', 0, t) for t in range(4)]
    else:
        order = [('v', 1, t) for t in range(4)] + [('v', 2, t) for t in range(4)]
    def tile_perm_list(o, dst):
        if o[0] == 'h': q = 2 + (o[1] >> 1); half = o[1] & 1
        else:
            t = o[2]; half = t & 1
            q = (t >> 1) if (o[1] in (0, 1)) else 2 + (t >> 1)
        sel = sSELHI if half else sSELLO
        return [f'v_perm_b32 v{dst+p}, v{L+4*(2*p+1)+q}, v{L+4*(2*p)+q}, s{sel}' for p in range(4)]
    def tile_mfma_list(o, src):
        out = []
        if o[0] == 'h':
            for w in range(4):
                acc = accH(w, o[1]); c = '0' if first else rng(acc)
                out.append(f'v_mfma_f32_16x16x32_bf16 {rng(acc)}, {rng(src)}, {rng(Gr(w,0))}, {c}')
        else:
            acc = {0: ACCV, 1: ACCH, 2: ACCH+16}[o[1]] + 4*o[2]; c = '0' if first else rng(acc)
            out.append(f'v_mfma_f32_16x16x32_bf16 {rng(acc)}, {rng(Gr(0,0))}, {rng(src)}, {c}')
        return out
    if ph == 1: a('s_waitcnt lgkmcnt(1)')
    for l in tile_perm_list(order[0], TB[0]): a(l)
    for i in range(1, 8):
        pl = tile_perm_list(order[i], TB[i % 4])
        ml = tile_mfma_list(order[i-1], TB[(i-1) % 4])
        if len(ml) == 4:
            a(pl[0]); a(pl[1]); a(ml[0]); a(pl[2]); a(ml[1]); a(pl[3]); a(ml[2]); a(ml[3])
        else:
            for l in pl: a(l)
            a(ml[0])
    ml = tile_mfma_list(order[7], TB[7 % 4])
    a('s_waitcnt lgkmcnt(0)')
    issue_loads(a, {1: ml[0]})
    a(f's_mov_b32 s{sBASE}, s{sNBASE}')

def flush_pending(a, tag, nyoung):
    a(f's_cmp_lt_i32 s{sPEND}, 0')
    a(f's_cbranch_scc1 K2_NOPEND_{tag}')
    a(f's_waitcnt vmcnt({nyoung})')
    a(f's_lshl_b32 s{sT}, s{sPEND}, 2')
    a(f's_add_u32 s{sT}, s{sT}, {FLG}')
    a(f'v_mov_b32 v{vT0}, s{sT}')
    a(f'v_mov_b32 v{vT1}, 1')
    a(f'ds_write_b32 v{vT0}, v{vT1}')
    a(f's_mov_b32 s{sPEND}, -1')
    a.label(f'K2_NOPEND_{tag}')

def reduce4(a, o):
    a(f'v_permlane32_swap_b32 v{o}, v{o+2}')
    a(f'v_permlane32_swap_b32 v{o+1}, v{o+3}')

def finalize(a, R, row0, tag, tmp):
    a(f's_add_u32 s{sT}, s{sN0}, s{sJC}')
    a(f's_and_b32 s{sT+1}, s{sFIRST}, s{sRLAST}')
    a(f's_cmp_eq_u32 s{sT+1}, 1')
    a(f's_cbranch_scc1 K2_FIN_{tag}')
    a(f's_lshl_b32 s{sT+1}, s{sT}, 10')
    a(f's_add_u32 s{sT+1}, s{sT+1}, {G.PART2_OFF + 256*row0}')
    a(f'v_lshlrev_b32 v{vT0}, 2, v{vLANE}')
    a(f's_cmp_eq_u32 s{sFIRST}, 1')
    a(f's_cbranch_scc1 K2_NOLD_{tag}')
    for i in range(2):
        a(f'buffer_load_dword v{tmp+i}, v{vT0}, s[{sWS}:{sWS+3}], s{sT+1} offen offset:{256*i}')
    a('s_waitcnt vmcnt(0)')
    for i in range(2):
        a(f'v_add_f32 v{R[i]}, v{R[i]}, v{tmp+i}')
    a.label(f'K2_NOLD_{tag}')
    a(f's_cmp_eq_u32 s{sRLAST}, 1')
    a(f's_cbranch_scc1 K2_FIN_{tag}')
    for i in range(2):
        a(f'buffer_store_dword v{R[i]}, v{vT0}, s[{sWS}:{sWS+3}], s{sT+1} offen offset:{256*i}')
    a('s_waitcnt vmcnt(0)')
    a(f's_branch K2_FDONE_{tag}')
    a.label(f'K2_FIN_{tag}')
    p = tmp; x0, x1 = tmp+1, tmp+2
    a(f'v_cvt_pk_bf16_f32 v{p}, v{R[0]}, v{R[1]}')
    a(f'v_lshlrev_b32 v{x0}, 16, v{p}')
    a(f'v_and_b32 v{x1}, s{sMASK}, v{p}')
    a(f'v_add_f32 v{x0}, v{x0}, v{SV0}')
    a(f'v_add_f32 v{x1}, v{x1}, v{SV1}')
    a(f'v_cvt_pk_bf16_f32 v{p}, v{x0}, v{x1}')
    a(f's_lshl_b32 s{sT+1}, s{sT}, 9')
    a(f'buffer_store_short v{p}, v{vOUTOFF}, s[{sOUT}:{sOUT+3}], s{sT+1} offen offset:{128*row0}')
    a(f'buffer_store_short_d16_hi v{p}, v{vOUTOFF}, s[{sOUT}:{sOUT+3}], s{sT+1} offen offset:{128*row0+128}')
    a.label(f'K2_FDONE_{tag}')

def epilogueA(a):
    F = [accH(w, t) for w in range(4) for t in (1, 3)]
    WRB = F[0:4]
    O = F[4:8]
    W2 = [grp(POOL, i) for i in range(6)] + [grp(GR, 0), grp(GR, 1)]
    def rd_w2(part):
        for kp in range(2):
            for tau in range(4):
                a(f'ds_read_b128 {rng(W2[kp*4+tau])}, v{vIMG} offset:{part*8192+kp*4096+tau*1024}')
    def rd_wr(p):
        for tau in range(4):
            a(f'ds_read_b128 {rng(WRB[tau])}, v{vIMG} offset:{16384+p*4096+tau*1024}')
    def mf(d, A, B, c):
        a(f'v_mfma_f32_16x16x32_bf16 {rng(d)}, {rng(A)}, {rng(B)}, {c}')
    rd_w2(0)
    a('s_waitcnt vmcnt(8)')
    flush_pending(a, 'EA', 8)
    for w in range(4):
        for kp in range(2):
            e, o = accH(w, 2*kp), accH(w, 2*kp+1)
            a(f'v_cvt_pk_bf16_f32 v{e}, v{e}, v{e+1}')
            a(f'v_cvt_pk_bf16_f32 v{e+1}, v{e+2}, v{e+3}')
            a(f'v_cvt_pk_bf16_f32 v{e+2}, v{o}, v{o+1}')
            a(f'v_cvt_pk_bf16_f32 v{e+3}, v{o+2}, v{o+3}')
    rd_wr(0)
    a('s_waitcnt lgkmcnt(4)')
    TS = [grp(GR, 2), grp(GR, 3), O[2], O[3]]
    for tau in range(4): mf(TS[tau], accH(0,0), W2[tau], '0')
    for tau in range(4): mf(TS[tau], accH(0,2), W2[4+tau], rng(TS[tau]))
    rd_w2(1)
    a('s_waitcnt lgkmcnt(8)')
    for tau in range(4):
        a(f'v_mul_f32 v{O[0]+tau}, v{WRB[tau]}, v{TS[tau]}')
    for q in range(1, 4):
        for tau in range(4):
            a(f'v_fmac_f32 v{O[0]+tau}, v{WRB[tau]+q}, v{TS[tau]+q}')
    rd_wr(1)
    a('s_waitcnt lgkmcnt(0)')
    for tau in range(4):
        a(f'v_mul_f32 v{O[1]+tau}, v{WRB[tau]}, v{ACCV+4*tau}')
    for q in range(1, 4):
        for tau in range(4):
            a(f'v_fmac_f32 v{O[1]+tau}, v{WRB[tau]+q}, v{ACCV+4*tau+q}')
    rd_wr(2)
    items = [(w, tp) for w in (1, 2, 3) for tp in (0, 1)]
    def mf_item(i):
        w, tp = items[i]
        for h in range(2):
            tau = 2*tp + h
            mf(ACCV + 8*(i % 2) + 4*h, accH(w,0), W2[tau], '0')
        for h in range(2):
            tau = 2*tp + h
            d = ACCV + 8*(i % 2) + 4*h
            mf(d, accH(w,2), W2[4+tau], rng(d))
    def fm_item(i):
        w, tp = items[i]
        for q in range(4):
            for h in range(2):
                tau = 2*tp + h
                T = ACCV + 8*(i % 2) + 4*h
                if q == 0 and w != 1:
                    a(f'v_mul_f32 v{O[w]+tau}, v{WRB[tau]}, v{T}')
                else:
                    a(f'v_fmac_f32 v{O[w]+tau}, v{WRB[tau]+q}, v{T+q}')
    mf_item(0)
    mf_item(1)
    a('s_waitcnt lgkmcnt(0)')
    for i in range(len(items)):
        fm_item(i)
        if i + 2 < len(items): mf_item(i + 2)
    for w in range(4): reduce4(a, O[w])
    for w in range(4):
        a(f'v_add_f32 v{O[w]}, v{O[w]}, v{O[w]+2}')
        a(f'v_add_f32 v{O[w]+1}, v{O[w]+1}, v{O[w]+3}')
    for w in range(4):
        a(f'v_permlane16_swap_b32 v{O[w]}, v{O[w]+1}')
    for w in range(4):
        a(f'v_add_f32 v{O[w]}, v{O[w]}, v{O[w]+1}')
    a(f's_add_u32 s{sT}, s{sN0}, s{sJC}')
    a(f's_lshl_b32 s{sT+1}, s{sT}, 9')
    a(f's_add_u32 s{sT+1}, s{sT+1}, {G.PART_OFF}')
    a(f'v_lshlrev_b32 v{vT0}, 2, v{vLANE}')
    a(f'buffer_store_dword v{O[2]}, v{vT0}, s[{sWS}:{sWS+3}], s{sT+1} offen')
    a(f'buffer_store_dword v{O[3]}, v{vT0}, s[{sWS}:{sWS+3}], s{sT+1} offen offset:256')
    a(f's_mov_b32 s{sPEND}, s{sJC}')
    finalize(a, [O[0], O[1]], 0, 'A', GR)

def epilogueB(a):
    WRB = [grp(POOL, i) for i in range(4)]
    O = [grp(POOL, 4), grp(POOL, 5)]
    for tau in range(4):
        a(f'ds_read_b128 {rng(WRB[tau])}, v{vIMG} offset:{16384+4096+tau*1024}')
    a('s_waitcnt vmcnt(8)')
    flush_pending(a, 'EB', 8)
    a('s_waitcnt lgkmcnt(0)')
    for k in range(2):
        acc = ACCH + 16*k
        for tau in range(4):
            a(f'v_mul_f32 v{O[k]+tau}, v{WRB[tau]}, v{acc+4*tau}')
        for q in range(1, 4):
            for tau in range(4):
                a(f'v_fmac_f32 v{O[k]+tau}, v{WRB[tau]+q}, v{acc+4*tau+q}')
    for k in range(2): reduce4(a, O[k])
    for k in range(2):
        a(f'v_add_f32 v{O[k]}, v{O[k]}, v{O[k]+2}')
        a(f'v_add_f32 v{O[k]+1}, v{O[k]+1}, v{O[k]+3}')
    for k in range(2):
        a(f'v_permlane16_swap_b32 v{O[k]}, v{O[k]+1}')
    for k in range(2):
        a(f'v_add_f32 v{O[k]}, v{O[k]}, v{O[k]+1}')
    a(f'v_add_f32 v{O[0]}, v{O[0]}, v{PT0}')
    a(f'v_add_f32 v{O[1]}, v{O[1]}, v{PT1}')
    finalize(a, [O[0], O[1]], 2, 'B', GR)

def sv_loads(a, sj, sph):
    a(f's_add_u32 s{sT}, s{sN0}, s{sj}')
    a(f's_lshl_b32 s{sT}, s{sT}, 9')
    a(f's_lshl_b32 s{sT+1}, s{sph}, 8')
    a(f's_add_u32 s{sT}, s{sT}, s{sT+1}')
    a(f'buffer_load_short_d16_hi v{SV0}, v{vOUTOFF}, s[{sSV}:{sSV+3}], s{sT} offen')
    a(f'buffer_load_short_d16_hi v{SV1}, v{vOUTOFF}, s[{sSV}:{sSV+3}], s{sT} offen offset:128')

def decode_task(a, stask, sj, sph):
    a(f's_cmp_ge_u32 s{stask}, s{sNN}')
    a(f's_cselect_b32 s{sph}, 1, 0')
    a(f's_cselect_b32 s{sT}, s{sNN}, 0')
    a(f's_sub_u32 s{sj}, s{stask}, s{sT}')
    a(f's_cmp_ge_u32 s{stask}, s{sNN2}')
    a(f's_cselect_b32 s{sj}, 49, s{sj}')

def rotate(a):
    sv_loads(a, sJN, sPHN)
    a(f's_mov_b32 s{sTC}, s{sTN}')
    a(f's_mov_b32 s{sJC}, s{sJN}')
    a(f's_mov_b32 s{sPH}, s{sPHN}')
    a(f's_mov_b32 s{sNSTC}, s{sNSTN}')
    a(f's_mov_b32 s{sSLOW}, s{sSLOWN}')
    a(f's_mov_b32 s{sTN}, s{sTNN}')
    decode_task(a, sTN, sJN, sPHN)
    a('s_branch K2_TASK')

def gen_k2(a):
    a.raw('.globl k2_kernel\n.p2align 8\n.type k2_kernel,@function')
    a.label('k2_kernel')
    a('s_load_dwordx4 s[4:7], s[0:1], 0')
    a('s_load_dwordx2 s[96:97], s[0:1], 32')
    a('s_load_dwordx2 s[8:9], s[0:1], 64')
    a('s_load_dwordx2 s[10:11], s[0:1], 80')
    a(f's_cmp_ge_u32 s2, {G.NB}')
    a('s_cbranch_scc1 K2_END')
    a(f's_mov_b32 s{sMASK}, 0xffff0000')
    a(f's_mov_b32 s{sSELLO}, 0x05040100')
    a(f's_mov_b32 s{sSELHI}, 0x07060302')
    a(f's_mov_b32 s{s256}, 256')
    a(f's_and_b32 s{sBK}, s2, 7')
    a(f's_lshl_b32 s{sBK}, s{sBK}, 5')
    a(f's_lshr_b32 s{sT}, s2, 3')
    a(f's_or_b32 s{sBK}, s{sBK}, s{sT}')
    a(f's_mul_i32 s{sN0}, s{sBK}, 12500')
    a(f's_add_u32 s{sNN}, s{sN0}, {12500+255}')
    a(f's_add_u32 s{sN0}, s{sN0}, 255')
    a(f's_lshr_b32 s{sN0}, s{sN0}, 8')
    a(f's_lshr_b32 s{sNN}, s{sNN}, 8')
    a(f's_sub_u32 s{sNN}, s{sNN}, s{sN0}')
    a(f's_lshl_b32 s{sNN2}, s{sNN}, 1')
    a('v_mov_b32 v160, v0')
    a(f'v_and_b32 v{vLANE}, 63, v0')
    a('v_lshrrev_b32 v16, 6, v0')
    a(f'v_readfirstlane_b32 s{sWAVE}, v16')
    a(f'v_and_b32 v17, 15, v{vLANE}')
    a(f'v_lshrrev_b32 v18, 4, v{vLANE}')
    a(f'v_lshlrev_b32 v{vLANE16}, 4, v17')
    a(f'v_lshlrev_b32 v{vKG16}, 4, v18')
    a(f'v_lshrrev_b32 v{vKGR}, 2, v17')
    a(f'v_lshl_add_u32 v{vKGR}, v18, 3, v{vKGR}')
    a(f'v_lshlrev_b32 v{vKGR}, 1, v{vKGR}')
    a(f'v_add_u32 v{vKGR}, {R16}, v{vKGR}')
    a(f'v_and_b32 v{vGTC}, 3, v{vLANE}')
    a(f'v_lshlrev_b32 v{vGTC}, 3, v{vGTC}')
    a(f'v_add_u32 v{vGTC}, {GT}, v{vGTC}')
    a(f'v_lshl_add_u32 v{vOUTOFF}, v17, 2, v18')
    a(f'v_lshlrev_b32 v{vOUTOFF}, 1, v{vOUTOFF}')
    a(f'v_lshlrev_b32 v{vIMG}, 4, v{vLANE}')
    a(f'v_add_u32 v{vIMG}, {W2IMG}, v{vIMG}')
    a(f'v_mov_b32 v{vFREQ}, 0')
    a('v_lshlrev_b32 v17, 1, v17')
    a('s_waitcnt lgkmcnt(0)')
    G.srd(a, sWS, 10, G.WS_USED)
    if STAMP:
        a('s_mov_b32 s98, 0')
        a('s_waitcnt vmcnt(0)')
        a('v_mov_b32 v10, -1')
    mark(a, True); mark(a)
    G.srd(a, sTAB, 10, G.TAB_SZ); G.srd(a, sSV, 4, N*512); G.srd(a, sOUT, 8, N*512); G.srd(a, sPOSP, 6, N*6)
    if not STAMP: a(f'global_load_short_d16_hi v{vFREQ}, v17, s[96:97]')
    a(f's_mov_b32 s{sF0}, 0')
    a(f's_mov_b32 s{sW}, {WCAP}')
    a(f's_mov_b32 s{sFIRST}, 1')
    a('s_branch K2_ROUND_IN')
    a.label('K2_ROUND')
    a('s_barrier')
    a.label('K2_ROUND_IN')
    a(f's_lshl_b32 s{sT}, s{sWAVE}, 6')
    a(f'v_add_u32 v160, s{sT}, v{vLANE}')
    SEGC, SEGB, PFX = 20, 21, 22
    a(f's_mul_i32 s{sT}, s{sWAVE}, {SEGW}')
    a(f'v_add_u32 v17, s{sT}, v{vLANE}')
    a(f'v_cmp_gt_u32 vcc, {SEGW}, v{vLANE}')
    a(f'v_mov_b32 v{SEGC}, 0')
    a(f'v_mov_b32 v18, {G.NCH}')
    a(f'v_cmp_lt_u32 s[{sT}:{sT+1}], v17, v18')
    a(f's_and_b64 vcc, vcc, s[{sT}:{sT+1}]')
    a('v_lshlrev_b32 v18, 2, v17')
    a(f's_lshl_b32 s{sT}, s{sBK}, 10')
    a(f's_add_u32 s{sT}, s{sT}, {G.SEG_OFF}')
    a(f's_and_saveexec_b64 s[{sEX}:{sEX+1}], vcc')
    a(f'buffer_load_dword v{SEGC}, v18, s[{sWS}:{sWS+3}], s{sT} offen')
    a(f's_mov_b64 exec, s[{sEX}:{sEX+1}]')
    a(f'v_lshlrev_b32 v34, 4, v{vLANE}')
    a(f's_mul_i32 s{sT2}, s2, 7')
    a(f's_add_u32 s{sT2}, s{sT2}, s{sWAVE}')
    for i in range(7):
        a(f's_add_u32 s{sT}, s{sT2}, {NW*i}')
        a(f's_mul_hi_u32 s{sT+1}, s{sT}, {(1<<32)//84+1}')
        a(f's_mul_i32 s{sT+1}, s{sT+1}, 84')
        a(f's_sub_u32 s{sT}, s{sT}, s{sT+1}')
        a(f's_min_u32 s{sT}, s{sT}, 72')
        a(f's_lshl_b32 s{sT+1}, s{sT}, 10')
        a(f's_add_u32 s{sT+2}, s{sT+1}, {POS}')
        a(f's_mov_b32 m0, s{sT+2}')
        a('s_nop 0')
        a(f'buffer_load_dwordx4 v34, s[{sPOSP}:{sPOSP+3}], s{sT+1} offen lds')
    a(f's_cmp_lg_u32 s{sWAVE}, 0')
    a('s_cbranch_scc1 K2_POSDONE')
    a(f's_mov_b64 s[{sEX}:{sEX+1}], exec')
    a('s_mov_b64 exec, 0xffff')
    a(f's_mov_b32 s{sT+1}, {73*1024}')
    a(f's_mov_b32 m0, {POS+73*1024}')
    a('s_nop 0')
    a(f'buffer_load_dwordx4 v34, s[{sPOSP}:{sPOSP+3}], s{sT+1} offen lds')
    a(f's_mov_b64 exec, s[{sEX}:{sEX+1}]')
    a.label('K2_POSDONE')
    a('v_mov_b32 v100, 0\nv_mov_b32 v101, 0\nv_mov_b32 v102, 0\nv_mov_b32 v103, 0')
    a(f'v_add_u32 v19, s{sN0}, v160')
    a('v_mul_u32_u24 v19, 6, v19')
    for c in range(3):
        a(f'buffer_load_short_d16_hi v{100+c}, v19, s[{sPOSP}:{sPOSP+3}], 0 offen offset:{2*c}')
    a('v_lshlrev_b32 v18, 4, v160')
    a('v_mov_b32 v24, 0\nv_mov_b32 v25, 0\nv_mov_b32 v26, 0\nv_mov_b32 v27, 0')
    a(f'v_add_u32 v19, {CNT}, v18')
    a('v_cmp_gt_u32 vcc, 40, v160')
    a(f's_and_saveexec_b64 s[{sEX}:{sEX+1}], vcc')
    a('ds_write_b128 v19, v[24:27]')
    a(f's_mov_b64 exec, s[{sEX}:{sEX+1}]')
    a(f'v_mul_u32_u24 v{SEGB}, {G.CHE}, v17')
    a('s_waitcnt vmcnt(10)')
    mark(a)
    a(f'v_and_b32 v18, 0xffff, v{SEGC}')
    a(f'v_add_u32 v{SEGB}, v{SEGB}, v18')
    a(f'v_lshrrev_b32 v{SEGC}, 16, v{SEGC}')
    a(f'v_mov_b32 v{PFX}, v{SEGC}')
    for sh in (1, 2, 4, 8):
        a(f'v_add_u32_dpp v{PFX}, v{PFX}, v{PFX} row_shr:{sh} row_mask:0xf bank_mask:0xf')
    a(f'v_add_u32_dpp v{PFX}, v{PFX}, v{PFX} row_bcast:15 row_mask:0xa bank_mask:0xf')
    a(f'v_readlane_b32 s{sTOT}, v{PFX}, 31')
    a(f'v_sub_u32 v{PFX}, v{PFX}, v{SEGC}')
    a(f's_mul_i32 s{sT+2}, s{sWAVE}, {MSTR}')
    a(f's_add_u32 s{sT+2}, s{sT+2}, {MREG}')
    a(f'v_subrev_u32 v30, s{sF0}, v{PFX}')
    a('v_sub_u32 v31, 0, v30')
    a('v_max_i32 v31, 0, v31')
    a(f'v_sub_u32 v32, s{sW}, v30')
    a(f'v_min_i32 v32, v32, v{SEGC}')
    a('v_add_u32 v33, v30, v31')
    a('v_lshlrev_b32 v33, 2, v33')
    a(f'v_add_u32 v33, s{sT+2}, v33')
    a(f'v_add_u32 v28, v{SEGB}, v31')
    a('v_lshlrev_b32 v28, 2, v28')
    a('v_sub_u32 v32, v32, v31')
    a.label('K2_MK')
    a('v_cmp_lt_i32 vcc, 0, v32')
    a('s_cbranch_vccz K2_MK_DONE')
    a(f's_and_saveexec_b64 s[{sEX}:{sEX+1}], vcc')
    a('ds_write_b32 v33, v28')
    a('v_add_u32 v29, 4, v28')
    a('v_cmp_lt_i32 vcc, 1, v32')
    a('s_and_b64 exec, exec, vcc')
    a('ds_write_b32 v33, v29 offset:4')
    a(f's_mov_b64 exec, s[{sEX}:{sEX+1}]')
    a('v_add_u32 v33, 8, v33')
    a('v_add_u32 v28, 8, v28')
    a('v_subrev_u32 v32, 2, v32')
    a('s_branch K2_MK')
    a.label('K2_MK_DONE')
    a(f's_sub_i32 s{sT}, s{sTOT}, s{sF0}')
    a(f's_max_i32 s{sT}, s{sT}, 0')
    a(f's_min_i32 s{sNV}, s{sT}, s{sW}')
    a(f's_cmp_gt_i32 s{sT}, s{sW}')
    a(f's_cselect_b32 s{sMORE}, 1, 0')
    U = WCAP // 64
    a(f'v_lshlrev_b32 v30, 2, v{vLANE}')
    a(f'v_add_u32 v30, s{sT+2}, v30')
    RIDX = lambda u: 40 + u
    for u in range(U):
        a(f'ds_read_b32 v{RIDX(u)}, v30 offset:{256*u}')
    for u in range(U):
        a(f's_sub_i32 s{sT}, s{sNV}, {64*u}')
        a(f'v_cmp_gt_i32 s[{sMK+2*u}:{sMK+2*u+1}], s{sT}, v{vLANE}')
    a(f's_mov_b32 s{sT2}, {G.REC_OFF}')
    RR = lambda u: 48 + u
    a(f's_mov_b64 s[{sEX}:{sEX+1}], exec')
    for u in range(U):
        a(f's_waitcnt lgkmcnt({U-1-u})')
        a(f's_mov_b64 exec, s[{sMK+2*u}:{sMK+2*u+1}]')
        a(f'buffer_load_dword v{RR(u)}, v{RIDX(u)}, s[{sWS}:{sWS+3}], s{sT2} offen')
    a(f's_mov_b64 exec, s[{sEX}:{sEX+1}]')
    a(f's_cmp_eq_u32 s{sFIRST}, 1')
    a('s_cbranch_scc0 K2_NODMA')
    a(f'v_lshlrev_b32 v34, 4, v{vLANE}')
    a(f's_mul_i32 s{sT2}, s2, 7')
    a(f's_add_u32 s{sT2}, s{sT2}, s{sWAVE}')
    for i in range(5):
        a(f's_add_u32 s{sT}, s{sT2}, {NW*i}')
        a(f's_mul_hi_u32 s{sT+1}, s{sT}, {(1<<32)//60+1}')
        a(f's_mul_i32 s{sT+1}, s{sT+1}, 60')
        a(f's_sub_u32 s{sT}, s{sT}, s{sT+1}')
        a(f's_min_u32 s{sT}, s{sT}, 53')
        a(f's_lshl_b32 s{sT+1}, s{sT}, 10')
        a(f's_add_u32 s{sT+2}, s{sT+1}, {W2IMG}')
        a(f's_mov_b32 m0, s{sT+2}')
        a(f's_cmp_ge_u32 s{sT}, 28')
        a(f's_mov_b32 s{sT+2}, {G.CIMG_OFF}')
        a(f's_cselect_b32 s{sT+2}, {G.GT_OFF - 28*1024}, s{sT+2}')
        a(f's_add_u32 s{sT+1}, s{sT+1}, s{sT+2}')
        a(f'buffer_load_dwordx4 v34, s[{sWS}:{sWS+3}], s{sT+1} offen lds')
    a.label('K2_NODMA')
    a(f's_waitcnt vmcnt({U})') if False else None
    a('s_waitcnt lgkmcnt(0)')
    mark(a)
    a(f's_cmp_eq_u32 s{sFIRST}, 1')
    a('s_cbranch_scc1 K2_WREC1')
    a('s_waitcnt vmcnt(0)')
    a.label('K2_WREC1')
    a('s_waitcnt vmcnt(5)')
    a('v_cmp_gt_u32 vcc, 50, v160')
    a(f's_and_saveexec_b64 s[{sEX}:{sEX+1}], vcc')
    a('v_lshlrev_b32 v19, 4, v160')
    a(f'v_add_u32 v19, {DPOS}, v19')
    a('ds_write_b128 v19, v[100:103]')
    a(f's_mov_b64 exec, s[{sEX}:{sEX+1}]')
    a('s_waitcnt lgkmcnt(0)')
    a('s_barrier')
    mark(a)
    DL = lambda u: 56 + u
    RK = lambda u: 62 + u
    PS = lambda u: 68 + 2*u
    DP = lambda u: 80 + 4*u
    SH = lambda u: 104 + u
    ROW = lambda u: 110 + u
    RXo = lambda u, c: 116 + 3*u + c
    a('v_mov_b32 v28, 1')
    a('v_mov_b32 v29, 0x10000')
    for u in range(U):
        a(f's_mov_b64 exec, s[{sMK+2*u}:{sMK+2*u+1}]')
        a(f'v_lshrrev_b32 v{DL(u)}, 16, v{RR(u)}')
        a(f'v_and_b32 v{RR(u)}, 0xffff, v{RR(u)}')
        a(f'v_subrev_u32 v{DL(u)}, s{sN0}, v{DL(u)}')
        a(f'v_mul_u32_u24 v34, 6, v{RR(u)}')
        a('v_and_b32 v34, -4, v34')
        a(f'v_add_u32 v34, {POS}, v34')
        a(f'ds_read2_b32 v[{PS(u)}:{PS(u)+1}], v34 offset0:0 offset1:1')
        a(f'v_lshlrev_b32 v35, 4, v{DL(u)}')
        a(f'v_add_u32 v35, {DPOS}, v35')
        a(f'ds_read_b128 {rng(DP(u))}, v35')
        a(f'v_lshlrev_b32 v36, 2, v{DL(u)}')
        a(f'v_add_u32 v36, {CNT}, v36')
        a(f'ds_add_rtn_u32 v{RK(u)}, v36, v28')
        a(f'v_lshlrev_b32 v{SH(u)}, 4, v{RR(u)}')
        a(f'v_and_b32 v{SH(u)}, 16, v{SH(u)}')
    a(f's_mov_b64 exec, s[{sEX}:{sEX+1}]')
    for pr in range(U // 2):
        ua, ub = 2*pr, 2*pr+1
        a(f's_cmp_eq_u64 s[{sMK+2*ua}:{sMK+2*ua+1}], 0')
        a('s_cbranch_scc1 K2_GEO_DONE')
        a(f's_waitcnt lgkmcnt({min(15, 3*(U-2*pr-2))})')
        T = list(range(134, 150))
        p = T[0]
        def rnd2(x, y):
            a(f'v_cvt_pk_bf16_f32 v{p}, v{x}, v{y}')
            a(f'v_lshlrev_b32 v{x}, 16, v{p}')
            a(f'v_and_b32 v{y}, s{sMASK}, v{p}')
        rA = [RXo(ua,c) for c in range(3)]; rB = [RXo(ub,c) for c in range(3)]
        for (u, r) in ((ua, rA), (ub, rB)):
            a(f'v_alignbit_b32 v{r[1]}, v{PS(u)+1}, v{PS(u)}, v{SH(u)}')
            a(f'v_lshrrev_b32 v{r[2]}, v{SH(u)}, v{PS(u)+1}')
            a(f'v_lshlrev_b32 v{r[0]}, 16, v{r[1]}')
            a(f'v_and_b32 v{r[1]}, s{sMASK}, v{r[1]}')
            a(f'v_lshlrev_b32 v{r[2]}, 16, v{r[2]}')
        for c in range(3):
            a(f'v_sub_f32 v{rA[c]}, v{rA[c]}, v{DP(ua)+c}')
            a(f'v_sub_f32 v{rB[c]}, v{rB[c]}, v{DP(ub)+c}')
        for c in range(3): rnd2(rA[c], rB[c])
        qA = [T[1], T[2], T[3]]; qB = [T[4], T[5], T[6]]
        for c in range(3):
            a(f'v_mul_f32 v{qA[c]}, v{rA[c]}, v{rA[c]}')
            a(f'v_mul_f32 v{qB[c]}, v{rB[c]}, v{rB[c]}')
        for c in range(3): rnd2(qA[c], qB[c])
        da, db = qA[0], qB[0]
        a(f'v_add_f32 v{da}, v{da}, v{qA[1]}')
        a(f'v_add_f32 v{db}, v{db}, v{qB[1]}')
        a(f'v_add_f32 v{da}, v{da}, v{qA[2]}')
        a(f'v_add_f32 v{db}, v{db}, v{qB[2]}')
        rnd2(da, db)
        a(f'v_add_f32 v{da}, 0x322bcc77, v{da}')
        a(f'v_add_f32 v{db}, 0x322bcc77, v{db}')
        rnd2(da, db)
        a(f'v_sqrt_f32 v{da}, v{da}')
        a(f'v_sqrt_f32 v{db}, v{db}')
        rnd2(da, db)
        ivA, ivB = qA[1], qB[1]
        a(f'v_rcp_f32 v{ivA}, v{da}')
        a(f'v_rcp_f32 v{ivB}, v{db}')
        a(f'v_lshrrev_b32 v{qA[2]}, 16, v{da}')
        a(f'v_lshrrev_b32 v{qB[2]}, 16, v{db}')
        for c in range(3):
            a(f'v_mul_f32 v{rA[c]}, v{rA[c]}, v{ivA}')
            a(f'v_mul_f32 v{rB[c]}, v{rB[c]}, v{ivB}')
        for c in range(3): rnd2(rA[c], rB[c])
        for (u, db_) in ((ua, qA[2]), (ub, qB[2])):
            t1, t2 = T[7], T[8]
            a(f'v_subrev_u32 v{ROW(u)}, {G.GT_T0-1}, v{db_}')
            a(f'v_cmp_gt_u32 vcc, {G.GT_T0}, v{db_}')
            a(f'v_or_b32 v{t1}, 0x8000, v{db_}')
            a(f'v_cndmask_b32 v{ROW(u)}, v{ROW(u)}, v{t1}, vcc')
            a(f'v_cmp_lt_u32 vcc, 0x409f, v{db_}')
            a(f'v_mov_b32 v{t2}, 0')
            a(f'v_cndmask_b32 v{ROW(u)}, v{ROW(u)}, v{t2}, vcc')
    a.label('K2_GEO_DONE')
    a('s_waitcnt lgkmcnt(0)')
    a(f's_mov_b64 s[{sOVF}:{sOVF+1}], 0')
    for u in range(U):
        a(f'v_and_b32 v{RK(u)}, 0xffff, v{RK(u)}')
        a(f'v_cmp_lt_u32 vcc, 127, v{RK(u)}')
        a(f's_and_b64 vcc, vcc, s[{sMK+2*u}:{sMK+2*u+1}]')
        a(f's_or_b64 s[{sOVF}:{sOVF+1}], s[{sOVF}:{sOVF+1}], vcc')
        a(f'v_cmp_lt_u32 vcc, 0x7fff, v{ROW(u)}')
        a(f's_and_b64 vcc, vcc, s[{sMK+2*u}:{sMK+2*u+1}]')
        a(f's_cbranch_vccz K2_NOSLOW_{u}')
        a('s_mov_b64 exec, vcc')
        a(f'v_lshlrev_b32 v36, 2, v{DL(u)}')
        a(f'v_add_u32 v36, {CNT}, v36')
        a('ds_or_b32 v36, v29')
        a(f's_mov_b64 exec, s[{sEX}:{sEX+1}]')
        a.label(f'K2_NOSLOW_{u}')
    a(f'v_mov_b32 v35, {MISC}')
    a(f's_cmp_eq_u64 s[{sOVF}:{sOVF+1}], 0')
    a('s_cbranch_scc1 K2_NOOVF')
    a('ds_write_b32 v35, v28 offset:4')
    a.label('K2_NOOVF')
    a(f's_cmp_eq_u32 s{sMORE}, 0')
    a('s_cbranch_scc1 K2_NOMORE')
    a('ds_write_b32 v35, v28 offset:8')
    a.label('K2_NOMORE')
    a('s_waitcnt lgkmcnt(0)')
    mark(a)
    a('s_barrier')
    a('ds_read_b32 v30, v35 offset:4')
    a('ds_read_b32 v31, v35 offset:8')
    a(f'v_lshrrev_b32 v32, 5, v{vLANE}')
    a(f'v_and_b32 v33, 31, v{vLANE}')
    a(f's_lshl_b32 s{sT}, s{sWAVE}, 1')
    a(f'v_add_u32 v32, s{sT}, v32')
    for i in range(3):
        a(f'v_add_u32 v{40+i}, {24*i}, v32')
        a(f'v_min_u32 v{40+i}, 63, v{40+i}')
        a(f'v_lshlrev_b32 v{40+i}, 2, v{40+i}')
        a(f'v_add_u32 v{40+i}, {CNT}, v{40+i}')
        a(f'ds_read_b32 v{44+i}, v{40+i}')
    a('s_waitcnt lgkmcnt(3)')
    a(f'v_readfirstlane_b32 s{sT}, v30')
    a(f'v_readfirstlane_b32 s{sMORE}, v31')
    a(f's_cmp_eq_u32 s{sT}, 0')
    a('s_cbranch_scc1 K2_GO')
    a('s_waitcnt vmcnt(0) lgkmcnt(0)')
    a(f's_lshr_b32 s{sW}, s{sW}, 1')
    a('s_branch K2_ROUND')
    a.label('K2_GO')
    a(f's_xor_b32 s{sRLAST}, s{sMORE}, 1')
    for u in range(U):
        a(f's_cmp_eq_u64 s[{sMK+2*u}:{sMK+2*u+1}], 0')
        a('s_cbranch_scc1 K2_PL_DONE')
        a(f's_mov_b64 exec, s[{sMK+2*u}:{sMK+2*u+1}]')
        a(f'v_lshl_add_u32 v34, v{DL(u)}, 7, v{RK(u)}')
        a('v_lshlrev_b32 v35, 1, v34')
        a(f'ds_write_b16 v35, v{RR(u)}')
        a(f'ds_write_b16 v35, v{ROW(u)} offset:{R16}')
        a('v_lshlrev_b32 v34, 2, v34')
        a(f'v_add_u32 v34, {RX}, v34')
        a(f'ds_write_b32 v34, v{RXo(u,0)}')
        a(f'ds_write_b32 v34, v{RXo(u,1)} offset:{RSTR}')
        a(f'ds_write_b32 v34, v{RXo(u,2)} offset:{2*RSTR}')
    a.label('K2_PL_DONE')
    a(f's_mov_b64 exec, s[{sEX}:{sEX+1}]')
    a(f'v_mov_b32 v36, {PADMARK}')
    a('v_mov_b32 v35, 0')
    a('s_waitcnt lgkmcnt(0)')
    for i in range(3):
        c = 44+i
        a(f'v_and_b32 v{c}, 0xffff, v{c}')
        a(f'v_add_u32 v37, 31, v{c}')
        a('v_lshrrev_b32 v37, 5, v37')
        a('v_max_u32 v37, 1, v37')
        a('v_subrev_u32 v37, 1, v37')
        a('v_lshl_add_u32 v37, v37, 5, v33')
        a(f'v_cmp_ge_u32 vcc, v37, v{c}')
        a(f'v_add_u32 v38, {24*i}, v32')
        a(f'v_cmp_gt_u32 s[{sT}:{sT+1}], 50, v38')
        a(f's_and_b64 vcc, vcc, s[{sT}:{sT+1}]')
        a('v_lshl_add_u32 v37, v38, 7, v37')
        a('s_and_b64 exec, exec, vcc')
        a('v_lshlrev_b32 v39, 1, v37')
        a('ds_write_b16 v39, v36')
        a(f'ds_write_b16 v39, v35 offset:{R16}')
        a('v_lshlrev_b32 v37, 2, v37')
        a(f'v_add_u32 v37, {RX}, v37')
        a('ds_write_b32 v37, v35')
        a(f'ds_write_b32 v37, v35 offset:{RSTR}')
        a(f'ds_write_b32 v37, v35 offset:{2*RSTR}')
        a(f's_mov_b64 exec, s[{sEX}:{sEX+1}]')
    a('s_waitcnt vmcnt(0) lgkmcnt(0)')
    mark(a)
    a('s_barrier')
    mark(a)
    a(f's_mov_b32 s{sPEND}, -1')
    a(f'v_mov_b32 v{vT0}, {MISC}')
    a(f'v_mov_b32 v{vT1}, 1')
    a('s_mov_b64 exec, 1')
    a(f'ds_add_rtn_u32 v{POOL}, v{vT0}, v{vT1}')
    a(f'ds_add_rtn_u32 v{POOL+1}, v{vT0}, v{vT1}')
    a(f's_mov_b64 exec, s[{sEX}:{sEX+1}]')
    a('s_waitcnt lgkmcnt(0)')
    a(f'v_readfirstlane_b32 s{sTC}, v{POOL}')
    a(f'v_readfirstlane_b32 s{sTN}, v{POOL+1}')
    a(f's_cmp_ge_u32 s{sTC}, s{sNN2}')
    a('s_cbranch_scc1 K2_WAVE_DONE')
    decode_task(a, sTC, sJC, sPH)
    decode_task(a, sTN, sJN, sPHN)
    a(f's_lshl_b32 s{sT}, s{sJC}, 2')
    a(f's_add_u32 s{sT}, s{sT}, {CNT}')
    a(f'v_mov_b32 v{vT0}, s{sT}')
    a(f'ds_read_b32 v{POOL}, v{vT0}')
    a(f's_lshl_b32 s{sBASE}, s{sJC}, 7')
    a(f's_lshl_b32 s{sT}, s{sBASE}, 1')
    a(f'v_add_u32 v{vT1}, s{sT}, v{vKG16}')
    a(f'ds_read_b128 {rng(DS)}, v{vT1}')
    a(f'v_mov_b32 v{SV0}, 0')
    a(f'v_mov_b32 v{SV1}, 0')
    a(f's_mul_i32 s{sNOFF}, s{sPH}, {G.TABB_OFF}')
    a('s_waitcnt lgkmcnt(0)')
    a(f'v_readfirstlane_b32 s{sCN}, v{POOL}')
    issue_loads(a)
    sv_loads(a, sJC, sPH)
    sv_loads(a, sJC, sPH)
    a(f's_lshr_b32 s{sSLOW}, s{sCN}, 16')
    a(f's_min_u32 s{sSLOW}, s{sSLOW}, 1')
    a(f's_and_b32 s{sCN}, s{sCN}, 0xffff')
    a(f's_add_u32 s{sNSTC}, s{sCN}, 31')
    a(f's_lshr_b32 s{sNSTC}, s{sNSTC}, 5')
    a(f's_max_u32 s{sNSTC}, s{sNSTC}, 1')
    a.label('K2_TASK')
    a(f's_cmp_ge_u32 s{sTC}, s{sNN2}')
    a('s_cbranch_scc1 K2_WAVE_DONE')
    mark(a)
    a(f's_mov_b32 s{sK}, 0')
    a(f's_cmp_eq_u32 s{sPH}, 1')
    a('s_cbranch_scc1 K2_NODE_B')
    step(a, 0, True)
    a(f's_cmp_eq_u32 s{sLAST}, 1')
    a('s_cbranch_scc1 K2_EPI_A')
    a.label('K2_STEP_A')
    a(f's_add_u32 s{sK}, s{sK}, 1')
    step(a, 0, False)
    a(f's_cmp_eq_u32 s{sLAST}, 1')
    a('s_cbranch_scc0 K2_STEP_A')
    a.label('K2_EPI_A')
    mark(a)
    a.safe()
    epilogueA(a)
    rotate(a)
    a.label('K2_NODE_B')
    flush_pending(a, 'SB', 2)
    a(f's_lshl_b32 s{sT}, s{sJC}, 2')
    a(f's_add_u32 s{sT}, s{sT}, {FLG}')
    a(f'v_mov_b32 v{vT0}, s{sT}')
    a.label('K2_SPIN')
    a(f'ds_read_b32 v{vT1}, v{vT0}')
    a('s_waitcnt lgkmcnt(0)')
    a(f'v_readfirstlane_b32 s{sT+1}, v{vT1}')
    a(f's_cmp_eq_u32 s{sT+1}, 1')
    a('s_cbranch_scc1 K2_SPIN_OK')
    a('s_sleep 4')
    a('s_branch K2_SPIN')
    a.label('K2_SPIN_OK')
    a(f's_add_u32 s{sT}, s{sN0}, s{sJC}')
    a(f's_lshl_b32 s{sT+1}, s{sT}, 9')
    a(f's_add_u32 s{sT+1}, s{sT+1}, {G.PART_OFF}')
    a(f'v_lshlrev_b32 v{vT0}, 2, v{vLANE}')
    a(f'buffer_load_dword v{PT0}, v{vT0}, s[{sWS}:{sWS+3}], s{sT+1} offen sc1')
    a(f'buffer_load_dword v{PT1}, v{vT0}, s[{sWS}:{sWS+3}], s{sT+1} offen offset:256 sc1')
    step(a, 1, True)
    a(f's_cmp_eq_u32 s{sLAST}, 1')
    a('s_cbranch_scc1 K2_EPI_B')
    a.label('K2_STEP_B')
    a(f's_add_u32 s{sK}, s{sK}, 1')
    step(a, 1, False)
    a(f's_cmp_eq_u32 s{sLAST}, 1')
    a('s_cbranch_scc0 K2_STEP_B')
    a.label('K2_EPI_B')
    mark(a)
    a.safe()
    epilogueB(a)
    rotate(a)
    a.label('K2_WAVE_DONE')
    flush_pending(a, 'WD', 0)
    a(f's_cmp_eq_u32 s{sRLAST}, 1')
    a('s_cbranch_scc1 K2_END')
    a('s_waitcnt vmcnt(0) lgkmcnt(0)')
    a(f's_mov_b32 s{sFIRST}, 0')
    a(f's_add_u32 s{sF0}, s{sF0}, s{sW}')
    a(f's_lshl_b32 s{sW}, s{sW}, 1')
    a(f's_min_u32 s{sW}, s{sW}, {WCAP}')
    a('s_branch K2_ROUND')
    a.label('K2_END')
    if STAMP:
        a(f's_cmp_ge_u32 s2, {G.NB}')
        a('s_cbranch_scc1 K2_END2')
        a('s_waitcnt vmcnt(0)')
        mark(a); mark(a, True)
        dump(a)
        a.label('K2_END2')
    a('s_endpgm')
    return True
```

```python
import os
import gen as G

N = 12500
NSLOT = 49*128 + 32
DS_BASE = 0
POS = 12800
GS = POS + 75776
GSW = 2048
W2IMG = GS + 8*GSW
WRIMG = W2IMG + 16384
GT = WRIMG + 12288
CNT = GT + 26*1024
MISC = CNT + 256
K2_LDS = MISC + 128
PADMARK = 0x7000
MREG = GS
WCAP = 512
NPF = int(os.environ.get('NPF','0'))
NP1 = int(os.environ.get('NP1','4'))
NP2 = int(os.environ.get('NP2','3'))

vLANE16, vFREQ, vKGWV, vKGDS, vWVA, vDSA, vOUTOFF = 1, 2, 3, 4, 5, 6, 7
SV = 8
vIMG = 12
vT0, vT1, vT2 = 13, 14, 15
DS = 16
vKGD, vDA, vLANE, vGSW = 20, 21, 22, 23
vC8 = 254
POOL = 24
GR = 56
L0 = 72; L1 = 104
ACCV = 136; ACCH = 184
vSEGLO, vSEGHI = 248, 249
vM1, vM2 = 250, 251
vPFX = 253
sTAB, sWS, sSV, sOUT = 12, 16, 20, 24
sMASK, sSELLO, sSELHI, s512 = 28, 29, 30, 31
sN0, sNN = 32, 33
sJC, sNSTC, sJN, sNSTN, sK, sBASE, sNBASE, sJNN, sLAST = 34, 35, 36, 37, 38, 39, 40, 41, 42
sWAVE, sF0, sW, sTOT, sNV, sFIRST, sRLAST = 43, 44, 45, 46, 47, 48, 49
sEX = 50
sT = 52
sMK = 56
sMORE, sCNTN, sFIVE, sGS = 76, 77, 78, 79
sSLOW = 84
sPOSP = 80
sOVF = 88
sT2 = 90
sBK = 91

STAMP = os.environ.get('STAMP','0') == '1'
def mark(a, real=False):
    if not STAMP: return
    a(f"{'s_memrealtime' if real else 's_memtime'} s[100:101]")
    a('s_waitcnt lgkmcnt(0)')
    a('s_min_u32 s98, s98, 63')
    a('s_mov_b32 m0, s98')
    a('s_nop 1')
    a('v_writelane_b32 v252, s100, m0')
    a('s_add_u32 s98, s98, 1')
def dump(a):
    if not STAMP: return
    a('s_load_dwordx2 s[100:101], s[0:1], 80')
    a('s_waitcnt lgkmcnt(0)')
    a(f's_add_u32 s56, s100, {G.STAMP_OFF+0x100000}')
    a('s_addc_u32 s57, s101, 0')
    a('s_and_b32 s57, s57, 0xffff')
    a('s_mov_b32 s58, 0x100000')
    a('s_mov_b32 s59, 0x20000')
    a('s_mov_b64 exec, -1')
    a('v_lshrrev_b32 v13, 6, v0')
    a('v_lshlrev_b32 v13, 8, v13')
    a('v_and_b32 v14, 63, v0')
    a('v_lshl_add_u32 v13, v14, 2, v13')
    a('s_lshl_b32 s60, s2, 11')
    a('buffer_store_dword v252, v13, s[56:59], s60 offen')
    a('s_waitcnt vmcnt(0)')

def Gr(w, p): return GR + 4*w + p
def accV(k, tau): return ACCV + 16*k + 4*tau
def accH(w, t): return ACCH + 16*w + 4*t
def rng(b, n=4): return f'v[{b}:{b+n-1}]'

def addr_calc(a, ADDR):
    for j in range(8):
        a(f'v_mad_u32_u16 v{ADDR+j}, v{DS+(j>>1)}, s{s512}, v{vLANE16} op_sel:[{j&1},0,0,0]')

def step(a, first):
    tag = 'F' if first else 'R'
    RX, RY, RZ = POOL, POOL + 8, POOL + 16
    TMP = POOL + 24
    if first:
        a(f'v_mov_b32 v{vT0}, {MISC}')
        a(f'v_mov_b32 v{vT1}, 1')
        a(f's_min_u32 s{sT}, s{sJN}, 49')
        a(f's_lshl_b32 s{sT}, s{sT}, 2')
        a(f's_add_u32 s{sT}, s{sT}, {CNT}')
        a(f'v_mov_b32 v{vT2}, s{sT}')
        a(f's_mov_b64 s[{sEX}:{sEX+1}], exec')
        a('s_mov_b64 exec, 1')
        a(f'ds_add_rtn_u32 v{vM1}, v{vT0}, v{vT1}')
        a(f'ds_read_b32 v{vM2}, v{vT2}')
        a(f's_mov_b64 exec, s[{sEX}:{sEX+1}]')
    a(f's_add_u32 s{sT}, s{sK}, 1')
    a(f's_cmp_eq_u32 s{sT}, s{sNSTC}')
    a(f's_cselect_b32 s{sLAST}, 1, 0')
    a(f's_min_u32 s{sT+1}, s{sJN}, 49')
    a(f's_lshl_b32 s{sT+1}, s{sT+1}, 7')
    a(f's_add_u32 s{sT+2}, s{sBASE}, 32')
    a(f's_cmp_eq_u32 s{sLAST}, 1')
    a(f's_cselect_b32 s{sNBASE}, s{sT+1}, s{sT+2}')
    a(f's_lshl_b32 s{sT}, s{sNBASE}, 1')
    a(f'v_add_u32 v{vDSA}, s{sT}, v{vKGDS}')
    a(f's_cmp_eq_u32 s{sSLOW}, 1')
    a(f's_cbranch_scc1 K2_SLOWG_{tag}')
    a(f'ds_read2_b32 v[{TMP}:{TMP+1}], v{vWVA} offset0:0 offset1:4')
    for (R, off) in ((RX, 512), (RY, 1024), (RZ, 1536)):
        a(f'ds_read_b128 {rng(R)}, v{vDA} offset:{off}')
        a(f'ds_read_b128 {rng(R+4)}, v{vDA} offset:{off+16}')
    a('s_waitcnt lgkmcnt(6)')
    a(f'v_add_u32 v{TMP}, v{TMP}, v{vC8}')
    a(f'v_add_u32 v{TMP+1}, v{TMP+1}, v{vC8}')
    a(f'ds_read_b64_tr_b16 v[{Gr(0,0)}:{Gr(0,1)}], v{TMP}')
    a(f'ds_read_b64_tr_b16 v[{Gr(0,2)}:{Gr(0,3)}], v{TMP+1}')
    a(f'ds_read_b128 {rng(DS)}, v{vDSA}')
    a('s_waitcnt lgkmcnt(1)')
    a(f's_branch K2_G1_{tag}')
    a.label(f'K2_SLOWG_{tag}')
    a(f'ds_read_b128 {rng(RX)}, v{vDA}')
    a(f'ds_read_b128 {rng(RX+4)}, v{vDA} offset:16')
    a('s_waitcnt lgkmcnt(0)')
    for p in range(4):
        for h in range(2):
            d = RX + 2*p + h; t = TMP + 2 + h; iv = TMP + 4 + h; sn = TMP + 6 + h
            def rnd1(x):
                a(f'v_cvt_pk_bf16_f32 v{x}, v{x}, v{x}')
                a(f'v_and_b32 v{x}, s{sMASK}, v{x}')
            a(f'v_rcp_f32 v{iv}, v{d}')
            a(f'v_mul_f32 v{t}, 0x40490fdb, v{d}'); rnd1(t)
            a(f'v_mul_f32 v{t}, 0x3e4ccccd, v{t}'); rnd1(t)
            a(f'v_mul_f32 v{t}, 0.15915494, v{t}')
            a(f'v_cos_f32 v{t}, v{t}'); rnd1(t)
            a(f'v_add_f32 v{t}, 1.0, v{t}'); rnd1(t)
            a(f'v_mul_f32 v{iv}, 0.5, v{iv}')
            a(f'v_mul_f32 v{t}, v{t}, v{iv}')
            a(f'v_cmp_lt_f32 vcc, 0, v{d}')
            a(f'v_mul_f32 v{sn}, v{d}, v{vFREQ}'); rnd1(sn)
            a(f'v_cndmask_b32 v{t}, 0, v{t}, vcc')
            a(f'v_mul_f32 v{sn}, 0.15915494, v{sn}')
            a(f'v_sin_f32 v{sn}, v{sn}')
            a(f'v_mul_f32 v{sn}, v{sn}, v{t}')
        a(f'v_cvt_pk_bf16_f32 v{Gr(0,p)}, v{TMP+6}, v{TMP+7}')
    for (R, off) in ((RX, 512), (RY, 1024), (RZ, 1536)):
        a(f'ds_read_b128 {rng(R)}, v{vDA} offset:{off}')
        a(f'ds_read_b128 {rng(R+4)}, v{vDA} offset:{off+16}')
    a(f'ds_read_b128 {rng(DS)}, v{vDSA}')
    a('s_waitcnt lgkmcnt(1)')
    a.label(f'K2_G1_{tag}')
    for p in range(4):
        g0, g1 = TMP + 2, TMP + 3
        a(f'v_lshlrev_b32 v{g0}, 16, v{Gr(0,p)}')
        a(f'v_and_b32 v{g1}, s{sMASK}, v{Gr(0,p)}')
        for k, R in enumerate((RX, RY, RZ)):
            t0, t1 = TMP + 4 + 2*(k % 2), TMP + 5 + 2*(k % 2)
            a(f'v_mul_f32 v{t0}, v{g0}, v{R+2*p}')
            a(f'v_mul_f32 v{t1}, v{g1}, v{R+2*p+1}')
            a(f'v_cvt_pk_bf16_f32 v{Gr(1+k,p)}, v{t0}, v{t1}')
    if first:
        a(f'v_readfirstlane_b32 s{sJNN}, v{vM1}')
        a(f'v_readfirstlane_b32 s{sCNTN}, v{vM2}')
        a(f's_add_u32 s{sNSTN}, s{sCNTN}, 31')
        a(f's_lshr_b32 s{sNSTN}, s{sNSTN}, 5')
        a(f's_max_u32 s{sNSTN}, s{sNSTN}, 1')
    TB = [POOL + 4*i for i in range(4)]
    ADDR = POOL + 16
    def perms(L, q, half, dst):
        sel = sSELHI if half else sSELLO
        for p in range(4):
            a(f'v_perm_b32 v{dst+p}, v{L+4*(2*p+1)+q}, v{L+4*(2*p)+q}, s{sel}')
    def mf(acc, A, B):
        c = '0' if first else rng(acc)
        a(f'v_mfma_f32_16x16x32_bf16 {rng(acc)}, {rng(A)}, {rng(B)}, {c}')
    a('s_waitcnt vmcnt(8)')
    for t in range(8):
        perms(L0, t >> 1, t & 1, TB[t % 4])
        if t >= 1:
            mf(accV((t-1) >> 2, (t-1) & 3), Gr(0,0), TB[(t-1) % 4])
    a('s_waitcnt lgkmcnt(0)')
    for j in range(8):
        a(f'v_mad_u32_u16 v{ADDR+j}, v{DS+(j>>1)}, s{s512}, v{vLANE16} op_sel:[{j&1},0,0,0]')
        if j == 1: mf(accV(1, 3), Gr(0,0), TB[7 % 4])
    for j in range(8):
        a(f'buffer_load_dwordx4 {rng(L0+4*j)}, v{ADDR+j}, s[{sTAB}:{sTAB+3}], 0 offen')
    a('s_waitcnt vmcnt(8)')
    order = [('h', t) for t in range(4)] + [('z', t) for t in range(4)]
    def tile_perm_list(kind, t, dst):
        q = (2 + (t >> 1)) if kind == 'h' else (t >> 1)
        half = t & 1
        sel = sSELHI if half else sSELLO
        return [f'v_perm_b32 v{dst+p}, v{L1+4*(2*p+1)+q}, v{L1+4*(2*p)+q}, s{sel}' for p in range(4)]
    def tile_mfma_list(kind, t, src):
        out = []
        if kind == 'h':
            for w in range(4):
                acc = accH(w, t); c = '0' if first else rng(acc)
                out.append(f'v_mfma_f32_16x16x32_bf16 {rng(acc)}, {rng(src)}, {rng(Gr(w,0))}, {c}')
        else:
            acc = accV(2, t); c = '0' if first else rng(acc)
            out.append(f'v_mfma_f32_16x16x32_bf16 {rng(acc)}, {rng(Gr(0,0))}, {rng(src)}, {c}')
        return out
    for l in tile_perm_list(*order[0], TB[0]): a(l)
    for i in range(1, 8):
        pl = tile_perm_list(*order[i], TB[i % 4])
        ml = tile_mfma_list(*order[i-1], TB[(i-1) % 4])
        if len(ml) == 4:
            a(pl[0]); a(pl[1]); a(ml[0]); a(pl[2]); a(ml[1]); a(pl[3]); a(ml[2]); a(ml[3])
        else:
            for l in pl: a(l)
            a(ml[0])
    ml = tile_mfma_list(*order[7], TB[7 % 4])
    for j in range(8):
        a(f'buffer_load_dwordx4 {rng(L1+4*j)}, v{ADDR+j}, s[{sTAB}:{sTAB+3}], 0 offen offset:256')
        if j == 1: a(ml[0])
    a(f's_mov_b32 s{sBASE}, s{sNBASE}')
    a(f'v_add_u32 v{vWVA}, 128, v{vWVA}')
    a(f'v_add_u32 v{vDA}, 128, v{vDA}')

def geometry(a, sJ, sCNT, tag):
    P = POOL
    src = [P, P+1]; D = [P+2, P+4]
    dp = [P+6, P+7, P+8]
    ROWV = [P+9, P+10]; DV = [P+11, P+12]
    T = list(range(P+13, P+32))
    a(f's_lshl_b32 s{sT}, s{sJ}, 8')
    a(f'v_lshlrev_b32 v{T[0]}, 1, v{vLANE}')
    a(f'v_add_u32 v{T[0]}, s{sT}, v{T[0]}')
    a(f'ds_read_u16 v{src[0]}, v{T[0]}')
    a(f'ds_read_u16 v{src[1]}, v{T[0]} offset:128')
    a(f's_add_u32 s{sT}, s{sN0}, s{sJ}')
    a(f's_mul_i32 s{sT}, s{sT}, 6')
    a(f's_add_u32 s{sT}, s{sT}, {POS}')
    a(f's_min_u32 s{sT}, s{sT}, {POS+75000-6}')
    a(f'v_mov_b32 v{T[1]}, s{sT}')
    for c in range(3): a(f'v_mov_b32 v{dp[c]}, 0')
    for c in range(3): a(f'ds_read_u16_d16_hi v{dp[c]}, v{T[1]} offset:{2*c}')
    a(f's_mov_b32 s{sSLOW}, 0')
    a(f'v_mov_b32 v{ROWV[1]}, {GT}')
    a(f'v_mov_b32 v{DV[1]}, 0')
    a('s_waitcnt lgkmcnt(3)')
    for it in range(2):
        s_ = src[it]
        a(f's_sub_i32 s{sT+1}, s{sCNT}, {64*it}')
        a(f'v_cmp_gt_i32 s[{sMK+2*it}:{sMK+2*it+1}], s{sT+1}, v{vLANE}')
        a(f'v_cndmask_b32 v{s_}, 0, v{s_}, s[{sMK+2*it}:{sMK+2*it+1}]')
        a(f'v_mul_u32_u24 v{T[0]}, 6, v{s_}')
        a(f'v_and_b32 v{T[0]}, -4, v{T[0]}')
        a(f'v_add_u32 v{T[0]}, {POS}, v{T[0]}')
        a(f'ds_read2_b32 v[{D[it]}:{D[it]+1}], v{T[0]} offset0:0 offset1:1')
        a(f'v_and_b32 v{s_}, 1, v{s_}')
        a(f'v_lshlrev_b32 v{s_}, 4, v{s_}')
    for it in range(2):
        if it == 1:
            a(f's_cmp_le_u32 s{sCNT}, 64')
            a(f's_cbranch_scc1 K2_GEO_W_{tag}')
        a(f's_waitcnt lgkmcnt({1-it})')
        rx, ry, rz, p = T[2], T[3], T[4], T[5]
        a(f'v_alignbit_b32 v{ry}, v{D[it]+1}, v{D[it]}, v{src[it]}')
        a(f'v_lshrrev_b32 v{rz}, v{src[it]}, v{D[it]+1}')
        a(f'v_lshlrev_b32 v{rx}, 16, v{ry}')
        a(f'v_and_b32 v{ry}, s{sMASK}, v{ry}')
        a(f'v_lshlrev_b32 v{rz}, 16, v{rz}')
        a(f'v_sub_f32 v{rx}, v{rx}, v{dp[0]}')
        a(f'v_sub_f32 v{ry}, v{ry}, v{dp[1]}')
        a(f'v_sub_f32 v{rz}, v{rz}, v{dp[2]}')
        def rnd2(x, y):
            a(f'v_cvt_pk_bf16_f32 v{p}, v{x}, v{y}')
            a(f'v_lshlrev_b32 v{x}, 16, v{p}')
            a(f'v_and_b32 v{y}, s{sMASK}, v{p}')
        def rnd1(x):
            a(f'v_cvt_pk_bf16_f32 v{x}, v{x}, v{x}')
            a(f'v_and_b32 v{x}, s{sMASK}, v{x}')
        rnd2(rx, ry); rnd1(rz)
        qx, qy, qz = T[6], T[7], T[8]
        a(f'v_mul_f32 v{qx}, v{rx}, v{rx}')
        a(f'v_mul_f32 v{qy}, v{ry}, v{ry}')
        a(f'v_mul_f32 v{qz}, v{rz}, v{rz}')
        rnd2(qx, qy); rnd1(qz)
        d = T[9]
        a(f'v_add_f32 v{d}, v{qx}, v{qy}')
        a(f'v_add_f32 v{d}, v{d}, v{qz}')
        rnd1(d)
        a(f'v_add_f32 v{d}, 0x322bcc77, v{d}')
        rnd1(d)
        a(f'v_sqrt_f32 v{d}, v{d}')
        rnd1(d)
        inv = qx
        a(f'v_rcp_f32 v{inv}, v{d}')
        a(f'v_cmp_gt_f32 vcc, 0x40a00000, v{d}')
        a(f's_and_b64 s[{sT+2}:{sT+3}], vcc, s[{sMK+2*it}:{sMK+2*it+1}]')
        a(f'v_lshrrev_b32 v{qy}, 16, v{d}')
        a(f'v_mul_f32 v{rx}, v{rx}, v{inv}')
        a(f'v_mul_f32 v{ry}, v{ry}, v{inv}')
        a(f'v_mul_f32 v{rz}, v{rz}, v{inv}')
        a(f'v_cmp_gt_u32 vcc, {G.GT_T0}, v{qy}')
        a(f'v_lshlrev_b32 v{qy}, 5, v{qy}')
        a(f'v_add_u32 v{qy}, {GT + 32 - 32*G.GT_T0}, v{qy}')
        a(f's_and_b64 vcc, vcc, s[{sT+2}:{sT+3}]')
        a(f's_cmp_lg_u64 vcc, 0')
        a(f's_cselect_b32 s{sT}, 1, 0')
        if os.environ.get('NOSLOW','0') != '1': a(f's_or_b32 s{sSLOW}, s{sSLOW}, s{sT}')
        rnd2(rx, ry); rnd1(rz)
        a(f'v_mov_b32 v{qz}, {GT}')
        a(f'v_cndmask_b32 v{ROWV[it]}, v{qz}, v{qy}, s[{sT+2}:{sT+3}]')
        a(f'v_cndmask_b32 v{DV[it]}, 0, v{d}, s[{sT+2}:{sT+3}]')
        a(f'v_lshl_add_u32 v{T[0]}, v{vLANE}, 2, v{vGSW}')
        a(f'ds_write_b32 v{T[0]}, v{rx} offset:{512+256*it}')
        a(f'ds_write_b32 v{T[0]}, v{ry} offset:{1024+256*it}')
        a(f'ds_write_b32 v{T[0]}, v{rz} offset:{1536+256*it}')
    a.label(f'K2_GEO_W_{tag}')
    a(f'v_lshl_add_u32 v{T[0]}, v{vLANE}, 2, v{vGSW}')
    a(f's_cmp_eq_u32 s{sSLOW}, 1')
    a(f's_cbranch_scc1 K2_GEO_S_{tag}')
    a(f'ds_write_b32 v{T[0]}, v{ROWV[0]}')
    a(f'ds_write_b32 v{T[0]}, v{ROWV[1]} offset:256')
    a(f's_branch K2_GEO_END_{tag}')
    a.label(f'K2_GEO_S_{tag}')
    a(f'ds_write_b32 v{T[0]}, v{DV[0]}')
    a(f'ds_write_b32 v{T[0]}, v{DV[1]} offset:256')
    a.label(f'K2_GEO_END_{tag}')
    a(f'v_mov_b32 v{vWVA}, v{vKGWV}')
    a(f'v_mov_b32 v{vDA}, v{vKGD}')

def epilogue(a):
    F = [accH(w, t) for w in range(4) for t in (1, 3)]
    WRB = F[0:4]
    O = F[4:8]
    W2 = POOL
    def rd_w2(part):
        for kp in range(2):
            for tau in range(4):
                a(f'ds_read_b128 {rng(W2+16*kp+4*tau)}, v{vIMG} offset:{part*8192+kp*4096+tau*1024}')
    def rd_wr(p):
        for tau in range(4):
            a(f'ds_read_b128 {rng(WRB[tau])}, v{vIMG} offset:{16384+p*4096+tau*1024}')
    rd_w2(0)
    for w in range(4):
        for kp in range(2):
            e, o = accH(w, 2*kp), accH(w, 2*kp+1)
            a(f'v_cvt_pk_bf16_f32 v{e}, v{e}, v{e+1}')
            a(f'v_cvt_pk_bf16_f32 v{e+1}, v{e+2}, v{e+3}')
            a(f'v_cvt_pk_bf16_f32 v{e+2}, v{o}, v{o+1}')
            a(f'v_cvt_pk_bf16_f32 v{e+3}, v{o+2}, v{o+3}')
    rd_wr(1)
    a('s_waitcnt lgkmcnt(4)')
    for tau in range(4):
        a(f'v_mfma_f32_16x16x32_bf16 {rng(GR+4*tau)}, {rng(accH(0,0))}, {rng(W2+4*tau)}, 0')
    for tau in range(4):
        a(f'v_mfma_f32_16x16x32_bf16 {rng(GR+4*tau)}, {rng(accH(0,2))}, {rng(W2+16+4*tau)}, {rng(GR+4*tau)}')
    rd_w2(1)
    a('s_waitcnt lgkmcnt(8)')
    for k in range(3):
        for tau in range(4):
            o = O[1+k] + tau; s = accV(k, tau); c = WRB[tau]
            a(f'v_mul_f32 v{o}, v{c}, v{s}')
        for q in range(1, 4):
            for tau in range(4):
                o = O[1+k] + tau; s = accV(k, tau); c = WRB[tau]
                a(f'v_fmac_f32 v{o}, v{c+q}, v{s+q}')
    rd_wr(0)
    a('s_waitcnt lgkmcnt(4)')
    for k in range(3):
        for tau in range(4):
            a(f'v_mfma_f32_16x16x32_bf16 {rng(accV(k,tau))}, {rng(accH(1+k,0))}, {rng(W2+4*tau)}, 0')
        for tau in range(4):
            a(f'v_mfma_f32_16x16x32_bf16 {rng(accV(k,tau))}, {rng(accH(1+k,2))}, {rng(W2+16+4*tau)}, {rng(accV(k,tau))}')
    a('s_waitcnt lgkmcnt(0)')
    for tau in range(4):
        a(f'v_mul_f32 v{O[0]+tau}, v{WRB[tau]}, v{GR+4*tau}')
    for q in range(1, 4):
        for tau in range(4):
            a(f'v_fmac_f32 v{O[0]+tau}, v{WRB[tau]+q}, v{GR+4*tau+q}')
    rd_wr(2)
    a('s_waitcnt lgkmcnt(0)')
    for k in range(3):
        for q in range(4):
            for tau in range(4):
                a(f'v_fmac_f32 v{O[1+k]+tau}, v{WRB[tau]+q}, v{accV(k,tau)+q}')
    for w in range(4):
        a(f'v_permlane32_swap_b32 v{O[w]}, v{O[w]+2}')
        a(f'v_permlane32_swap_b32 v{O[w]+1}, v{O[w]+3}')
    for w in range(4):
        a(f'v_add_f32 v{O[w]}, v{O[w]}, v{O[w]+2}')
        a(f'v_add_f32 v{O[w]+1}, v{O[w]+1}, v{O[w]+3}')
    for w in range(4):
        a(f'v_permlane16_swap_b32 v{O[w]}, v{O[w]+1}')
    for w in range(4):
        a(f'v_add_f32 v{O[w]}, v{O[w]}, v{O[w]+1}')
    R = [O[w] for w in range(4)]
    a(f's_add_u32 s{sT}, s{sN0}, s{sJC}')
    a(f's_and_b32 s{sT+1}, s{sFIRST}, s{sRLAST}')
    a(f's_cmp_eq_u32 s{sT+1}, 1')
    a('s_cbranch_scc1 K2_EPI_FINAL')
    a(f's_lshl_b32 s{sT+1}, s{sT}, 10')
    a(f's_add_u32 s{sT+1}, s{sT+1}, {G.PART_OFF}')
    a(f'v_lshlrev_b32 v{vT0}, 2, v{vLANE}')
    a(f's_cmp_eq_u32 s{sFIRST}, 1')
    a('s_cbranch_scc1 K2_EPI_NOLOAD')
    for w in range(4):
        a(f'buffer_load_dword v{GR+w}, v{vT0}, s[{sWS}:{sWS+3}], s{sT+1} offen offset:{256*w}')
    a('s_waitcnt vmcnt(0)')
    for w in range(4):
        a(f'v_add_f32 v{R[w]}, v{R[w]}, v{GR+w}')
    a.label('K2_EPI_NOLOAD')
    a(f's_cmp_eq_u32 s{sRLAST}, 1')
    a('s_cbranch_scc1 K2_EPI_FINAL')
    for w in range(4):
        a(f'buffer_store_dword v{R[w]}, v{vT0}, s[{sWS}:{sWS+3}], s{sT+1} offen offset:{256*w}')
    a('s_waitcnt vmcnt(0)')
    a('s_branch K2_EPI_DONE')
    a.label('K2_EPI_FINAL')
    p01, p23 = GR, GR+1
    x = [GR+2+w for w in range(4)]
    a(f'v_cvt_pk_bf16_f32 v{p01}, v{R[0]}, v{R[1]}')
    a(f'v_cvt_pk_bf16_f32 v{p23}, v{R[2]}, v{R[3]}')
    a(f'v_lshlrev_b32 v{x[0]}, 16, v{p01}')
    a(f'v_and_b32 v{x[1]}, s{sMASK}, v{p01}')
    a(f'v_lshlrev_b32 v{x[2]}, 16, v{p23}')
    a(f'v_and_b32 v{x[3]}, s{sMASK}, v{p23}')
    for w in range(4):
        a(f'v_add_f32 v{x[w]}, v{x[w]}, v{SV+w}')
    a(f'v_cvt_pk_bf16_f32 v{p01}, v{x[0]}, v{x[1]}')
    a(f'v_cvt_pk_bf16_f32 v{p23}, v{x[2]}, v{x[3]}')
    a(f's_lshl_b32 s{sT+1}, s{sT}, 9')
    a(f'buffer_store_short v{p01}, v{vOUTOFF}, s[{sOUT}:{sOUT+3}], s{sT+1} offen')
    a(f'buffer_store_short_d16_hi v{p01}, v{vOUTOFF}, s[{sOUT}:{sOUT+3}], s{sT+1} offen offset:128')
    a(f'buffer_store_short v{p23}, v{vOUTOFF}, s[{sOUT}:{sOUT+3}], s{sT+1} offen offset:256')
    a(f'buffer_store_short_d16_hi v{p23}, v{vOUTOFF}, s[{sOUT}:{sOUT+3}], s{sT+1} offen offset:384')
    a.label('K2_EPI_DONE')

def sv_loads(a, sj):
    a(f's_add_u32 s{sT}, s{sN0}, s{sj}')
    a(f's_lshl_b32 s{sT}, s{sT}, 9')
    for w in range(4):
        a(f'buffer_load_short_d16_hi v{SV+w}, v{vOUTOFF}, s[{sSV}:{sSV+3}], s{sT} offen offset:{128*w}')

def dma_pos(a, lo, hi, tag):
    a(f's_cmp_eq_u32 s{sFIRST}, 1')
    a(f's_cbranch_scc0 K2_XD_{tag}')
    a(f'v_lshlrev_b32 v35, 4, v{vLANE}')
    a(f's_mul_i32 s{sT}, s2, 9')
    a(f's_add_u32 s{sT}, s{sT}, s{sWAVE}')
    for i in range(lo, hi):
        a(f's_add_u32 s{sT+1}, s{sT}, {8*i}')
        a(f's_mul_hi_u32 s{sT+2}, s{sT+1}, {(1<<32)//74+1}')
        a(f's_mul_i32 s{sT+2}, s{sT+2}, 74')
        a(f's_sub_u32 s{sT+1}, s{sT+1}, s{sT+2}')
        a(f's_lshl_b32 s{sT+1}, s{sT+1}, 10')
        a(f's_add_u32 s{sT+2}, s{sT+1}, {POS}')
        a(f's_mov_b32 m0, s{sT+2}')
        a('s_nop 0')
        a(f'buffer_load_dwordx4 v35, s[{sPOSP}:{sPOSP+3}], s{sT+1} offen lds')
    a.label(f'K2_XD_{tag}')

def dma_const(a, tag):
    a(f's_cmp_eq_u32 s{sFIRST}, 1')
    a(f's_cbranch_scc0 K2_XD_{tag}')
    a(f'v_lshlrev_b32 v35, 4, v{vLANE}')
    a(f's_mul_i32 s{sT+3}, s2, 5')
    a(f's_add_u32 s{sT+3}, s{sT+3}, s{sWAVE}')
    for i in range(7):
        a(f's_add_u32 s{sT}, s{sT+3}, {8*i}')
        a(f's_mul_hi_u32 s{sT+1}, s{sT}, {(1<<32)//56+1}')
        a(f's_mul_i32 s{sT+1}, s{sT+1}, 56')
        a(f's_sub_u32 s{sT}, s{sT}, s{sT+1}')
        a(f's_min_u32 s{sT}, s{sT}, 53')
        a(f's_lshl_b32 s{sT+1}, s{sT}, 10')
        a(f's_add_u32 s{sT+2}, s{sT+1}, {W2IMG}')
        a(f's_mov_b32 m0, s{sT+2}')
        a(f's_cmp_ge_u32 s{sT}, 28')
        a(f's_mov_b32 s{sT+2}, {G.CIMG_OFF}')
        a(f's_cselect_b32 s{sT+2}, {G.GT_OFF - 28*1024}, s{sT+2}')
        a(f's_add_u32 s{sT+1}, s{sT+1}, s{sT+2}')
        a(f'buffer_load_dwordx4 v35, s[{sWS}:{sWS+3}], s{sT+1} offen lds')
    a.label(f'K2_XD_{tag}')

def gen_k2(a):
    a.raw('.globl k2_kernel\n.p2align 8\n.type k2_kernel,@function')
    a.label('k2_kernel')
    a('s_load_dwordx4 s[4:7], s[0:1], 0')
    a('s_load_dwordx2 s[96:97], s[0:1], 32')
    a('s_load_dwordx2 s[8:9], s[0:1], 64')
    a('s_load_dwordx2 s[10:11], s[0:1], 80')
    a(f's_cmp_ge_u32 s2, {G.NB}')
    a('s_cbranch_scc1 K2_END')
    a(f's_mov_b32 s{sMASK}, 0xffff0000')
    a(f's_mov_b32 s{sSELLO}, 0x05040100')
    a(f's_mov_b32 s{sSELHI}, 0x07060302')
    a(f's_mov_b32 s{s512}, 512')
    a(f's_and_b32 s{sBK}, s2, 7')
    a(f's_lshl_b32 s{sBK}, s{sBK}, 5')
    a(f's_lshr_b32 s{sT}, s2, 3')
    a(f's_or_b32 s{sBK}, s{sBK}, s{sT}')
    a(f's_mul_i32 s{sN0}, s{sBK}, 12500')
    a(f's_add_u32 s{sNN}, s{sN0}, {12500+255}')
    a(f's_add_u32 s{sN0}, s{sN0}, 255')
    a(f's_lshr_b32 s{sN0}, s{sN0}, 8')
    a(f's_lshr_b32 s{sNN}, s{sNN}, 8')
    a(f's_sub_u32 s{sNN}, s{sNN}, s{sN0}')
    a(f'v_and_b32 v{vLANE}, 63, v0')
    a(f'v_and_b32 v{vT1}, 15, v{vLANE}')
    a(f'v_lshrrev_b32 v{vT2}, 4, v{vLANE}')
    a(f'v_lshlrev_b32 v{vLANE16}, 4, v{vT1}')
    a('v_lshrrev_b32 v16, 6, v0')
    a(f'v_readfirstlane_b32 s{sWAVE}, v16')
    a(f'v_lshlrev_b32 v{vKGDS}, 4, v{vT2}')
    a(f'v_lshl_add_u32 v{vOUTOFF}, v{vT1}, 2, v{vT2}')
    a(f'v_lshlrev_b32 v{vOUTOFF}, 1, v{vOUTOFF}')
    a(f'v_lshlrev_b32 v{vIMG}, 4, v{vLANE}')
    a(f'v_add_u32 v{vIMG}, {W2IMG}, v{vIMG}')
    a(f's_mul_i32 s{sGS}, s{sWAVE}, {GSW}')
    a(f's_add_u32 s{sGS}, s{sGS}, {GS}')
    a(f'v_mov_b32 v{vGSW}, s{sGS}')
    a(f'v_lshrrev_b32 v{vKGWV}, 2, v{vT1}')
    a(f'v_lshl_add_u32 v{vKGWV}, v{vT2}, 3, v{vKGWV}')
    a(f'v_lshl_add_u32 v{vKGWV}, v{vKGWV}, 2, v{vGSW}')
    a(f'v_and_b32 v{vC8}, 3, v{vLANE}')
    a(f'v_lshlrev_b32 v{vC8}, 3, v{vC8}')
    a(f'v_lshlrev_b32 v{vKGD}, 5, v{vT2}')
    a(f'v_add_u32 v{vKGD}, v{vKGD}, v{vGSW}')
    a(f'v_mov_b32 v{vFREQ}, 0')
    a(f'v_lshlrev_b32 v{vT1}, 1, v{vT1}')
    a('s_waitcnt lgkmcnt(0)')
    G.srd(a, sWS, 10, G.WS_USED)
    if STAMP:
        a('s_mov_b32 s98, 0')
        a('v_mov_b32 v252, -1')
    mark(a, True); mark(a)
    a(f'v_lshl_add_u32 v17, v16, 5, v{vLANE}')
    a(f'v_cmp_gt_u32 vcc, 32, v{vLANE}')
    a(f'v_mov_b32 v{vSEGLO}, 0')
    a(f'v_mov_b32 v18, {G.NCH}')
    a(f'v_cmp_lt_u32 s[{sT}:{sT+1}], v17, v18')
    a(f's_and_b64 vcc, vcc, s[{sT}:{sT+1}]')
    a('v_lshlrev_b32 v18, 2, v17')
    a(f's_lshl_b32 s{sT}, s{sBK}, 10')
    a(f's_add_u32 s{sT}, s{sT}, {G.SEG_OFF}')
    a(f's_and_saveexec_b64 s[{sEX}:{sEX+1}], vcc')
    a(f'buffer_load_dword v{vSEGLO}, v18, s[{sWS}:{sWS+3}], s{sT} offen')
    a(f's_mov_b64 exec, s[{sEX}:{sEX+1}]')
    G.srd(a, sTAB, 10, G.TAB_SZ); G.srd(a, sSV, 4, N*512); G.srd(a, sOUT, 8, N*512); G.srd(a, sPOSP, 6, N*6)
    a(f'global_load_short_d16_hi v{vFREQ}, v{vT1}, s[96:97]')
    a(f's_mov_b32 s{sF0}, 0')
    a(f's_mov_b32 s{sW}, {WCAP}')
    a(f's_mov_b32 s{sFIRST}, 1')
    a(f'v_mul_u32_u24 v{vSEGHI}, {G.CHE}, v17')
    dma_pos(a, 0, NP1, 'P1')
    a(f's_waitcnt vmcnt({1+NP1})')
    mark(a)
    a(f'v_and_b32 v18, 0xffff, v{vSEGLO}')
    a(f'v_add_u32 v{vSEGHI}, v{vSEGHI}, v18')
    a(f'v_lshrrev_b32 v{vSEGLO}, 16, v{vSEGLO}')
    a(f'v_mov_b32 v{vPFX}, v{vSEGLO}')
    for sh in (1, 2, 4, 8):
        a(f'v_add_u32_dpp v{vPFX}, v{vPFX}, v{vPFX} row_shr:{sh} row_mask:0xf bank_mask:0xf')
    a(f'v_add_u32_dpp v{vPFX}, v{vPFX}, v{vPFX} row_bcast:15 row_mask:0xa bank_mask:0xf')
    a(f'v_readlane_b32 s{sTOT}, v{vPFX}, 31')
    a(f'v_sub_u32 v{vPFX}, v{vPFX}, v{vSEGLO}')
    a('s_branch K2_ROUND_IN')
    a.label('K2_ROUND')
    a('s_barrier')
    a.label('K2_ROUND_IN')
    a('v_lshlrev_b32 v18, 4, v0')
    a('v_mov_b32 v24, 0\nv_mov_b32 v25, 0\nv_mov_b32 v26, 0\nv_mov_b32 v27, 0')
    a(f'v_add_u32 v19, {CNT}, v18')
    a('v_cmp_gt_u32 vcc, 24, v0')
    a(f's_and_saveexec_b64 s[{sEX}:{sEX+1}], vcc')
    a('ds_write_b128 v19, v[24:27]')
    a(f's_mov_b64 exec, s[{sEX}:{sEX+1}]')
    a(f'v_subrev_u32 v30, s{sF0}, v{vPFX}')
    a('v_sub_u32 v31, 0, v30')
    a('v_max_i32 v31, 0, v31')
    a(f'v_sub_u32 v32, s{sW}, v30')
    a(f'v_min_i32 v32, v32, v{vSEGLO}')
    a('v_add_u32 v33, v30, v31')
    a('v_lshlrev_b32 v33, 2, v33')
    a(f'v_add_u32 v33, s{sGS}, v33')
    a(f'v_add_lshl_u32 v28, v{vSEGHI}, v31, 2')
    a('v_sub_u32 v32, v32, v31')
    a.label('K2_MK')
    a('v_cmp_lt_i32 vcc, 0, v32')
    a('s_cbranch_vccz K2_MK_DONE')
    a(f's_and_saveexec_b64 s[{sEX}:{sEX+1}], vcc')
    a('ds_write_b32 v33, v28')
    a('v_add_u32 v29, 4, v28')
    a('v_cmp_lt_i32 vcc, 1, v32')
    a('s_and_b64 exec, exec, vcc')
    a('ds_write_b32 v33, v29 offset:4')
    a(f's_mov_b64 exec, s[{sEX}:{sEX+1}]')
    a('v_add_u32 v33, 8, v33')
    a('v_add_u32 v28, 8, v28')
    a('v_subrev_u32 v32, 2, v32')
    a('s_branch K2_MK')
    a.label('K2_MK_DONE')
    dma_pos(a, NP1, NP1+NP2, 'P2')
    a(f's_sub_i32 s{sT}, s{sTOT}, s{sF0}')
    a(f's_max_i32 s{sT}, s{sT}, 0')
    a(f's_min_i32 s{sNV}, s{sT}, s{sW}')
    a(f's_cmp_gt_i32 s{sT}, s{sW}')
    a(f's_cselect_b32 s{sMORE}, 1, 0')
    U = WCAP // 64
    a(f'v_lshl_add_u32 v30, v{vLANE}, 2, v{vGSW}')
    RIDX = lambda u: 116 + u
    for u in range(U):
        a(f'ds_read_b32 v{RIDX(u)}, v30 offset:{256*u}')
    for u in range(U):
        a(f's_sub_i32 s{sT}, s{sNV}, {64*u}')
        a(f'v_cmp_gt_i32 s[{sMK+2*u}:{sMK+2*u+1}], s{sT}, v{vLANE}')
    dma_pos(a, NP1+NP2, 10, 'P3')
    a(f's_mov_b32 s{sT2}, {G.REC_OFF}')
    RR = lambda u: 136 + u
    a(f's_mov_b64 s[{sEX}:{sEX+1}], exec')
    for u in range(U):
        a(f's_waitcnt lgkmcnt({U-1-u})')
        a(f's_mov_b64 exec, s[{sMK+2*u}:{sMK+2*u+1}]')
        a(f'buffer_load_dword v{RR(u)}, v{RIDX(u)}, s[{sWS}:{sWS+3}], s{sT2} offen')
    a(f's_mov_b64 exec, s[{sEX}:{sEX+1}]')
    dma_const(a, 'C')
    if NPF > 0:
        a(f's_lshr_b32 s{sT}, s2, 3')
        a(f's_lshl_b32 s{sT}, s{sT}, 17')
        a(f's_lshl_b32 s{sT+1}, s{sWAVE}, 14')
        a(f's_add_u32 s{sT}, s{sT}, s{sT+1}')
        a(f'v_lshlrev_b32 v35, 4, v{vLANE}')
        for i in range(NPF):
            a(f'buffer_load_dwordx4 v[{184+4*(i%16)}:{187+4*(i%16)}], v35, s[{sTAB}:{sTAB+3}], s{sT} offen offset:{(i%4)*1024}')
            if i % 4 == 3: a(f's_add_u32 s{sT}, s{sT}, 4096')
    a('s_waitcnt lgkmcnt(0)')
    mark(a)
    a('s_barrier')
    a(f's_cmp_eq_u32 s{sFIRST}, 1')
    a('s_cbranch_scc1 K2_WREC1')
    a('s_waitcnt vmcnt(0)')
    a('s_branch K2_WREC2')
    a.label('K2_WREC1')
    a(f's_waitcnt vmcnt({7+NPF})')
    a.label('K2_WREC2')
    mark(a)
    DL = lambda u: 92 + u
    RK = lambda u: 102 + u
    a('v_mov_b32 v28, 1')
    for u in range(U):
        a(f's_cmp_eq_u64 s[{sMK+2*u}:{sMK+2*u+1}], 0')
        a('s_cbranch_scc1 K2_AT_DONE')
        a(f's_mov_b64 exec, s[{sMK+2*u}:{sMK+2*u+1}]')
        a(f'v_lshrrev_b32 v{DL(u)}, 16, v{RR(u)}')
        a(f'v_subrev_u32 v{DL(u)}, s{sN0}, v{DL(u)}')
        a(f'v_lshlrev_b32 v36, 2, v{DL(u)}')
        a(f'v_add_u32 v36, {CNT}, v36')
        a(f'ds_add_rtn_u32 v{RK(u)}, v36, v28')
    a.label('K2_AT_DONE')
    a('s_waitcnt lgkmcnt(0)')
    a(f's_mov_b64 s[{sOVF}:{sOVF+1}], 0')
    for u in range(U):
        a(f's_cmp_eq_u64 s[{sMK+2*u}:{sMK+2*u+1}], 0')
        a('s_cbranch_scc1 K2_PL_DONE')
        a(f's_mov_b64 exec, s[{sMK+2*u}:{sMK+2*u+1}]')
        a(f'v_cmp_gt_u32 vcc, 128, v{RK(u)}')
        a(f'v_lshl_add_u32 v34, v{DL(u)}, 7, v{RK(u)}')
        a(f's_andn2_b64 s[{sT}:{sT+1}], exec, vcc')
        a(f's_or_b64 s[{sOVF}:{sOVF+1}], s[{sOVF}:{sOVF+1}], s[{sT}:{sT+1}]')
        a('s_and_b64 exec, exec, vcc')
        a('v_lshlrev_b32 v34, 1, v34')
        a(f'ds_write_b16 v34, v{RR(u)}')
    a.label('K2_PL_DONE')
    a(f's_mov_b64 exec, s[{sEX}:{sEX+1}]')
    a(f'v_mov_b32 v35, {MISC}')
    a(f's_cmp_eq_u64 s[{sOVF}:{sOVF+1}], 0')
    a('s_cbranch_scc1 K2_NOOVF')
    a('ds_write_b32 v35, v28 offset:4')
    a.label('K2_NOOVF')
    a(f's_cmp_eq_u32 s{sMORE}, 0')
    a('s_cbranch_scc1 K2_NOMORE')
    a('ds_write_b32 v35, v28 offset:8')
    a.label('K2_NOMORE')
    a('s_waitcnt lgkmcnt(0)')
    mark(a)
    a('s_barrier')
    a('ds_read_b32 v30, v35 offset:4')
    a('ds_read_b32 v31, v35 offset:8')
    a(f'v_lshrrev_b32 v32, 5, v{vLANE}')
    a(f'v_and_b32 v33, 31, v{vLANE}')
    a(f's_lshl_b32 s{sT}, s{sWAVE}, 1')
    a(f'v_add_u32 v32, s{sT}, v32')
    for i in range(4):
        a(f'v_lshlrev_b32 v{40+i}, 2, v32')
        a(f'v_add_u32 v{40+i}, {CNT+64*i}, v{40+i}')
        a(f'ds_read_b32 v{44+i}, v{40+i}')
    a('s_waitcnt lgkmcnt(4)')
    a(f'v_readfirstlane_b32 s{sT}, v30')
    a(f'v_readfirstlane_b32 s{sMORE}, v31')
    a(f's_cmp_eq_u32 s{sT}, 0')
    a('s_cbranch_scc1 K2_GO')
    a('s_waitcnt vmcnt(0) lgkmcnt(0)')
    a(f's_lshr_b32 s{sW}, s{sW}, 1')
    a('s_branch K2_ROUND')
    a.label('K2_GO')
    a(f's_xor_b32 s{sRLAST}, s{sMORE}, 1')
    a(f'v_mov_b32 v36, {PADMARK}')
    a('s_waitcnt lgkmcnt(0)')
    for i in range(4):
        c = 44+i
        a(f'v_add_u32 v37, 31, v{c}')
        a('v_lshrrev_b32 v37, 5, v37')
        a('v_max_u32 v37, 1, v37')
        a('v_subrev_u32 v37, 1, v37')
        a('v_lshl_add_u32 v37, v37, 5, v33')
        a(f'v_cmp_ge_u32 vcc, v37, v{c}')
        a(f'v_add_u32 v38, {16*i}, v32')
        a(f'v_cmp_gt_u32 s[{sT}:{sT+1}], 50, v38')
        a(f's_and_b64 vcc, vcc, s[{sT}:{sT+1}]')
        a('v_lshl_add_u32 v37, v38, 7, v37')
        a('s_and_b64 exec, exec, vcc')
        a('v_lshlrev_b32 v39, 1, v37')
        a('ds_write_b16 v39, v36')
        a(f's_mov_b64 exec, s[{sEX}:{sEX+1}]')
    a(f's_waitcnt vmcnt({NPF}) lgkmcnt(0)')
    mark(a)
    a('s_barrier')
    mark(a)
    a(f'v_mov_b32 v{vT0}, {MISC}')
    a(f'v_mov_b32 v{vT1}, 1')
    a('s_mov_b64 exec, 1')
    a(f'ds_add_rtn_u32 v{vM1}, v{vT0}, v{vT1}')
    a(f'ds_add_rtn_u32 v{vM2}, v{vT0}, v{vT1}')
    a(f's_mov_b64 exec, s[{sEX}:{sEX+1}]')
    a('s_waitcnt lgkmcnt(0)')
    a(f'v_readfirstlane_b32 s{sJC}, v{vM1}')
    a(f'v_readfirstlane_b32 s{sJN}, v{vM2}')
    a(f's_cmp_ge_u32 s{sJC}, s{sNN}')
    a('s_cbranch_scc1 K2_WAVE_DONE')
    a(f's_lshl_b32 s{sT}, s{sJC}, 2')
    a(f's_add_u32 s{sT}, s{sT}, {CNT}')
    a(f'v_mov_b32 v{vT2}, s{sT}')
    a(f'ds_read_b32 v{vM1}, v{vT2}')
    a(f's_lshl_b32 s{sBASE}, s{sJC}, 7')
    a(f's_lshl_b32 s{sT}, s{sBASE}, 1')
    a(f'v_add_u32 v{vDSA}, s{sT}, v{vKGDS}')
    a(f'ds_read_b128 {rng(DS)}, v{vDSA}')
    for w in range(4): a(f'v_mov_b32 v{SV+w}, 0')
    a('s_waitcnt lgkmcnt(0)')
    a(f'v_readfirstlane_b32 s{sCNTN}, v{vM1}')
    ADDR = POOL + 16
    addr_calc(a, ADDR)
    for j in range(8):
        a(f'buffer_load_dwordx4 {rng(L0+4*j)}, v{ADDR+j}, s[{sTAB}:{sTAB+3}], 0 offen')
    for j in range(8):
        a(f'buffer_load_dwordx4 {rng(L1+4*j)}, v{ADDR+j}, s[{sTAB}:{sTAB+3}], 0 offen offset:256')
    sv_loads(a, sJC)
    a(f's_add_u32 s{sNSTC}, s{sCNTN}, 31')
    a(f's_lshr_b32 s{sNSTC}, s{sNSTC}, 5')
    a(f's_max_u32 s{sNSTC}, s{sNSTC}, 1')
    geometry(a, sJC, sCNTN, 'P')
    a.label('K2_NODE')
    mark(a)
    a(f's_mov_b32 s{sK}, 0')
    step(a, True)
    a(f's_cmp_eq_u32 s{sLAST}, 1')
    a('s_cbranch_scc1 K2_EPI')
    a.label('K2_STEP')
    a(f's_add_u32 s{sK}, s{sK}, 1')
    step(a, False)
    a(f's_cmp_eq_u32 s{sLAST}, 1')
    a('s_cbranch_scc0 K2_STEP')
    a.label('K2_EPI')
    mark(a)
    a.safe()
    epilogue(a)
    sv_loads(a, sJN)
    a(f's_min_u32 s{sJC}, s{sJN}, 49')
    geometry(a, sJC, sCNTN, 'E')
    a(f's_mov_b32 s{sJC}, s{sJN}')
    a(f's_mov_b32 s{sNSTC}, s{sNSTN}')
    a(f's_mov_b32 s{sJN}, s{sJNN}')
    a(f's_cmp_lt_u32 s{sJC}, s{sNN}')
    a('s_cbranch_scc1 K2_NODE')
    a.label('K2_WAVE_DONE')
    a(f's_cmp_eq_u32 s{sRLAST}, 1')
    a('s_cbranch_scc1 K2_END')
    a('s_waitcnt vmcnt(0) lgkmcnt(0)')
    a(f's_mov_b32 s{sFIRST}, 0')
    a(f's_add_u32 s{sF0}, s{sF0}, s{sW}')
    a(f's_lshl_b32 s{sW}, s{sW}, 1')
    a(f's_min_u32 s{sW}, s{sW}, {WCAP}')
    a('s_branch K2_ROUND')
    a.label('K2_END')
    if STAMP:
        a(f's_cmp_ge_u32 s2, {G.NB}')
        a('s_cbranch_scc1 K2_END2')
        a('s_waitcnt vmcnt(0)')
        mark(a); mark(a, True)
        dump(a)
        a.label('K2_END2')
    a('s_endpgm')
    return True
```

```python
import sys, os
from asmlib import Asm

NAME = 'gather_scatter__molecular_angular_painn__graph'
N = 12500; E = 800000
NCH = 250; CHE = 3200; NB = 256
TAB_OFF = 0; TAB_SZ = N * 512
CIMG_OFF = 0x620000
SEG_OFF = 0x630000
REC_OFF = 0x700000
PART_OFF = 0x1400000
WS_USED = 0x2040000
NODE_WGS = 196
K1_GRID = NCH + NODE_WGS + 2
GT_OFF = 0x628000
GT_T0 = 0x3D80
GT_ROWS = 801
K1_LDS = 16384
HIST = 12800
MASKHI = 0xffff0000

def srd(a, d, base, size):
    a(f's_mov_b32 s{d}, s{base}')
    a(f's_and_b32 s{d+1}, s{base+1}, 0xffff')
    a(f's_mov_b32 s{d+2}, {size}')
    a(f's_mov_b32 s{d+3}, 0x20000')

def srd_off(a, d, base, off, size):
    a(f's_add_u32 s{d}, s{base}, {off}')
    a(f's_addc_u32 s{d+1}, s{base+1}, 0')
    a(f's_and_b32 s{d+1}, s{d+1}, 0xffff')
    a(f's_mov_b32 s{d+2}, {size}')
    a(f's_mov_b32 s{d+3}, 0x20000')

import os
STAMP = os.environ.get('STAMP','0') == '1'
STAMP_OFF = 0x3000000
class Stamper:
    def __init__(self, a, base, wsreg, kid):
        self.a=a; self.base=base; self.n=0; self.ws=wsreg; self.kid=kid
    def mark(self, real=False):
        if not STAMP: return
        a=self.a
        r=self.base+2*self.n
        a(f"{'s_memrealtime' if real else 's_memtime'} s[{r}:{r+1}]")
        a('s_waitcnt lgkmcnt(0)')
        self.n+=1
    def dump(self, vt0, wgreg='s2'):
        if not STAMP: return
        a=self.a
        b=self.base+2*self.n
        b=(b+3)//4*4
        a(f's_add_u32 s{b}, s{self.ws}, {STAMP_OFF+self.kid*0x100000}')
        a(f's_addc_u32 s{b+1}, s{self.ws+1}, 0')
        a(f's_and_b32 s{b+1}, s{b+1}, 0xffff')
        a(f's_mov_b32 s{b+2}, 0x100000')
        a(f's_mov_b32 s{b+3}, 0x20000')
        a('s_mov_b64 exec, 1')
        a(f'v_lshrrev_b32 v{vt0}, 6, v0')
        a(f'v_lshlrev_b32 v{vt0}, 7, v{vt0}')
        a(f's_lshl_b32 s{b+4}, {wgreg}, 11')
        a(f'v_add_u32 v{vt0}, s{b+4}, v{vt0}')
        for i in range(self.n):
            a(f'v_mov_b32 v{vt0+1}, s{self.base+2*i}')
            a(f'buffer_store_dword v{vt0+1}, v{vt0}, s[{b}:{b+3}], 0 offen offset:{4*i}')
        a('s_waitcnt vmcnt(0)')

def gen_k1(a):
    a.raw('.globl k1_kernel\n.p2align 8\n.type k1_kernel,@function')
    a.label('k1_kernel')
    a('s_load_dwordx4 s[4:7], s[0:1], 0')
    a('s_load_dwordx4 s[8:11], s[0:1], 16')
    a('s_load_dwordx4 s[12:15], s[0:1], 32')
    a('s_load_dwordx4 s[16:19], s[0:1], 48')
    a('s_load_dwordx2 s[20:21], s[0:1], 80')
    a(f's_cmp_ge_u32 s2, {K1_GRID}')
    a('s_cbranch_scc1 K1_END')
    a('s_mov_b32 s22, 0xffff0000')
    a('s_mov_b32 s47, 0x40a00000')
    a('s_mov_b32 s99, s2')
    a('s_waitcnt lgkmcnt(0)')
    if os.environ.get('EDGEFIRST','0') == '1':
        a(f's_add_u32 s23, s2, {NODE_WGS+2}')
        a(f's_sub_u32 s2, s2, {NCH}')
        a(f's_cmp_lt_u32 s23, {NCH+NODE_WGS+2}')
        a('s_cselect_b32 s2, s23, s2')
    a(f's_cmp_lt_u32 s2, {NODE_WGS+2}')
    a('s_cbranch_scc1 K1_NOTEDGE')
    a(f's_sub_u32 s2, s2, {NODE_WGS+2}')
    srd(a, 24, 8, E*4); srd(a, 28, 10, E*4); srd(a, 36, 20, WS_USED)
    st = Stamper(a, 48, 20, 0)
    st.mark(True); st.mark()
    a(f's_mul_i32 s3, s2, {CHE*4}')
    a('v_lshlrev_b32 v1, 4, v0')
    a('v_cmp_gt_u32 vcc, 400, v0')
    a('s_and_saveexec_b64 s[40:41], vcc')
    a('s_mov_b64 s[42:43], exec')
    a('buffer_load_dwordx4 v[4:7], v1, s[28:31], s3 offen')
    a('buffer_load_dwordx4 v[12:15], v1, s[24:27], s3 offen')
    a(f's_add_u32 s4, s3, {1600*4}')
    a('buffer_load_dwordx4 v[8:11], v1, s[28:31], s4 offen')
    a('buffer_load_dwordx4 v[16:19], v1, s[24:27], s4 offen')
    a('s_mov_b64 exec, s[40:41]')
    a('v_mov_b32 v60, 0\nv_mov_b32 v61, 0\nv_mov_b32 v62, 0\nv_mov_b32 v63, 0')
    a('v_cmp_gt_u32 vcc, 64, v0')
    a('s_and_saveexec_b64 s[44:45], vcc')
    a(f'v_add_u32 v2, {HIST}, v1')
    a('ds_write_b128 v2, v[60:63]')
    a('s_mov_b64 exec, s[40:41]')
    a('s_mov_b32 s46, 87960931')
    a('v_mov_b32 v40, 1')
    a('s_waitcnt lgkmcnt(0)')
    a('s_barrier')
    st.mark()
    a('s_mov_b64 exec, s[42:43]')
    DST = lambda e: 4+e
    SRC = lambda e: 12+e
    BK = lambda e: 20+e
    RK = lambda e: 28+e
    REC = lambda e: 44+e
    for e in range(8):
        if e == 0: a('s_waitcnt vmcnt(3)')
        if e == 4: a('s_waitcnt vmcnt(1)')
        a(f'v_mul_hi_u32 v{BK(e)}, v{DST(e)}, s46')
        a(f'v_lshlrev_b32 v{BK(e)}, 2, v{BK(e)}')
        a(f'v_add_u32 v{BK(e)}, {HIST}, v{BK(e)}')
        a(f'ds_add_rtn_u32 v{RK(e)}, v{BK(e)}, v40')
    a('s_waitcnt vmcnt(0)')
    for e in range(8):
        a(f'v_lshl_or_b32 v{REC(e)}, v{DST(e)}, 16, v{SRC(e)}')
    a('s_mov_b64 exec, s[40:41]')
    a('s_waitcnt lgkmcnt(0)')
    st.mark()
    a('s_barrier')
    st.mark()
    a('v_lshrrev_b32 v1, 6, v0')
    a('v_readfirstlane_b32 s4, v1')
    a('s_cmp_lg_u32 s4, 0')
    a('s_cbranch_scc1 K1_E_SCANDONE')
    a('v_lshlrev_b32 v1, 4, v0')
    a(f'v_add_u32 v2, {HIST}, v1')
    a('ds_read_b128 v[80:83], v2')
    a('s_waitcnt lgkmcnt(0)')
    a('v_add_u32 v84, v80, v81')
    a('v_add_u32 v85, v84, v82')
    a('v_add_u32 v86, v85, v83')
    a('v_mov_b32 v87, v86')
    for sh in (1, 2, 4, 8):
        a(f'v_add_u32_dpp v87, v87, v87 row_shr:{sh} row_mask:0xf bank_mask:0xf')
    a('v_add_u32_dpp v87, v87, v87 row_bcast:15 row_mask:0xa bank_mask:0xf')
    a('v_add_u32_dpp v87, v87, v87 row_bcast:31 row_mask:0xc bank_mask:0xf')
    a('v_sub_u32 v88, v87, v86')
    a('v_add_u32 v89, v88, v80')
    a('v_add_u32 v90, v88, v84')
    a('v_add_u32 v91, v88, v85')
    a('ds_write_b128 v2, v[88:91]')
    a('v_lshlrev_b32 v1, 12, v0')
    a('s_lshl_b32 s4, s2, 2')
    a(f's_add_u32 s4, s4, {SEG_OFF}')
    for i in range(4):
        a(f'v_lshl_or_b32 v{92+i}, v{80+i}, 16, v{88+i}')
        a(f'buffer_store_dword v{92+i}, v1, s[36:39], s4 offen offset:{1024*i}')
    a('s_waitcnt lgkmcnt(0)')
    a.label('K1_E_SCANDONE')
    a('s_barrier')
    st.mark()
    a('s_mov_b64 exec, s[42:43]')
    for e in range(8):
        a(f'ds_read_b32 v{BK(e)}, v{BK(e)}')
    for e in range(8):
        a(f's_waitcnt lgkmcnt({7-e})')
        a(f'v_add_lshl_u32 v{BK(e)}, v{BK(e)}, v{RK(e)}, 2')
        a(f'ds_write_b32 v{BK(e)}, v{REC(e)}')
    a('s_mov_b64 exec, s[40:41]')
    a('s_waitcnt lgkmcnt(0)')
    a('s_barrier')
    st.mark()
    a('v_lshlrev_b32 v1, 4, v0')
    a(f's_mul_i32 s4, s2, {CHE*4}')
    a(f's_add_u32 s4, s4, {REC_OFF}')
    a('ds_read_b128 v[80:83], v1')
    a('v_cmp_gt_u32 vcc, 288, v0')
    a('s_and_saveexec_b64 s[44:45], vcc')
    a('ds_read_b128 v[84:87], v1 offset:8192')
    a('s_mov_b64 exec, s[40:41]')
    a('s_waitcnt lgkmcnt(0)')
    a('buffer_store_dwordx4 v[80:83], v1, s[36:39], s4 offen')
    a('s_add_u32 s4, s4, 8192')
    a('s_mov_b64 exec, s[44:45]') if False else None
    a('v_cmp_gt_u32 vcc, 288, v0')
    a('s_and_saveexec_b64 s[44:45], vcc')
    a('buffer_store_dwordx4 v[84:87], v1, s[36:39], s4 offen')
    if STAMP:
        st.mark()
        a('s_waitcnt vmcnt(0)')
        st.mark(); st.mark(True)
        st.dump(110, 's99')
    a('s_endpgm')

    a.label('K1_NOTEDGE')
    a(f's_cmp_ge_u32 s2, {NODE_WGS}')
    a('s_cbranch_scc1 K1_CONST')
    srd(a, 24, 4, N*512); srd(a, 28, 14, 64*64*2); srd(a, 32, 16, 64*192*2); srd(a, 36, 20, TAB_SZ)
    st = Stamper(a, 48, 20, 0)
    st.mark(True); st.mark()
    a('v_lshlrev_b32 v1, 4, v0')
    a('buffer_load_dwordx4 v[4:7], v1, s[28:31], 0 offen')
    a('v_lshrrev_b32 v2, 3, v0')
    a('v_mul_u32_u24 v2, 384, v2')
    a('v_and_b32 v3, 7, v0')
    a('v_lshl_add_u32 v2, v3, 4, v2')
    a('buffer_load_dwordx4 v[8:11], v2, s[32:35], 0 offen offset:128')
    a('s_barrier')
    a('v_and_b32 v12, 63, v0')
    a('v_lshrrev_b32 v13, 6, v0')
    a('v_and_b32 v14, 15, v12')
    a('v_lshrrev_b32 v15, 4, v12')
    a('s_lshl_b32 s3, s2, 6')
    a('v_lshl_add_u32 v16, v13, 4, v14')
    a('v_add_u32 v16, s3, v16')
    a('v_lshlrev_b32 v17, 9, v16')
    a('v_lshl_add_u32 v18, v15, 4, v17')
    a('v_readfirstlane_b32 s4, v13')
    a('s_cmp_ge_u32 s4, 4')
    a('s_cbranch_scc1 K1_N_HELP')
    a('buffer_load_dwordx4 v[20:23], v18, s[24:27], 0 offen')
    a('buffer_load_dwordx4 v[24:27], v18, s[24:27], 0 offen offset:64')
    VV = lambda k, t2: 28 + 4*(2*k+t2)
    for k in range(3):
        for t2 in range(2):
            a(f'buffer_load_dwordx4 v[{VV(k,t2)}:{VV(k,t2)+3}], v18, s[24:27], 0 offen offset:{128*(k+1)+64*t2}')
    a('s_waitcnt vmcnt(8)')
    a('s_branch K1_N_W')
    a.label('K1_N_HELP')
    a('s_waitcnt vmcnt(0)')
    a('ds_write_b128 v1, v[4:7]')
    a('ds_write_b128 v1, v[8:11] offset:8192')
    a('s_waitcnt lgkmcnt(0)')
    a('s_barrier')
    a('s_endpgm')
    a.label('K1_N_W')
    a('ds_write_b128 v1, v[4:7]')
    a('ds_write_b128 v1, v[8:11] offset:8192')
    a('v_lshrrev_b32 v2, 2, v14')
    a('v_and_b32 v3, 3, v14')
    a('v_lshl_add_u32 v4, v15, 3, v2')
    a('v_lshlrev_b32 v4, 7, v4')
    a('v_lshl_add_u32 v4, v3, 4, v4')
    a('s_waitcnt lgkmcnt(0)')
    st.mark()
    a('s_barrier')
    st.mark()
    def rd_ops(base):
        for t in range(4):
            t2, b = t >> 1, t & 1
            for kp in range(2):
                r = 52 + 4*(2*t+kp)
                o = base + kp*4096 + 64*t2 + 8*b
                a(f'ds_read_b64_tr_b16 v[{r}:{r+1}], v4 offset:{o}')
                a(f'ds_read_b64_tr_b16 v[{r+2}:{r+3}], v4 offset:{o+512}')
    rd_ops(0)
    a('s_waitcnt vmcnt(6) lgkmcnt(0)')
    D1 = lambda t: 84 + 4*t
    for t in range(4):
        a(f'v_mfma_f32_16x16x32_bf16 v[{D1(t)}:{D1(t)+3}], v[{52+8*t}:{55+8*t}], v[20:23], 0')
    for t in range(4):
        a(f'v_mfma_f32_16x16x32_bf16 v[{D1(t)}:{D1(t)+3}], v[{56+8*t}:{59+8*t}], v[24:27], v[{D1(t)}:{D1(t)+3}]')
    rd_ops(8192)
    HP = lambda t: 100 + 2*t
    for t in range(4):
        for hq in range(2):
            x, y = D1(t)+2*hq, D1(t)+2*hq+1
            t7, t8 = (7, 8) if hq == 0 else (9, 10)
            a(f'v_cvt_pk_bf16_f32 v6, v{x}, v{y}')
            a(f'v_lshlrev_b32 v{x}, 16, v6')
            a(f'v_and_b32 v{y}, s22, v6')
            a(f'v_mul_f32 v{t7}, 0xbfb8aa3b, v{x}')
            a(f'v_mul_f32 v{t8}, 0xbfb8aa3b, v{y}')
            a(f'v_exp_f32 v{t7}, v{t7}')
            a(f'v_exp_f32 v{t8}, v{t8}')
            a(f'v_add_f32 v{t7}, 1.0, v{t7}')
            a(f'v_add_f32 v{t8}, 1.0, v{t8}')
            a(f'v_rcp_f32 v{t7}, v{t7}')
            a(f'v_rcp_f32 v{t8}, v{t8}')
            a(f'v_mul_f32 v{t7}, v{t7}, v{x}')
            a(f'v_mul_f32 v{t8}, v{t8}, v{y}')
            a(f'v_cvt_pk_bf16_f32 v{HP(t)+hq}, v{t7}, v{t8}')
    a('s_waitcnt lgkmcnt(0)')
    D2 = lambda t: 84 + 4*t
    for t in range(4):
        a(f'v_mfma_f32_16x16x32_bf16 v[{D2(t)}:{D2(t)+3}], v[{52+8*t}:{55+8*t}], v[100:103], 0')
    for t in range(4):
        a(f'v_mfma_f32_16x16x32_bf16 v[{D2(t)}:{D2(t)+3}], v[{56+8*t}:{59+8*t}], v[104:107], v[{D2(t)}:{D2(t)+3}]')
    a('s_waitcnt vmcnt(0)')
    a('v_lshl_add_u32 v18, v15, 5, v17')
    for t in range(4):
        t2, b = t >> 1, t & 1
        for hq in range(2):
            x, y = D2(t)+2*hq, D2(t)+2*hq+1
            a(f'v_cvt_pk_bf16_f32 v6, v{x}, v{y}')
            a(f'v_lshlrev_b32 v{x}, 16, v6')
            a(f'v_and_b32 v{y}, s22, v6')
        o = 52 + 8*t
        for k in range(3):
            for hq in range(2):
                vr = VV(k,t2)+2*b+hq
                t7, t8 = (7, 8) if hq == 0 else (9, 10)
                a(f'v_lshlrev_b32 v{t7}, 16, v{vr}')
                a(f'v_and_b32 v{t8}, s22, v{vr}')
                a(f'v_mul_f32 v{t7}, v{t7}, v{D2(t)+2*hq}')
                a(f'v_mul_f32 v{t8}, v{t8}, v{D2(t)+2*hq+1}')
                a(f'v_cvt_pk_bf16_f32 v{o+2*k+hq}, v{t7}, v{t8}')
        a(f'v_mov_b32 v{o+6}, v{HP(t)}')
        a(f'v_mov_b32 v{o+7}, v{HP(t)+1}')
        a(f'buffer_store_dwordx4 v[{o}:{o+3}], v18, s[36:39], 0 offen offset:{128*t2+16*b}')
        a(f'buffer_store_dwordx4 v[{o+4}:{o+7}], v18, s[36:39], 0 offen offset:{256+128*t2+16*b}')
    if STAMP:
        st.mark()
        a('s_waitcnt vmcnt(0)')
        st.mark(); st.mark(True)
        st.dump(110, 's99')
    a('s_endpgm')

    a.label('K1_CONST')
    a(f's_cmp_eq_u32 s2, {NODE_WGS+1}')
    a('s_cbranch_scc1 K1_GT')
    srd(a, 28, 18, 16*192*2); srd(a, 32, 16, 64*192*2); srd_off(a, 36, 20, CIMG_OFF, 28672)
    a('v_and_b32 v1, 63, v0')
    a('v_and_b32 v2, 15, v1')
    a('v_lshrrev_b32 v3, 4, v1')
    a('v_bfe_u32 v4, v0, 6, 2')
    a('v_bfe_u32 v5, v0, 8, 1')
    a('v_lshlrev_b32 v6, 4, v3')
    a('v_lshl_add_u32 v6, v5, 1, v6')
    a('v_mul_u32_u24 v6, 384, v6')
    a('v_lshl_add_u32 v7, v2, 2, v4')
    a('v_lshl_add_u32 v6, v7, 1, v6')
    for part in range(2):
        for jj in range(8):
            off = (4*(jj & 3) + (jj >> 2))*384 + 256*part
            a(f'v_add_u32 v8, {off}, v6')
            a(f'buffer_load_ushort v{16+8*part+jj}, v8, s[32:35], 0 offen')
    a('v_lshlrev_b32 v9, 2, v3')
    a('v_mul_u32_u24 v9, 384, v9')
    a('v_lshl_add_u32 v9, v7, 1, v9')
    a('v_lshl_add_u32 v10, v5, 7, v9')
    for q in range(4):
        a(f'buffer_load_ushort v{32+q}, v10, s[28:31], 0 offen offset:{q*384}')
    for q in range(4):
        a(f'buffer_load_ushort v{36+q}, v9, s[28:31], 0 offen offset:{q*384+256}')
    a('s_waitcnt vmcnt(0)')
    a('v_lshlrev_b32 v11, 4, v0')
    for part in range(2):
        for h in range(4):
            a(f'v_lshl_or_b32 v{40+4*part+h}, v{16+8*part+2*h+1}, 16, v{16+8*part+2*h}')
        a(f'buffer_store_dwordx4 v[{40+4*part}:{43+4*part}], v11, s[36:39], 0 offen') if part == 0 else None
    a('v_add_u32 v12, 8192, v11')
    a('buffer_store_dwordx4 v[44:47], v12, s[36:39], 0 offen')
    for q in range(8):
        a(f'v_lshlrev_b32 v{32+q}, 16, v{32+q}')
    a('v_add_u32 v12, 16384, v11')
    a('buffer_store_dwordx4 v[32:35], v12, s[36:39], 0 offen')
    a('v_cmp_gt_u32 vcc, 256, v0')
    a('s_and_saveexec_b64 s[44:45], vcc')
    a('v_add_u32 v12, 24576, v11')
    a('buffer_store_dwordx4 v[36:39], v12, s[36:39], 0 offen')
    a('s_endpgm')
    a.label('K1_GT')
    srd_off(a, 36, 20, GT_OFF, GT_ROWS*32)
    a('s_load_dwordx8 s[24:31], s[12:13], 0')
    a('s_waitcnt lgkmcnt(0)')
    for it in range(2):
        a(f'v_add_u32 v1, {512*it}, v0')
        a(f'v_add_u32 v2, {GT_T0-1}, v1')
        a('v_lshlrev_b32 v2, 16, v2')
        def rnd1(x):
            a(f'v_cvt_pk_bf16_f32 v{x}, v{x}, v{x}')
            a(f'v_and_b32 v{x}, s22, v{x}')
        a('v_rcp_f32 v3, v2')
        a('v_mul_f32 v4, 0x40490fdb, v2'); rnd1(4)
        a('v_mul_f32 v4, 0x3e4ccccd, v4'); rnd1(4)
        a('v_mul_f32 v4, 0.15915494, v4')
        a('v_cos_f32 v4, v4'); rnd1(4)
        a('v_add_f32 v4, 1.0, v4'); rnd1(4)
        a('v_mul_f32 v3, 0.5, v3')
        a('v_mul_f32 v4, v4, v3')
        a('v_cmp_eq_u32 vcc, 0, v1')
        a('v_cndmask_b32 v4, v4, 0, vcc') if False else None
        a('v_mov_b32 v5, 0')
        a('v_cndmask_b32 v4, v4, v5, vcc')
        a('v_cndmask_b32 v2, v2, v5, vcc')
        for h in range(8):
            a(f's_lshl_b32 s4, s{24+h}, 16')
            a(f's_and_b32 s5, s{24+h}, s22')
            a('v_mul_f32 v6, s4, v2')
            a('v_mul_f32 v7, s5, v2')
            a('v_cvt_pk_bf16_f32 v8, v6, v7')
            a('v_lshlrev_b32 v6, 16, v8')
            a('v_and_b32 v7, s22, v8')
            a('v_mul_f32 v6, 0.15915494, v6')
            a('v_mul_f32 v7, 0.15915494, v7')
            a('v_sin_f32 v6, v6')
            a('v_sin_f32 v7, v7')
            a('v_mul_f32 v6, v6, v4')
            a('v_mul_f32 v7, v7, v4')
            a(f'v_cvt_pk_bf16_f32 v{16+h}, v6, v7')
        a('v_lshlrev_b32 v9, 5, v1')
        a('buffer_store_dwordx4 v[16:19], v9, s[36:39], 0 offen')
        a('buffer_store_dwordx4 v[20:23], v9, s[36:39], 0 offen offset:16')
        a('s_nop 2')
    a.label('K1_END')
    a('s_endpgm')

def kd(name, vgpr, sgpr):
    return f'''.amdhsa_kernel {name}
  .amdhsa_next_free_vgpr {vgpr}
  .amdhsa_next_free_sgpr {sgpr}
  .amdhsa_accum_offset {(vgpr+3)//4*4}
  .amdhsa_group_segment_fixed_size 0
  .amdhsa_kernarg_size 88
  .amdhsa_user_sgpr_count 2
  .amdhsa_user_sgpr_kernarg_segment_ptr 1
  .amdhsa_system_sgpr_workgroup_id_x 1
.end_amdhsa_kernel
'''

def main():
    import gen_k2
    a = Asm()
    gen_k1(a)
    k2 = gen_k2.gen_k2(a)
    hdr = open('cdna_kernels/%s.s.ref' % NAME).read().split('; Override')[0]
    hdr += f'; @launch kernel=k1_kernel grid=({K1_GRID},1,1) block=(512,1,1) lds={K1_LDS}\n'
    if k2:
        hdr += f'; @launch kernel=k2_kernel grid=({NB},1,1) block=(512,1,1) lds={gen_k2.K2_LDS}\n'
    hdr += '.amdgcn_target "amdgcn-amd-amdhsa--gfx950"\n.text\n'
    body = a.finish()
    tail = '.section .rodata,"a"\n.p2align 6\n' + kd('k1_kernel', 120, 102)
    if k2:
        tail += '.p2align 6\n' + kd('k2_kernel', 256, 102)
    out = sys.argv[1] if len(sys.argv) > 1 else 'cdna_kernels/%s.s' % NAME
    open(out, 'w').write(hdr + body + tail)
    print('wrote', out, 'nops inserted', a.nops_inserted)

if __name__ == '__main__':
    main()
```

```python
import sys, os
from asmlib import Asm

NAME = 'gather_scatter__molecular_angular_painn__graph'
N = 12500; E = 800000
NCH = 250; CHE = 3200; NB = 256
TAB_OFF = 0; TAB_SZ = N * 512
CIMG_OFF = 0x620000
SEG_OFF = 0x630000
REC_OFF = 0x700000
TAB2_OFF = 4800000
PART_OFF = 0x1400000
PART2_OFF = 0x1B00000
WS_USED = 0x2740000
NODE_WGS = 196
K1_GRID = NCH + NODE_WGS + 2
GT_OFF = 0x628000
GT_T0 = 0x3D80
GT_ROWS = 801
K1_LDS = 16384
HIST = 12800
MASKHI = 0xffff0000

def srd(a, d, base, size):
    a(f's_mov_b32 s{d}, s{base}')
    a(f's_and_b32 s{d+1}, s{base+1}, 0xffff')
    a(f's_mov_b32 s{d+2}, {size}')
    a(f's_mov_b32 s{d+3}, 0x20000')

def srd_off(a, d, base, off, size):
    a(f's_add_u32 s{d}, s{base}, {off}')
    a(f's_addc_u32 s{d+1}, s{base+1}, 0')
    a(f's_and_b32 s{d+1}, s{d+1}, 0xffff')
    a(f's_mov_b32 s{d+2}, {size}')
    a(f's_mov_b32 s{d+3}, 0x20000')

import os
STAMP = os.environ.get('STAMP','0') == '1'
STAMP_OFF = 0x3000000
class Stamper:
    def __init__(self, a, base, wsreg, kid):
        self.a=a; self.base=base; self.n=0; self.ws=wsreg; self.kid=kid
    def mark(self, real=False):
        if not STAMP: return
        a=self.a
        r=self.base+2*self.n
        a(f"{'s_memrealtime' if real else 's_memtime'} s[{r}:{r+1}]")
        a('s_waitcnt lgkmcnt(0)')
        self.n+=1
    def dump(self, vt0, wgreg='s2'):
        if not STAMP: return
        a=self.a
        b=self.base+2*self.n
        b=(b+3)//4*4
        a(f's_add_u32 s{b}, s{self.ws}, {STAMP_OFF+self.kid*0x100000}')
        a(f's_addc_u32 s{b+1}, s{self.ws+1}, 0')
        a(f's_and_b32 s{b+1}, s{b+1}, 0xffff')
        a(f's_mov_b32 s{b+2}, 0x100000')
        a(f's_mov_b32 s{b+3}, 0x20000')
        a('s_mov_b64 exec, 1')
        a(f'v_lshrrev_b32 v{vt0}, 6, v0')
        a(f'v_lshlrev_b32 v{vt0}, 7, v{vt0}')
        a(f's_lshl_b32 s{b+4}, {wgreg}, 11')
        a(f'v_add_u32 v{vt0}, s{b+4}, v{vt0}')
        for i in range(self.n):
            a(f'v_mov_b32 v{vt0+1}, s{self.base+2*i}')
            a(f'buffer_store_dword v{vt0+1}, v{vt0}, s[{b}:{b+3}], 0 offen offset:{4*i}')
        a('s_waitcnt vmcnt(0)')

def gen_k1(a):
    a.raw('.globl k1_kernel\n.p2align 8\n.type k1_kernel,@function')
    a.label('k1_kernel')
    a('s_load_dwordx4 s[4:7], s[0:1], 0')
    a('s_load_dwordx4 s[8:11], s[0:1], 16')
    a('s_load_dwordx4 s[12:15], s[0:1], 32')
    a('s_load_dwordx4 s[16:19], s[0:1], 48')
    a('s_load_dwordx2 s[20:21], s[0:1], 80')
    a(f's_cmp_ge_u32 s2, {K1_GRID}')
    a('s_cbranch_scc1 K1_END')
    a('s_mov_b32 s22, 0xffff0000')
    a('s_mov_b32 s47, 0x40a00000')
    a('s_mov_b32 s99, s2')
    a('s_waitcnt lgkmcnt(0)')
    if os.environ.get('EDGEFIRST','0') == '1':
        a(f's_add_u32 s23, s2, {NODE_WGS+2}')
        a(f's_sub_u32 s2, s2, {NCH}')
        a(f's_cmp_lt_u32 s23, {NCH+NODE_WGS+2}')
        a('s_cselect_b32 s2, s23, s2')
    a(f's_cmp_lt_u32 s2, {NODE_WGS+2}')
    a('s_cbranch_scc1 K1_NOTEDGE')
    a(f's_sub_u32 s2, s2, {NODE_WGS+2}')
    srd(a, 24, 8, E*4); srd(a, 28, 10, E*4); srd(a, 36, 20, WS_USED)
    st = Stamper(a, 48, 20, 0)
    st.mark(True); st.mark()
    a(f's_mul_i32 s3, s2, {CHE*4}')
    a('v_lshlrev_b32 v1, 4, v0')
    a('v_cmp_gt_u32 vcc, 400, v0')
    a('s_and_saveexec_b64 s[40:41], vcc')
    a('s_mov_b64 s[42:43], exec')
    a('buffer_load_dwordx4 v[4:7], v1, s[28:31], s3 offen')
    a('buffer_load_dwordx4 v[12:15], v1, s[24:27], s3 offen')
    a(f's_add_u32 s4, s3, {1600*4}')
    a('buffer_load_dwordx4 v[8:11], v1, s[28:31], s4 offen')
    a('buffer_load_dwordx4 v[16:19], v1, s[24:27], s4 offen')
    a('s_mov_b64 exec, s[40:41]')
    a('v_mov_b32 v60, 0\nv_mov_b32 v61, 0\nv_mov_b32 v62, 0\nv_mov_b32 v63, 0')
    a('v_cmp_gt_u32 vcc, 64, v0')
    a('s_and_saveexec_b64 s[44:45], vcc')
    a(f'v_add_u32 v2, {HIST}, v1')
    a('ds_write_b128 v2, v[60:63]')
    a('s_mov_b64 exec, s[40:41]')
    a('s_mov_b32 s46, 87960931')
    a('v_mov_b32 v40, 1')
    a('s_waitcnt lgkmcnt(0)')
    a('s_barrier')
    st.mark()
    a('s_mov_b64 exec, s[42:43]')
    DST = lambda e: 4+e
    SRC = lambda e: 12+e
    BK = lambda e: 20+e
    RK = lambda e: 28+e
    REC = lambda e: 44+e
    for e in range(8):
        if e == 0: a('s_waitcnt vmcnt(3)')
        if e == 4: a('s_waitcnt vmcnt(1)')
        a(f'v_mul_hi_u32 v{BK(e)}, v{DST(e)}, s46')
        a(f'v_lshlrev_b32 v{BK(e)}, 2, v{BK(e)}')
        a(f'v_add_u32 v{BK(e)}, {HIST}, v{BK(e)}')
        a(f'ds_add_rtn_u32 v{RK(e)}, v{BK(e)}, v40')
    a('s_waitcnt vmcnt(0)')
    for e in range(8):
        a(f'v_lshl_or_b32 v{REC(e)}, v{DST(e)}, 16, v{SRC(e)}')
    a('s_mov_b64 exec, s[40:41]')
    a('s_waitcnt lgkmcnt(0)')
    st.mark()
    a('s_barrier')
    st.mark()
    a('v_lshrrev_b32 v1, 6, v0')
    a('v_readfirstlane_b32 s4, v1')
    a('s_cmp_lg_u32 s4, 0')
    a('s_cbranch_scc1 K1_E_SCANDONE')
    a('v_lshlrev_b32 v1, 4, v0')
    a(f'v_add_u32 v2, {HIST}, v1')
    a('ds_read_b128 v[80:83], v2')
    a('s_waitcnt lgkmcnt(0)')
    a('v_add_u32 v84, v80, v81')
    a('v_add_u32 v85, v84, v82')
    a('v_add_u32 v86, v85, v83')
    a('v_mov_b32 v87, v86')
    for sh in (1, 2, 4, 8):
        a(f'v_add_u32_dpp v87, v87, v87 row_shr:{sh} row_mask:0xf bank_mask:0xf')
    a('v_add_u32_dpp v87, v87, v87 row_bcast:15 row_mask:0xa bank_mask:0xf')
    a('v_add_u32_dpp v87, v87, v87 row_bcast:31 row_mask:0xc bank_mask:0xf')
    a('v_sub_u32 v88, v87, v86')
    a('v_add_u32 v89, v88, v80')
    a('v_add_u32 v90, v88, v84')
    a('v_add_u32 v91, v88, v85')
    a('ds_write_b128 v2, v[88:91]')
    a('v_lshlrev_b32 v1, 12, v0')
    a('s_lshl_b32 s4, s2, 2')
    a(f's_add_u32 s4, s4, {SEG_OFF}')
    for i in range(4):
        a(f'v_lshl_or_b32 v{92+i}, v{80+i}, 16, v{88+i}')
        a(f'buffer_store_dword v{92+i}, v1, s[36:39], s4 offen offset:{1024*i}')
    a('s_waitcnt lgkmcnt(0)')
    a.label('K1_E_SCANDONE')
    a('s_barrier')
    st.mark()
    a('s_mov_b64 exec, s[42:43]')
    for e in range(8):
        a(f'ds_read_b32 v{BK(e)}, v{BK(e)}')
    for e in range(8):
        a(f's_waitcnt lgkmcnt({7-e})')
        a(f'v_add_lshl_u32 v{BK(e)}, v{BK(e)}, v{RK(e)}, 2')
        a(f'ds_write_b32 v{BK(e)}, v{REC(e)}')
    a('s_mov_b64 exec, s[40:41]')
    a('s_waitcnt lgkmcnt(0)')
    a('s_barrier')
    st.mark()
    a('v_lshlrev_b32 v1, 4, v0')
    a(f's_mul_i32 s4, s2, {CHE*4}')
    a(f's_add_u32 s4, s4, {REC_OFF}')
    a('ds_read_b128 v[80:83], v1')
    a('v_cmp_gt_u32 vcc, 288, v0')
    a('s_and_saveexec_b64 s[44:45], vcc')
    a('ds_read_b128 v[84:87], v1 offset:8192')
    a('s_mov_b64 exec, s[40:41]')
    a('s_waitcnt lgkmcnt(0)')
    a('buffer_store_dwordx4 v[80:83], v1, s[36:39], s4 offen')
    a('s_add_u32 s4, s4, 8192')
    a('s_mov_b64 exec, s[44:45]') if False else None
    a('v_cmp_gt_u32 vcc, 288, v0')
    a('s_and_saveexec_b64 s[44:45], vcc')
    a('buffer_store_dwordx4 v[84:87], v1, s[36:39], s4 offen')
    if STAMP:
        st.mark()
        a('s_waitcnt vmcnt(0)')
        st.mark(); st.mark(True)
        st.dump(110, 's99')
    a('s_endpgm')

    a.label('K1_NOTEDGE')
    a(f's_cmp_ge_u32 s2, {NODE_WGS}')
    a('s_cbranch_scc1 K1_CONST')
    srd(a, 24, 4, N*512); srd(a, 28, 14, 64*64*2); srd(a, 32, 16, 64*192*2); srd(a, 36, 20, TAB_SZ)
    st = Stamper(a, 48, 20, 0)
    st.mark(True); st.mark()
    a('v_lshlrev_b32 v1, 4, v0')
    a('buffer_load_dwordx4 v[4:7], v1, s[28:31], 0 offen')
    a('v_lshrrev_b32 v2, 3, v0')
    a('v_mul_u32_u24 v2, 384, v2')
    a('v_and_b32 v3, 7, v0')
    a('v_lshl_add_u32 v2, v3, 4, v2')
    a('buffer_load_dwordx4 v[8:11], v2, s[32:35], 0 offen offset:128')
    a('s_barrier')
    a('v_and_b32 v12, 63, v0')
    a('v_lshrrev_b32 v13, 6, v0')
    a('v_and_b32 v14, 15, v12')
    a('v_lshrrev_b32 v15, 4, v12')
    a('s_lshl_b32 s3, s2, 6')
    a('v_lshl_add_u32 v16, v13, 4, v14')
    a('v_add_u32 v16, s3, v16')
    a('v_lshlrev_b32 v17, 9, v16')
    a('v_lshl_add_u32 v18, v15, 4, v17')
    a('v_readfirstlane_b32 s4, v13')
    a('s_cmp_ge_u32 s4, 4')
    a('s_cbranch_scc1 K1_N_HELP')
    a('buffer_load_dwordx4 v[20:23], v18, s[24:27], 0 offen')
    a('buffer_load_dwordx4 v[24:27], v18, s[24:27], 0 offen offset:64')
    VV = lambda k, t2: 28 + 4*(2*k+t2)
    for k in range(3):
        for t2 in range(2):
            a(f'buffer_load_dwordx4 v[{VV(k,t2)}:{VV(k,t2)+3}], v18, s[24:27], 0 offen offset:{128*(k+1)+64*t2}')
    a('s_waitcnt vmcnt(8)')
    a('s_branch K1_N_W')
    a.label('K1_N_HELP')
    a('s_waitcnt vmcnt(0)')
    a('ds_write_b128 v1, v[4:7]')
    a('ds_write_b128 v1, v[8:11] offset:8192')
    a('s_waitcnt lgkmcnt(0)')
    a('s_barrier')
    a('s_endpgm')
    a.label('K1_N_W')
    a('ds_write_b128 v1, v[4:7]')
    a('ds_write_b128 v1, v[8:11] offset:8192')
    a('v_lshrrev_b32 v2, 2, v14')
    a('v_and_b32 v3, 3, v14')
    a('v_lshl_add_u32 v4, v15, 3, v2')
    a('v_lshlrev_b32 v4, 7, v4')
    a('v_lshl_add_u32 v4, v3, 4, v4')
    a('s_waitcnt lgkmcnt(0)')
    st.mark()
    a('s_barrier')
    st.mark()
    def rd_ops(base):
        for t in range(4):
            t2, b = t >> 1, t & 1
            for kp in range(2):
                r = 52 + 4*(2*t+kp)
                o = base + kp*4096 + 64*t2 + 8*b
                a(f'ds_read_b64_tr_b16 v[{r}:{r+1}], v4 offset:{o}')
                a(f'ds_read_b64_tr_b16 v[{r+2}:{r+3}], v4 offset:{o+512}')
    rd_ops(0)
    a('s_waitcnt vmcnt(6) lgkmcnt(0)')
    D1 = lambda t: 84 + 4*t
    for t in range(4):
        a(f'v_mfma_f32_16x16x32_bf16 v[{D1(t)}:{D1(t)+3}], v[{52+8*t}:{55+8*t}], v[20:23], 0')
    for t in range(4):
        a(f'v_mfma_f32_16x16x32_bf16 v[{D1(t)}:{D1(t)+3}], v[{56+8*t}:{59+8*t}], v[24:27], v[{D1(t)}:{D1(t)+3}]')
    rd_ops(8192)
    HP = lambda t: 100 + 2*t
    for t in range(4):
        for hq in range(2):
            x, y = D1(t)+2*hq, D1(t)+2*hq+1
            t7, t8 = (7, 8) if hq == 0 else (9, 10)
            a(f'v_cvt_pk_bf16_f32 v6, v{x}, v{y}')
            a(f'v_lshlrev_b32 v{x}, 16, v6')
            a(f'v_and_b32 v{y}, s22, v6')
            a(f'v_mul_f32 v{t7}, 0xbfb8aa3b, v{x}')
            a(f'v_mul_f32 v{t8}, 0xbfb8aa3b, v{y}')
            a(f'v_exp_f32 v{t7}, v{t7}')
            a(f'v_exp_f32 v{t8}, v{t8}')
            a(f'v_add_f32 v{t7}, 1.0, v{t7}')
            a(f'v_add_f32 v{t8}, 1.0, v{t8}')
            a(f'v_rcp_f32 v{t7}, v{t7}')
            a(f'v_rcp_f32 v{t8}, v{t8}')
            a(f'v_mul_f32 v{t7}, v{t7}, v{x}')
            a(f'v_mul_f32 v{t8}, v{t8}, v{y}')
            a(f'v_cvt_pk_bf16_f32 v{HP(t)+hq}, v{t7}, v{t8}')
    a('s_waitcnt lgkmcnt(0)')
    D2 = lambda t: 84 + 4*t
    for t in range(4):
        a(f'v_mfma_f32_16x16x32_bf16 v[{D2(t)}:{D2(t)+3}], v[{52+8*t}:{55+8*t}], v[100:103], 0')
    for t in range(4):
        a(f'v_mfma_f32_16x16x32_bf16 v[{D2(t)}:{D2(t)+3}], v[{56+8*t}:{59+8*t}], v[104:107], v[{D2(t)}:{D2(t)+3}]')
    a('s_waitcnt vmcnt(0)')
    a('v_mul_u32_u24 v18, 384, v16')
    a('v_lshl_add_u32 v19, v15, 4, v18')
    a('v_lshl_add_u32 v18, v15, 5, v18')
    a('v_lshlrev_b32 v17, 7, v16')
    a('v_lshl_add_u32 v17, v15, 4, v17')
    a(f's_mov_b32 s4, {TAB2_OFF}')
    a(f'v_mov_b32 v5, {N}')
    a('v_cmp_lt_u32 vcc, v16, v5')
    a('s_and_saveexec_b64 s[44:45], vcc')
    for t in range(4):
        t2, b = t >> 1, t & 1
        for hq in range(2):
            x, y = D2(t)+2*hq, D2(t)+2*hq+1
            a(f'v_cvt_pk_bf16_f32 v6, v{x}, v{y}')
            a(f'v_lshlrev_b32 v{x}, 16, v6')
            a(f'v_and_b32 v{y}, s22, v6')
        o = 52 + 8*t
        dst = {0: o, 1: o+4, 2: o+6}
        for k in range(3):
            for hq in range(2):
                vr = VV(k,t2)+2*b+hq
                t7, t8 = (7, 8) if hq == 0 else (9, 10)
                a(f'v_lshlrev_b32 v{t7}, 16, v{vr}')
                a(f'v_and_b32 v{t8}, s22, v{vr}')
                a(f'v_mul_f32 v{t7}, v{t7}, v{D2(t)+2*hq}')
                a(f'v_mul_f32 v{t8}, v{t8}, v{D2(t)+2*hq+1}')
                a(f'v_cvt_pk_bf16_f32 v{dst[k]+hq}, v{t7}, v{t8}')
        a(f'v_mov_b32 v{o+2}, v{HP(t)}')
        a(f'v_mov_b32 v{o+3}, v{HP(t)+1}')
        a(f'buffer_store_dwordx4 v[{o}:{o+3}], v18, s[36:39], 0 offen offset:{128*t2+16*b}')
        a(f'buffer_store_dwordx2 v[{o+4}:{o+5}], v19, s[36:39], 0 offen offset:{256+64*t2+8*b}')
        a(f'buffer_store_dwordx2 v[{o+6}:{o+7}], v17, s[36:39], s4 offen offset:{64*t2+8*b}')
    if STAMP:
        st.mark()
        a('s_waitcnt vmcnt(0)')
        st.mark(); st.mark(True)
        st.dump(110, 's99')
    a('s_endpgm')

    a.label('K1_CONST')
    a(f's_cmp_eq_u32 s2, {NODE_WGS+1}')
    a('s_cbranch_scc1 K1_GT')
    srd(a, 28, 18, 16*192*2); srd(a, 32, 16, 64*192*2); srd_off(a, 36, 20, CIMG_OFF, 28672)
    a('v_and_b32 v1, 63, v0')
    a('v_and_b32 v2, 15, v1')
    a('v_lshrrev_b32 v3, 4, v1')
    a('v_bfe_u32 v4, v0, 6, 2')
    a('v_bfe_u32 v5, v0, 8, 1')
    a('v_lshlrev_b32 v6, 4, v3')
    a('v_lshl_add_u32 v6, v5, 1, v6')
    a('v_mul_u32_u24 v6, 384, v6')
    a('v_lshl_add_u32 v7, v2, 2, v4')
    a('v_lshl_add_u32 v6, v7, 1, v6')
    for part in range(2):
        for jj in range(8):
            off = (4*(jj & 3) + (jj >> 2))*384 + 256*part
            a(f'v_add_u32 v8, {off}, v6')
            a(f'buffer_load_ushort v{16+8*part+jj}, v8, s[32:35], 0 offen')
    a('v_lshlrev_b32 v9, 2, v3')
    a('v_mul_u32_u24 v9, 384, v9')
    a('v_lshl_add_u32 v9, v7, 1, v9')
    a('v_lshl_add_u32 v10, v5, 7, v9')
    for q in range(4):
        a(f'buffer_load_ushort v{32+q}, v10, s[28:31], 0 offen offset:{q*384}')
    for q in range(4):
        a(f'buffer_load_ushort v{36+q}, v9, s[28:31], 0 offen offset:{q*384+256}')
    a('s_waitcnt vmcnt(0)')
    a('v_lshlrev_b32 v11, 4, v0')
    for part in range(2):
        for h in range(4):
            a(f'v_lshl_or_b32 v{40+4*part+h}, v{16+8*part+2*h+1}, 16, v{16+8*part+2*h}')
        a(f'buffer_store_dwordx4 v[{40+4*part}:{43+4*part}], v11, s[36:39], 0 offen') if part == 0 else None
    a('v_add_u32 v12, 8192, v11')
    a('buffer_store_dwordx4 v[44:47], v12, s[36:39], 0 offen')
    for q in range(8):
        a(f'v_lshlrev_b32 v{32+q}, 16, v{32+q}')
    a('v_add_u32 v12, 16384, v11')
    a('buffer_store_dwordx4 v[32:35], v12, s[36:39], 0 offen')
    a('v_cmp_gt_u32 vcc, 256, v0')
    a('s_and_saveexec_b64 s[44:45], vcc')
    a('v_add_u32 v12, 24576, v11')
    a('buffer_store_dwordx4 v[36:39], v12, s[36:39], 0 offen')
    a('s_endpgm')
    a.label('K1_GT')
    srd_off(a, 36, 20, GT_OFF, GT_ROWS*32)
    a('s_load_dwordx8 s[24:31], s[12:13], 0')
    a('s_waitcnt lgkmcnt(0)')
    for it in range(2):
        a(f'v_add_u32 v1, {512*it}, v0')
        a(f'v_add_u32 v2, {GT_T0-1}, v1')
        a('v_lshlrev_b32 v2, 16, v2')
        def rnd1(x):
            a(f'v_cvt_pk_bf16_f32 v{x}, v{x}, v{x}')
            a(f'v_and_b32 v{x}, s22, v{x}')
        a('v_rcp_f32 v3, v2')
        a('v_mul_f32 v4, 0x40490fdb, v2'); rnd1(4)
        a('v_mul_f32 v4, 0x3e4ccccd, v4'); rnd1(4)
        a('v_mul_f32 v4, 0.15915494, v4')
        a('v_cos_f32 v4, v4'); rnd1(4)
        a('v_add_f32 v4, 1.0, v4'); rnd1(4)
        a('v_mul_f32 v3, 0.5, v3')
        a('v_mul_f32 v4, v4, v3')
        a('v_cmp_eq_u32 vcc, 0, v1')
        a('v_cndmask_b32 v4, v4, 0, vcc') if False else None
        a('v_mov_b32 v5, 0')
        a('v_cndmask_b32 v4, v4, v5, vcc')
        a('v_cndmask_b32 v2, v2, v5, vcc')
        for h in range(8):
            a(f's_lshl_b32 s4, s{24+h}, 16')
            a(f's_and_b32 s5, s{24+h}, s22')
            a('v_mul_f32 v6, s4, v2')
            a('v_mul_f32 v7, s5, v2')
            a('v_cvt_pk_bf16_f32 v8, v6, v7')
            a('v_lshlrev_b32 v6, 16, v8')
            a('v_and_b32 v7, s22, v8')
            a('v_mul_f32 v6, 0.15915494, v6')
            a('v_mul_f32 v7, 0.15915494, v7')
            a('v_sin_f32 v6, v6')
            a('v_sin_f32 v7, v7')
            a('v_mul_f32 v6, v6, v4')
            a('v_mul_f32 v7, v7, v4')
            a(f'v_cvt_pk_bf16_f32 v{16+h}, v6, v7')
        a('v_lshlrev_b32 v9, 5, v1')
        a('buffer_store_dwordx4 v[16:19], v9, s[36:39], 0 offen')
        a('buffer_store_dwordx4 v[20:23], v9, s[36:39], 0 offen offset:16')
        a('s_nop 2')
    a.label('K1_END')
    a('s_endpgm')

def kd(name, vgpr, sgpr):
    return f'''.amdhsa_kernel {name}
  .amdhsa_next_free_vgpr {vgpr}
  .amdhsa_next_free_sgpr {sgpr}
  .amdhsa_accum_offset {(vgpr+3)//4*4}
  .amdhsa_group_segment_fixed_size 0
  .amdhsa_kernarg_size 88
  .amdhsa_user_sgpr_count 2
  .amdhsa_user_sgpr_kernarg_segment_ptr 1
  .amdhsa_system_sgpr_workgroup_id_x 1
.end_amdhsa_kernel
'''

def main():
    import gen_k2
    a = Asm()
    gen_k1(a)
    k2 = gen_k2.gen_k2(a)
    hdr = open('cdna_kernels/%s.s.ref' % NAME).read().split('; Override')[0]
    hdr += f'; @launch kernel=k1_kernel grid=({K1_GRID},1,1) block=(512,1,1) lds={K1_LDS}\n'
    if k2:
        hdr += f'; @launch kernel=k2_kernel grid=({NB},1,1) block=(512,1,1) lds={gen_k2.K2_LDS}\n'
    hdr += '.amdgcn_target "amdgcn-amd-amdhsa--gfx950"\n.text\n'
    body = a.finish()
    tail = '.section .rodata,"a"\n.p2align 6\n' + kd('k1_kernel', 120, 102)
    if k2:
        tail += '.p2align 6\n' + kd('k2_kernel', 256, 102)
    out = sys.argv[1] if len(sys.argv) > 1 else 'cdna_kernels/%s.s' % NAME
    open(out, 'w').write(hdr + body + tail)
    print('wrote', out, 'nops inserted', a.nops_inserted)

if __name__ == '__main__':
    main()
```

```python
import os
import gen as G

N = 12500
NSLOT = 49*128 + 32
DS_BASE = 0
POS = 12800
GS = POS + 75776
GSW = 2048
W2IMG = GS + 8*GSW
WRIMG = W2IMG + 16384
GT = WRIMG + 12288
CNT = GT + 26*1024
FLG = CNT + 256
MISC = FLG + 256
K2_LDS = MISC + 128
K2_THREADS = 512
K2_VGPRS = 256
PADMARK = 0x7000
MREG = GS
WCAP = 512
NPF = int(os.environ.get('NPF','4'))
NP1 = int(os.environ.get('NP1','10'))
NP2 = int(os.environ.get('NP2','0'))

vLANE16, vFREQ, vKGWV, vKGDS, vWVA, vDSA, vOUTOFF = 1, 2, 3, 4, 5, 6, 7
SV = 8
vIMG = 12
vT0, vT1, vT2 = 13, 14, 15
DS = 16
vKGD, vDA, vLANE, vGSW = 20, 21, 22, 23
POOL = 24
GR = 56
L0 = 72; L1 = 104
RB = 120
GEOR = 144
vOFF1, vLANE8 = 154, 155
ACCX = 156; ACCY = 172; ACCH = 188
PTZ = 188
ZL = [72, 88, 104, 120]
DSZ = 172
vM1, vM2 = 253, 255
vC8 = 254
vSEGLO, vSEGHI, vPFX = 176, 177, 178
sTAB, sWS, sSV, sOUT = 12, 16, 20, 24
sMASK, sSELLO, sSELHI, s384 = 28, 29, 30, 31
sN0, sNN = 32, 33
sJC, sNSTC, sJN, sNSTN, sK, sBASE, sNBASE, sTNN, sLAST = 34, 35, 36, 37, 38, 39, 40, 41, 42
sWAVE, sF0, sW, sTOT, sNV, sFIRST, sRLAST = 43, 44, 45, 46, 47, 48, 49
sEX = 50
sT = 52
sMK = 56
sMORE, sCNTN, sFIVE, sGS = 76, 77, 78, 79
sPOSP = 80
sSLOW, sSLOWN, sPH, sPHN = 84, 85, 86, 87
sOVF = 88
sT2 = 90
sBK = 91
sTAB2 = 92
sPEND, sTC, sTN, sNN2, s128, sNXZ, sNSL = 72, 73, 74, 75, 98, 99, 4
sNXZ, sNSL = 5, 6
sZWARM = 4

STAMP = os.environ.get('STAMP','0') == '1'
def mark(a, real=False):
    if not STAMP: return
    a(f"{'s_memrealtime' if real else 's_memtime'} s[100:101]")
    a('s_waitcnt lgkmcnt(0)')
    a('s_min_u32 s7, s7, 63')
    a('s_mov_b32 m0, s7')
    a('s_nop 1')
    a('v_writelane_b32 v252, s100, m0')
    a('s_add_u32 s7, s7, 1')
def dump(a):
    if not STAMP: return
    a('s_load_dwordx2 s[100:101], s[0:1], 80')
    a('s_waitcnt lgkmcnt(0)')
    a(f's_add_u32 s56, s100, {G.STAMP_OFF+0x100000}')
    a('s_addc_u32 s57, s101, 0')
    a('s_and_b32 s57, s57, 0xffff')
    a('s_mov_b32 s58, 0x100000')
    a('s_mov_b32 s59, 0x20000')
    a('s_mov_b64 exec, -1')
    a(f's_lshl_b32 s61, s{sWAVE}, 8')
    a(f'v_lshlrev_b32 v13, 2, v{vLANE}')
    a('v_add_u32 v13, s61, v13')
    a('s_lshl_b32 s60, s2, 12')
    a('buffer_store_dword v252, v13, s[56:59], s60 offen')
    a('s_waitcnt vmcnt(0)')

def Gr(w, p): return GR + 4*w + p
def accH(w, t): return ACCH + 16*w + 4*t
def rng(b, n=4): return f'v[{b}:{b+n-1}]'
RXr, RYr, RZr = RB, RB + 8, RB + 16
TMP = POOL + 24
ADDR = POOL + 16
TB = [POOL + 4*i for i in range(4)]

def dma_pos(a, lo, hi, tag):
    a(f's_cmp_eq_u32 s{sFIRST}, 1')
    a(f's_cbranch_scc0 K2_XD_{tag}')
    a(f'v_lshlrev_b32 v35, 4, v{vLANE}')
    a(f's_mul_i32 s{sT}, s2, 9')
    a(f's_add_u32 s{sT}, s{sT}, s{sWAVE}')
    for i in range(lo, hi):
        a(f's_add_u32 s{sT+1}, s{sT}, {8*i}')
        a(f's_mul_hi_u32 s{sT+2}, s{sT+1}, {(1<<32)//74+1}')
        a(f's_mul_i32 s{sT+2}, s{sT+2}, 74')
        a(f's_sub_u32 s{sT+1}, s{sT+1}, s{sT+2}')
        a(f's_lshl_b32 s{sT+1}, s{sT+1}, 10')
        a(f's_add_u32 s{sT+2}, s{sT+1}, {POS}')
        a(f's_mov_b32 m0, s{sT+2}')
        a('s_nop 0')
        a(f'buffer_load_dwordx4 v35, s[{sPOSP}:{sPOSP+3}], s{sT+1} offen lds')
    a.label(f'K2_XD_{tag}')

def dma_const(a, tag):
    a(f's_cmp_eq_u32 s{sFIRST}, 1')
    a(f's_cbranch_scc0 K2_XD_{tag}')
    a(f'v_lshlrev_b32 v35, 4, v{vLANE}')
    a(f's_mul_i32 s{sT+3}, s2, 5')
    a(f's_add_u32 s{sT+3}, s{sT+3}, s{sWAVE}')
    for i in range(7):
        a(f's_add_u32 s{sT}, s{sT+3}, {8*i}')
        a(f's_mul_hi_u32 s{sT+1}, s{sT}, {(1<<32)//56+1}')
        a(f's_mul_i32 s{sT+1}, s{sT+1}, 56')
        a(f's_sub_u32 s{sT}, s{sT}, s{sT+1}')
        a(f's_min_u32 s{sT}, s{sT}, 53')
        a(f's_lshl_b32 s{sT+1}, s{sT}, 10')
        a(f's_add_u32 s{sT+2}, s{sT+1}, {W2IMG}')
        a(f's_mov_b32 m0, s{sT+2}')
        a(f's_cmp_ge_u32 s{sT}, 28')
        a(f's_mov_b32 s{sT+2}, {G.CIMG_OFF}')
        a(f's_cselect_b32 s{sT+2}, {G.GT_OFF - 28*1024}, s{sT+2}')
        a(f's_add_u32 s{sT+1}, s{sT+1}, s{sT+2}')
        a(f'buffer_load_dwordx4 v35, s[{sWS}:{sWS+3}], s{sT+1} offen lds')
    a.label(f'K2_XD_{tag}')


def geo_compute(a, sJ, sCNT, sZ, tag):
    P = POOL
    src = [P, P+1]; D = [P+2, P+4]; dp = [P+6, P+7, P+8]
    ROWV = [GEOR, GEOR+1]; DV = [GEOR+2, GEOR+3]
    RO = lambda it, c: GEOR + 4 + 3*it + c
    T = list(range(P+9, P+32))
    a(f's_lshl_b32 s{sT}, s{sJ}, 8')
    a(f'v_lshlrev_b32 v{T[0]}, 1, v{vLANE}')
    a(f'v_add_u32 v{T[0]}, s{sT}, v{T[0]}')
    a(f'ds_read_u16 v{src[0]}, v{T[0]}')
    a(f'ds_read_u16 v{src[1]}, v{T[0]} offset:128')
    a(f's_add_u32 s{sT}, s{sN0}, s{sJ}')
    a(f's_mul_i32 s{sT}, s{sT}, 6')
    a(f's_add_u32 s{sT}, s{sT}, {POS}')
    a(f's_min_u32 s{sT}, s{sT}, {POS+75000-6}')
    a(f'v_mov_b32 v{T[1]}, s{sT}')
    for c in range(3): a(f'v_mov_b32 v{dp[c]}, 0')
    for c in range(3): a(f'ds_read_u16_d16_hi v{dp[c]}, v{T[1]} offset:{2*c}')
    a(f's_mov_b32 s{sNSL}, 0')
    a(f'v_mov_b32 v{ROWV[1]}, {GT}')
    a(f'v_mov_b32 v{DV[1]}, 0')
    a('s_waitcnt lgkmcnt(3)')
    for it in range(2):
        s_ = src[it]
        a(f's_sub_i32 s{sT+1}, s{sCNT}, {64*it}')
        a(f'v_cmp_gt_i32 s[{sMK+2*it}:{sMK+2*it+1}], s{sT+1}, v{vLANE}')
        a(f'v_cndmask_b32 v{s_}, 0, v{s_}, s[{sMK+2*it}:{sMK+2*it+1}]')
        a(f'v_mul_u32_u24 v{T[0]}, 6, v{s_}')
        a(f'v_and_b32 v{T[0]}, -4, v{T[0]}')
        a(f'v_add_u32 v{T[0]}, {POS}, v{T[0]}')
        a(f'ds_read2_b32 v[{D[it]}:{D[it]+1}], v{T[0]} offset0:0 offset1:1')
        a(f'v_and_b32 v{s_}, 1, v{s_}')
        a(f'v_lshlrev_b32 v{s_}, 4, v{s_}')
    for it in range(2):
        if it == 1:
            a(f's_cmp_le_u32 s{sCNT}, 64')
            a(f's_cbranch_scc1 K2_GEO_END_{tag}')
        a(f's_waitcnt lgkmcnt({1-it})')
        rx, ry, rz = RO(it,0), RO(it,1), RO(it,2); p = T[5]
        a(f'v_alignbit_b32 v{ry}, v{D[it]+1}, v{D[it]}, v{src[it]}')
        a(f'v_lshrrev_b32 v{rz}, v{src[it]}, v{D[it]+1}')
        a(f'v_lshlrev_b32 v{rx}, 16, v{ry}')
        a(f'v_and_b32 v{ry}, s{sMASK}, v{ry}')
        a(f'v_lshlrev_b32 v{rz}, 16, v{rz}')
        a(f'v_sub_f32 v{rx}, v{rx}, v{dp[0]}')
        a(f'v_sub_f32 v{ry}, v{ry}, v{dp[1]}')
        a(f'v_sub_f32 v{rz}, v{rz}, v{dp[2]}')
        def rnd2(x, y):
            a(f'v_cvt_pk_bf16_f32 v{p}, v{x}, v{y}')
            a(f'v_lshlrev_b32 v{x}, 16, v{p}')
            a(f'v_and_b32 v{y}, s{sMASK}, v{p}')
        def rnd1(x):
            a(f'v_cvt_pk_bf16_f32 v{x}, v{x}, v{x}')
            a(f'v_and_b32 v{x}, s{sMASK}, v{x}')
        rnd2(rx, ry); rnd1(rz)
        qx, qy, qz = T[6], T[7], T[8]
        a(f'v_mul_f32 v{qx}, v{rx}, v{rx}')
        a(f'v_mul_f32 v{qy}, v{ry}, v{ry}')
        a(f'v_mul_f32 v{qz}, v{rz}, v{rz}')
        rnd2(qx, qy); rnd1(qz)
        d = T[9]
        a(f'v_add_f32 v{d}, v{qx}, v{qy}')
        a(f'v_add_f32 v{d}, v{d}, v{qz}')
        rnd1(d)
        a(f'v_add_f32 v{d}, 0x322bcc77, v{d}')
        rnd1(d)
        a(f'v_sqrt_f32 v{d}, v{d}')
        rnd1(d)
        a(f'v_cmp_gt_f32 vcc, 0x40a00000, v{d}')
        a(f'v_lshrrev_b32 v{qy}, 16, v{d}')
        a(f's_and_b64 s[{sT+2}:{sT+3}], vcc, s[{sMK+2*it}:{sMK+2*it+1}]')
        a(f'v_cmp_gt_u32 vcc, {G.GT_T0}, v{qy}')
        a(f'v_lshlrev_b32 v{qy}, 5, v{qy}')
        a(f'v_add_u32 v{qy}, {GT + 32 - 32*G.GT_T0}, v{qy}')
        a(f's_and_b64 vcc, vcc, s[{sT+2}:{sT+3}]')
        a(f's_cmp_lg_u64 vcc, 0')
        a(f's_cselect_b32 s{sT}, 1, 0')
        a(f's_or_b32 s{sNSL}, s{sNSL}, s{sT}')
        a(f'v_mov_b32 v{qz}, {GT}')
        a(f'v_cndmask_b32 v{ROWV[it]}, v{qz}, v{qy}, s[{sT+2}:{sT+3}]')
        a(f'v_cndmask_b32 v{DV[it]}, 0, v{d}, s[{sT+2}:{sT+3}]')
        a(f's_cmp_eq_u32 s{sZ}, 1')
        a(f's_cbranch_scc1 K2_GEO_NR{it}_{tag}')
        inv = qx
        a(f'v_rcp_f32 v{inv}, v{d}')
        a(f'v_mul_f32 v{rx}, v{rx}, v{inv}')
        a(f'v_mul_f32 v{ry}, v{ry}, v{inv}')
        a(f'v_mul_f32 v{rz}, v{rz}, v{inv}')
        rnd2(rx, ry); rnd1(rz)
        a.label(f'K2_GEO_NR{it}_{tag}')
    a.label(f'K2_GEO_END_{tag}')

def geo_write(a, tag):
    t = vT0
    a(f'v_lshl_add_u32 v{t}, v{vLANE}, 2, v{vGSW}')
    for it in range(2):
        for c in range(3):
            a(f'ds_write_b32 v{t}, v{GEOR+4+3*it+c} offset:{512*(c+1)+256*it}')
    a(f's_cmp_eq_u32 s{sNSL}, 1')
    a(f's_cbranch_scc1 K2_GW_S_{tag}')
    a(f'ds_write_b32 v{t}, v{GEOR}')
    a(f'ds_write_b32 v{t}, v{GEOR+1} offset:256')
    a(f's_branch K2_GW_E_{tag}')
    a.label(f'K2_GW_S_{tag}')
    a(f'ds_write_b32 v{t}, v{GEOR+2}')
    a(f'ds_write_b32 v{t}, v{GEOR+3} offset:256')
    a.label(f'K2_GW_E_{tag}')

def slow_g1(a, tag):
    D8 = POOL
    a(f'ds_read_b128 {rng(D8)}, v{vDA}')
    a(f'ds_read_b128 {rng(D8+4)}, v{vDA} offset:16')
    a('s_waitcnt lgkmcnt(0)')
    for p in range(4):
        for h in range(2):
            d = D8 + 2*p + h; t = TMP + 2 + h; iv = TMP + 4 + h; sn = TMP + 6 + h
            def rnd1(x):
                a(f'v_cvt_pk_bf16_f32 v{x}, v{x}, v{x}')
                a(f'v_and_b32 v{x}, s{sMASK}, v{x}')
            a(f'v_rcp_f32 v{iv}, v{d}')
            a(f'v_mul_f32 v{t}, 0x40490fdb, v{d}'); rnd1(t)
            a(f'v_mul_f32 v{t}, 0x3e4ccccd, v{t}'); rnd1(t)
            a(f'v_mul_f32 v{t}, 0.15915494, v{t}')
            a(f'v_cos_f32 v{t}, v{t}'); rnd1(t)
            a(f'v_add_f32 v{t}, 1.0, v{t}'); rnd1(t)
            a(f'v_mul_f32 v{iv}, 0.5, v{iv}')
            a(f'v_mul_f32 v{t}, v{t}, v{iv}')
            a(f'v_cmp_lt_f32 vcc, 0, v{d}')
            a(f'v_mul_f32 v{sn}, v{d}, v{vFREQ}'); rnd1(sn)
            a(f'v_cndmask_b32 v{t}, 0, v{t}, vcc')
            a(f'v_mul_f32 v{sn}, 0.15915494, v{sn}')
            a(f'v_sin_f32 v{sn}, v{sn}')
            a(f'v_mul_f32 v{sn}, v{sn}, v{t}')
        a(f'v_cvt_pk_bf16_f32 v{Gr(0,p)}, v{TMP+6}, v{TMP+7}')

def x_loads0(a):
    for j in range(8):
        a(f'v_mad_u32_u16 v{ADDR+j}, v{DS+(j>>1)}, s{s384}, v{vLANE16} op_sel:[{j&1},0,0,0]')
    for j in range(8):
        a(f'buffer_load_dwordx4 {rng(L0+4*j)}, v{ADDR+j}, s[{sTAB}:{sTAB+3}], 0 offen')
def x_loads1(a):
    for j in range(8):
        a(f'v_add_u32 v{ADDR+j}, v{ADDR+j}, v{vOFF1}')
    for j in range(8):
        a(f'buffer_load_dwordx2 {rng(L1+2*j,2)}, v{ADDR+j}, s[{sTAB}:{sTAB+3}], 0 offen')
def z_loads(a):
    for j in range(8):
        a(f'v_mad_u32_u16 v{ADDR+j}, v{DS+(j>>1)}, s{s128}, v{vLANE8} op_sel:[{j&1},0,0,0]')
    for j in range(8):
        a(f'buffer_load_dwordx2 {rng(L0+2*j,2)}, v{ADDR+j}, s[{sTAB2}:{sTAB2+3}], 0 offen')

def next_g_reads_issue(a, tag):
    a(f's_cmp_eq_u32 s{sNXZ}, 1') if False else None
    a(f'ds_read2_b32 v[{TMP}:{TMP+1}], v{vWVA} offset0:0 offset1:4')
    a(f'ds_read_b128 {rng(DS)}, v{vDSA}')

def next_tr(a, with_r):
    a(f'ds_read_b64_tr_b16 v[{Gr(0,0)}:{Gr(0,1)}], v{TMP}')
    a(f'ds_read_b64_tr_b16 v[{Gr(0,2)}:{Gr(0,3)}], v{TMP+1}')

def r_reads(a):
    for (R, off) in ((RXr, 512), (RYr, 1024), (RZr, 1536)):
        a(f'ds_read_b128 {rng(R)}, v{vDA} offset:{off}')
        a(f'ds_read_b128 {rng(R+4)}, v{vDA} offset:{off+16}')

def step(a, ph, first):
    tag = ('X' if ph == 0 else 'Z') + ('F' if first else 'R')
    if first:
        a(f'v_mov_b32 v{vT0}, {MISC}')
        a(f'v_mov_b32 v{vT1}, 1')
        a(f's_lshl_b32 s{sT}, s{sJN}, 2')
        a(f's_add_u32 s{sT}, s{sT}, {CNT}')
        a(f'v_mov_b32 v{vT2}, s{sT}')
        a(f's_mov_b64 s[{sEX}:{sEX+1}], exec')
        a('s_mov_b64 exec, 1')
        a(f'ds_add_rtn_u32 v{vM1}, v{vT0}, v{vT1}')
        a(f'ds_read_b32 v{vM2}, v{vT2}')
        a(f's_mov_b64 exec, s[{sEX}:{sEX+1}]')
    a(f's_add_u32 s{sT}, s{sK}, 1')
    a(f's_cmp_eq_u32 s{sT}, s{sNSTC}')
    a(f's_cselect_b32 s{sLAST}, 1, 0')
    a(f's_lshl_b32 s{sT+1}, s{sJN}, 7')
    a(f's_cmp_eq_u32 s{sPHN}, 1')
    a(f's_cselect_b32 s{sT+1}, {49*128}, s{sT+1}')
    a(f's_add_u32 s{sT+2}, s{sBASE}, 32')
    a(f's_cmp_eq_u32 s{sLAST}, 1')
    a(f's_cselect_b32 s{sNBASE}, s{sT+1}, s{sT+2}')
    a(f's_lshl_b32 s{sT}, s{sNBASE}, 1')
    a(f'v_add_u32 v{vDSA}, s{sT}, v{vKGDS}')
    a(f's_waitcnt lgkmcnt({2 if first else 0})')
    a(f's_cmp_eq_u32 s{sSLOW}, 1')
    a(f's_cbranch_scc0 K2_FASTG_{tag}')
    slow_g1(a, tag)
    a.label(f'K2_FASTG_{tag}')
    if ph == 0:
        for p in range(4):
            g0, g1 = TMP + 2, TMP + 3
            a(f'v_lshlrev_b32 v{g0}, 16, v{Gr(0,p)}')
            a(f'v_and_b32 v{g1}, s{sMASK}, v{Gr(0,p)}')
            for k, R in enumerate((RXr, RYr, RZr)):
                t0, t1 = TMP + 4 + 2*(k % 2), TMP + 5 + 2*(k % 2)
                a(f'v_mul_f32 v{t0}, v{g0}, v{R+2*p}')
                a(f'v_mul_f32 v{t1}, v{g1}, v{R+2*p+1}')
                a(f'v_cvt_pk_bf16_f32 v{Gr(1+k,p)}, v{t0}, v{t1}')
    if first:
        a('s_waitcnt lgkmcnt(0)')
        a(f'v_readfirstlane_b32 s{sTNN}, v{vM1}')
        a(f'v_readfirstlane_b32 s{sCNTN}, v{vM2}')
        a(f's_add_u32 s{sNSTN}, s{sCNTN}, 31')
        a(f's_lshr_b32 s{sNSTN}, s{sNSTN}, 5')
        a(f's_max_u32 s{sNSTN}, s{sNSTN}, 1')
        geo_compute(a, sJN, sCNTN, sPHN, tag)
        a(f's_mov_b32 s{sSLOWN}, s{sNSL}')
    a(f's_cmp_eq_u32 s{sLAST}, 1')
    a(f's_cbranch_scc0 K2_NOTLAST_{tag}')
    a(f's_mov_b32 s{sNSL}, s{sSLOWN}')
    geo_write(a, tag)
    a(f'v_mov_b32 v{vWVA}, v{vKGWV}')
    a(f'v_mov_b32 v{vDA}, v{vKGD}')
    a(f's_branch K2_ADV_{tag}')
    a.label(f'K2_NOTLAST_{tag}')
    a(f'v_add_u32 v{vWVA}, 128, v{vWVA}')
    a(f'v_add_u32 v{vDA}, 128, v{vDA}')
    a.label(f'K2_ADV_{tag}')
    a(f'ds_read2_b32 v[{TMP}:{TMP+1}], v{vWVA} offset0:0 offset1:4')
    a(f'ds_read_b128 {rng(DS)}, v{vDSA}')
    if ph == 0: r_reads(a)
    def mf(acc, A, B):
        c = '0' if first else rng(acc)
        a(f'v_mfma_f32_16x16x32_bf16 {rng(acc)}, {rng(A)}, {rng(B)}, {c}')
    if ph == 0:
        a('s_waitcnt vmcnt(8)')
        order = [('h', t) for t in range(4)] + [('x', t) for t in range(4)]
        def plist(o, dst):
            q = (2 + (o[1] >> 1)) if o[0] == 'h' else (o[1] >> 1)
            sel = sSELHI if (o[1] & 1) else sSELLO
            return [f'v_perm_b32 v{dst+p}, v{L0+4*(2*p+1)+q}, v{L0+4*(2*p)+q}, s{sel}' for p in range(4)]
        def mlist(o, src):
            out = []
            if o[0] == 'h':
                for w in range(4):
                    acc = accH(w, o[1]); c = '0' if first else rng(acc)
                    out.append(f'v_mfma_f32_16x16x32_bf16 {rng(acc)}, {rng(src)}, {rng(Gr(w,0))}, {c}')
            else:
                acc = ACCX + 4*o[1]; c = '0' if first else rng(acc)
                out.append(f'v_mfma_f32_16x16x32_bf16 {rng(acc)}, {rng(Gr(0,0))}, {rng(src)}, {c}')
            return out
        for l in plist(order[0], TB[0]): a(l)
        for i in range(1, 8):
            pl = plist(order[i], TB[i % 4]); ml = mlist(order[i-1], TB[(i-1) % 4])
            if len(ml) == 4:
                a(pl[0]); a(pl[1]); a(ml[0]); a(pl[2]); a(ml[1]); a(pl[3]); a(ml[2]); a(ml[3])
            else:
                for l in pl: a(l)
                a(ml[0])
        ml = mlist(order[7], TB[7 % 4])
        a('s_waitcnt lgkmcnt(6)')
        a(f'v_add_u32 v{TMP}, v{TMP}, v{vC8}')
        a(f'v_add_u32 v{TMP+1}, v{TMP+1}, v{vC8}')
        a(ml[0])
        x_loads0(a)
        a('s_waitcnt vmcnt(8)')
        def ypl(t, dst):
            q = t >> 1; sel = sSELHI if (t & 1) else sSELLO
            return [f'v_perm_b32 v{dst+p}, v{L1+2*(2*p+1)+q}, v{L1+2*(2*p)+q}, s{sel}' for p in range(4)]
        for l in ypl(0, TB[0]): a(l)
        for t in range(1, 4):
            for l in ypl(t, TB[t]): a(l)
            mf(ACCY + 4*(t-1), Gr(0,0), TB[t-1])
        a('s_nop 0')
        mf(ACCY + 12, Gr(0,0), TB[3])
        next_tr(a, True)
        x_loads1(a)
    else:
        a(f's_waitcnt vmcnt({4 if first else 0})')
        def zpl(t, dst):
            q = t >> 1; sel = sSELHI if (t & 1) else sSELLO
            return [f'v_perm_b32 v{dst+p}, v{L0+2*(2*p+1)+q}, v{L0+2*(2*p)+q}, s{sel}' for p in range(4)]
        for l in zpl(0, TB[0]): a(l)
        for t in range(1, 4):
            for l in zpl(t, TB[t]): a(l)
            mf(ACCX + 4*(t-1), Gr(0,0), TB[t-1])
        a('s_waitcnt lgkmcnt(0)')
        a(f'v_add_u32 v{TMP}, v{TMP}, v{vC8}')
        a(f'v_add_u32 v{TMP+1}, v{TMP+1}, v{vC8}')
        mf(ACCX + 12, Gr(0,0), TB[3])
        z_loads(a)
        next_tr(a, False)
    a(f's_mov_b32 s{sBASE}, s{sNBASE}')


def z_src_reads(a, sJ, sNST):
    for k in range(4):
        a(f's_lshl_b32 s{sT}, s{sJ}, 7')
        a(f's_add_u32 s{sT}, s{sT}, {32*k}')
        a(f's_cmp_gt_u32 s{sNST}, {k}')
        a(f's_cselect_b32 s{sT}, s{sT}, {49*128}')
        a(f's_lshl_b32 s{sT}, s{sT}, 1')
        a(f'v_add_u32 v{vT0}, s{sT}, v{vKGDS}')
        a(f'ds_read_b128 {rng(DSZ+4*k)}, v{vT0}')

def z_group_loads(a, k):
    for j in range(8):
        a(f'v_mad_u32_u16 v{ADDR+j}, v{DSZ+4*k+(j>>1)}, s{s128}, v{vLANE8} op_sel:[{j&1},0,0,0]')
    for j in range(8):
        a(f'buffer_load_dwordx2 {rng(ZL[k]+2*j,2)}, v{ADDR+j}, s[{sTAB2}:{sTAB2+3}], 0 offen')

def z_g_reads(a):
    for k in range(4):
        a(f'ds_read2_b32 v[{TMP+2*k}:{TMP+2*k+1}], v{vKGWV} offset0:{32*k} offset1:{32*k+4}')
    for k in range(4):
        a(f's_waitcnt lgkmcnt({3-k + 2*k})')
        a(f'v_add_u32 v{TMP+2*k}, v{TMP+2*k}, v{vC8}')
        a(f'v_add_u32 v{TMP+2*k+1}, v{TMP+2*k+1}, v{vC8}')
        a(f'ds_read_b64_tr_b16 v[{Gr(k,0)}:{Gr(k,1)}], v{TMP+2*k}')
        a(f'ds_read_b64_tr_b16 v[{Gr(k,2)}:{Gr(k,3)}], v{TMP+2*k+1}')

def z_slow_g(a, k, tag):
    D8 = POOL
    a(f'ds_read_b128 {rng(D8)}, v{vKGD} offset:{128*k}')
    a(f'ds_read_b128 {rng(D8+4)}, v{vKGD} offset:{128*k+16}')
    a('s_waitcnt lgkmcnt(0)')
    for p in range(4):
        for h in range(2):
            d = D8 + 2*p + h; t = TMP + 2 + h; iv = TMP + 4 + h; sn = TMP + 6 + h
            def rnd1(x):
                a(f'v_cvt_pk_bf16_f32 v{x}, v{x}, v{x}')
                a(f'v_and_b32 v{x}, s{sMASK}, v{x}')
            a(f'v_rcp_f32 v{iv}, v{d}')
            a(f'v_mul_f32 v{t}, 0x40490fdb, v{d}'); rnd1(t)
            a(f'v_mul_f32 v{t}, 0x3e4ccccd, v{t}'); rnd1(t)
            a(f'v_mul_f32 v{t}, 0.15915494, v{t}')
            a(f'v_cos_f32 v{t}, v{t}'); rnd1(t)
            a(f'v_add_f32 v{t}, 1.0, v{t}'); rnd1(t)
            a(f'v_mul_f32 v{iv}, 0.5, v{iv}')
            a(f'v_mul_f32 v{t}, v{t}, v{iv}')
            a(f'v_cmp_lt_f32 vcc, 0, v{d}')
            a(f'v_mul_f32 v{sn}, v{d}, v{vFREQ}'); rnd1(sn)
            a(f'v_cndmask_b32 v{t}, 0, v{t}, vcc')
            a(f'v_mul_f32 v{sn}, 0.15915494, v{sn}')
            a(f'v_sin_f32 v{sn}, v{sn}')
            a(f'v_mul_f32 v{sn}, v{sn}, v{t}')
        a(f'v_cvt_pk_bf16_f32 v{Gr(k,p)}, v{TMP+6}, v{TMP+7}')

def z_task(a):
    a.label('K2_NODE_Z')
    flush_pending(a, 'SZ', 4)
    a(f's_lshl_b32 s{sT}, s{sJC}, 2')
    a(f's_add_u32 s{sT}, s{sT}, {FLG}')
    a(f'v_mov_b32 v{vT0}, s{sT}')
    a.label('K2_SPIN')
    a(f'ds_read_b32 v{vT1}, v{vT0}')
    a('s_waitcnt lgkmcnt(0)')
    a(f'v_readfirstlane_b32 s{sT+1}, v{vT1}')
    a(f's_cmp_eq_u32 s{sT+1}, 1')
    a('s_cbranch_scc1 K2_SPIN_OK')
    a('s_sleep 4')
    a('s_branch K2_SPIN')
    a.label('K2_SPIN_OK')
    a(f's_cmp_eq_u32 s{sZWARM}, 1')
    a('s_cbranch_scc1 K2_ZW')
    a('s_waitcnt vmcnt(0)')
    a(f's_lshl_b32 s{sT}, s{sJC}, 2')
    a(f's_add_u32 s{sT}, s{sT}, {CNT}')
    a(f'v_mov_b32 v{vT2}, s{sT}')
    a(f'ds_read_b32 v{vM1}, v{vT2}')
    z_src_reads(a, sJC, sNSTC)
    a('s_waitcnt lgkmcnt(0)')
    a(f'v_readfirstlane_b32 s{sCNTN}, v{vM1}')
    for k in range(4): z_group_loads(a, k)
    a(f's_mov_b32 s{sNXZ}, 1')
    geo_compute(a, sJC, sCNTN, sNXZ, 'ZC')
    a(f's_mov_b32 s{sSLOW}, s{sNSL}')
    geo_write(a, 'ZC')
    z_g_reads(a)
    a(f's_mov_b32 s{sZWARM}, 1')
    a.label('K2_ZW')
    a(f's_add_u32 s{sT}, s{sN0}, s{sJC}')
    a(f's_lshl_b32 s{sT+1}, s{sT}, 8')
    a(f's_add_u32 s{sT+1}, s{sT+1}, {G.PART_OFF}')
    a(f'v_lshlrev_b32 v{vT0}, 2, v{vLANE}')
    a(f'buffer_load_dword v{PTZ}, v{vT0}, s[{sWS}:{sWS+3}], s{sT+1} offen sc1')
    a(f'v_mov_b32 v{vT0}, {MISC}')
    a(f'v_mov_b32 v{vT1}, 1')
    a(f's_lshl_b32 s{sT}, s{sJN}, 2')
    a(f's_add_u32 s{sT}, s{sT}, {CNT}')
    a(f'v_mov_b32 v{vT2}, s{sT}')
    a(f's_mov_b64 s[{sEX}:{sEX+1}], exec')
    a('s_mov_b64 exec, 1')
    a(f'ds_add_rtn_u32 v{vM1}, v{vT0}, v{vT1}')
    a(f'ds_read_b32 v{vM2}, v{vT2}')
    a(f's_mov_b64 exec, s[{sEX}:{sEX+1}]')
    a('s_waitcnt lgkmcnt(0)')
    a(f'v_readfirstlane_b32 s{sTNN}, v{vM1}')
    a(f'v_readfirstlane_b32 s{sCNTN}, v{vM2}')
    a(f's_add_u32 s{sNSTN}, s{sCNTN}, 31')
    a(f's_lshr_b32 s{sNSTN}, s{sNSTN}, 5')
    a(f's_max_u32 s{sNSTN}, s{sNSTN}, 1')
    a(f's_cmp_eq_u32 s{sSLOW}, 1')
    a('s_cbranch_scc0 K2_ZFAST')
    for k in range(4): z_slow_g(a, k, 'Z')
    a.label('K2_ZFAST')
    z_src_reads(a, sJN, sNSTN)
    a(f's_mov_b32 s{sNXZ}, 1')
    geo_compute(a, sJN, sCNTN, sNXZ, 'ZN')
    a(f's_mov_b32 s{sSLOWN}, s{sNSL}')
    a('s_waitcnt lgkmcnt(0)')
    for k in range(4):
        if k > 0:
            a(f's_cmp_gt_u32 s{sNSTC}, {k}')
            a(f's_cbranch_scc0 K2_ZSKIP_{k}')
        a('s_waitcnt vmcnt(24)')
        def zpl(t, dst):
            q = t >> 1; sel = sSELHI if (t & 1) else sSELLO
            return [f'v_perm_b32 v{dst+p}, v{ZL[k]+2*(2*p+1)+q}, v{ZL[k]+2*(2*p)+q}, s{sel}' for p in range(4)]
        def mf(t):
            acc = ACCX + 4*t; c = '0' if k == 0 else rng(acc)
            a(f'v_mfma_f32_16x16x32_bf16 {rng(acc)}, {rng(Gr(k,0))}, {rng(TB[t])}, {c}')
        for l in zpl(0, TB[0]): a(l)
        for t in range(1, 4):
            for l in zpl(t, TB[t]): a(l)
            mf(t-1)
        a('s_nop 0')
        mf(3)
        if k > 0: a.label(f'K2_ZSKIP_{k}')
        z_group_loads(a, k)
    a(f's_mov_b32 s{sNSL}, s{sSLOWN}')
    geo_write(a, 'ZN')
    z_g_reads(a)
    mark(a)
    a.safe()
    a('s_waitcnt vmcnt(32)')
    epilogueZ(a)
    rotate(a)

def flush_pending(a, tag, nyoung):
    a(f's_cmp_lt_i32 s{sPEND}, 0')
    a(f's_cbranch_scc1 K2_NOPEND_{tag}')
    a(f's_waitcnt vmcnt({nyoung})')
    a(f's_lshl_b32 s{sT}, s{sPEND}, 2')
    a(f's_add_u32 s{sT}, s{sT}, {FLG}')
    a(f'v_mov_b32 v{vT0}, s{sT}')
    a(f'v_mov_b32 v{vT1}, 1')
    a(f'ds_write_b32 v{vT0}, v{vT1}')
    a(f's_mov_b32 s{sPEND}, -1')
    a.label(f'K2_NOPEND_{tag}')

def finalize(a, R, row0, tag, tmp):
    n = len(R)
    a(f's_add_u32 s{sT}, s{sN0}, s{sJC}')
    a(f's_and_b32 s{sT+1}, s{sFIRST}, s{sRLAST}')
    a(f's_cmp_eq_u32 s{sT+1}, 1')
    a(f's_cbranch_scc1 K2_FIN_{tag}')
    a(f's_lshl_b32 s{sT+1}, s{sT}, 10')
    a(f's_add_u32 s{sT+1}, s{sT+1}, {G.PART2_OFF + 256*row0}')
    a(f'v_lshlrev_b32 v{vT0}, 2, v{vLANE}')
    a(f's_cmp_eq_u32 s{sFIRST}, 1')
    a(f's_cbranch_scc1 K2_NOLD_{tag}')
    for i in range(n):
        a(f'buffer_load_dword v{tmp+i}, v{vT0}, s[{sWS}:{sWS+3}], s{sT+1} offen offset:{256*i}')
    a('s_waitcnt vmcnt(0)')
    for i in range(n):
        a(f'v_add_f32 v{R[i]}, v{R[i]}, v{tmp+i}')
    a.label(f'K2_NOLD_{tag}')
    a(f's_cmp_eq_u32 s{sRLAST}, 1')
    a(f's_cbranch_scc1 K2_FIN_{tag}')
    for i in range(n):
        a(f'buffer_store_dword v{R[i]}, v{vT0}, s[{sWS}:{sWS+3}], s{sT+1} offen offset:{256*i}')
    a('s_waitcnt vmcnt(0)')
    a(f's_branch K2_FDONE_{tag}')
    a.label(f'K2_FIN_{tag}')
    a(f's_lshl_b32 s{sT+1}, s{sT}, 9')
    for i in range(n):
        x = tmp + i
        a(f'v_cvt_pk_bf16_f32 v{x}, v{R[i]}, v{R[i]}')
    for i in range(n):
        x = tmp + i
        a(f'v_and_b32 v{x}, s{sMASK}, v{x}')
    for i in range(n):
        x = tmp + i
        a(f'v_add_f32 v{x}, v{x}, v{SV+row0+i}')
    for i in range(n):
        x = tmp + i
        a(f'v_cvt_pk_bf16_f32 v{x}, v{x}, v{x}')
    for i in range(n):
        a(f'buffer_store_short v{tmp+i}, v{vOUTOFF}, s[{sOUT}:{sOUT+3}], s{sT+1} offen offset:{128*(row0+i)}')
    a.label(f'K2_FDONE_{tag}')

def reduce_groups(a, O):
    for o in O:
        a(f'v_permlane32_swap_b32 v{o}, v{o+2}')
        a(f'v_permlane32_swap_b32 v{o+1}, v{o+3}')
    for o in O:
        a(f'v_add_f32 v{o}, v{o}, v{o+2}')
        a(f'v_add_f32 v{o+1}, v{o+1}, v{o+3}')
    for o in O: a(f'v_permlane16_swap_b32 v{o}, v{o+1}')
    for o in O: a(f'v_add_f32 v{o}, v{o}, v{o+1}')

def epilogueX(a):
    F = [accH(w, t) for w in range(4) for t in (1, 3)]
    WRB = F[0:4]; O = F[4:8]
    W2 = POOL
    def rd_w2(part):
        for kp in range(2):
            for tau in range(4):
                a(f'ds_read_b128 {rng(W2+16*kp+4*tau)}, v{vIMG} offset:{part*8192+kp*4096+tau*1024}')
    def rd_wr(p):
        for tau in range(4):
            a(f'ds_read_b128 {rng(WRB[tau])}, v{vIMG} offset:{16384+p*4096+tau*1024}')
    def stage2(dst, w):
        for tau in range(4):
            a(f'v_mfma_f32_16x16x32_bf16 {rng(dst+4*tau)}, {rng(accH(w,0))}, {rng(W2+4*tau)}, 0')
        for tau in range(4):
            a(f'v_mfma_f32_16x16x32_bf16 {rng(dst+4*tau)}, {rng(accH(w,2))}, {rng(W2+16+4*tau)}, {rng(dst+4*tau)}')
    def contract(o, src, init):
        for q in range(4):
            for tau in range(4):
                if q == 0 and init: a(f'v_mul_f32 v{o+tau}, v{WRB[tau]}, v{src+4*tau}')
                else: a(f'v_fmac_f32 v{o+tau}, v{WRB[tau]+q}, v{src+4*tau+q}')
    rd_w2(0)
    a('s_waitcnt vmcnt(8)') if False else None
    for w in range(4):
        for kp in range(2):
            e, o = accH(w, 2*kp), accH(w, 2*kp+1)
            a(f'v_cvt_pk_bf16_f32 v{e}, v{e}, v{e+1}')
            a(f'v_cvt_pk_bf16_f32 v{e+1}, v{e+2}, v{e+3}')
            a(f'v_cvt_pk_bf16_f32 v{e+2}, v{o}, v{o+1}')
            a(f'v_cvt_pk_bf16_f32 v{e+3}, v{o+2}, v{o+3}')
            if w == 1 and kp == 1: rd_wr(1)
    a('s_waitcnt lgkmcnt(0)')
    contract(O[1], ACCX, True)
    contract(O[2], ACCY, True)
    stage2(ACCX, 0)
    rd_wr(0)
    rd_w2(1)
    a('s_waitcnt lgkmcnt(0)')
    stage2(ACCY, 1)
    contract(O[0], ACCX, True)
    rd_wr(2)
    stage2(ACCX, 2)
    a('s_waitcnt lgkmcnt(0)')
    contract(O[1], ACCY, False)
    stage2(ACCY, 3)
    contract(O[2], ACCX, False)
    contract(O[3], ACCY, True)
    reduce_groups(a, O)
    a(f's_add_u32 s{sT}, s{sN0}, s{sJC}')
    a(f's_lshl_b32 s{sT+1}, s{sT}, 8')
    a(f's_add_u32 s{sT+1}, s{sT+1}, {G.PART_OFF}')
    a(f'v_lshlrev_b32 v{vT0}, 2, v{vLANE}')
    a(f'buffer_store_dword v{O[3]}, v{vT0}, s[{sWS}:{sWS+3}], s{sT+1} offen')
    a(f's_mov_b32 s{sPEND}, s{sJC}')
    finalize(a, [O[0], O[1], O[2]], 0, 'X', POOL)

def epilogueZ(a):
    WRB = [POOL + 4*i for i in range(4)]
    O = POOL + 16
    for tau in range(4):
        a(f'ds_read_b128 {rng(WRB[tau])}, v{vIMG} offset:{16384+4096+tau*1024}')
    a('s_waitcnt lgkmcnt(0)')
    for q in range(4):
        for tau in range(4):
            if q == 0: a(f'v_mul_f32 v{O+tau}, v{WRB[tau]}, v{ACCX+4*tau}')
            else: a(f'v_fmac_f32 v{O+tau}, v{WRB[tau]+q}, v{ACCX+4*tau+q}')
    reduce_groups(a, [O])
    a(f'v_add_f32 v{O}, v{O}, v{PTZ}')
    finalize(a, [O], 3, 'Z', POOL)

def sv_loads(a, sj):
    a(f's_add_u32 s{sT}, s{sN0}, s{sj}')
    a(f's_lshl_b32 s{sT}, s{sT}, 9')
    for w in range(4):
        a(f'buffer_load_short_d16_hi v{SV+w}, v{vOUTOFF}, s[{sSV}:{sSV+3}], s{sT} offen offset:{128*w}')

def decode_task(a, stask, sj, sph):
    a(f's_cmp_ge_u32 s{stask}, s{sNN}')
    a(f's_cselect_b32 s{sph}, 1, 0')
    a(f's_cselect_b32 s{sT}, s{sNN}, 0')
    a(f's_sub_u32 s{sj}, s{stask}, s{sT}')
    a(f's_cmp_ge_u32 s{stask}, s{sNN2}')
    a(f's_cselect_b32 s{sj}, 49, s{sj}')

def rotate(a):
    sv_loads(a, sJN)
    a(f's_mov_b32 s{sTC}, s{sTN}')
    a(f's_mov_b32 s{sJC}, s{sJN}')
    a(f's_mov_b32 s{sPH}, s{sPHN}')
    a(f's_mov_b32 s{sNSTC}, s{sNSTN}')
    a(f's_mov_b32 s{sSLOW}, s{sSLOWN}')
    a(f's_mov_b32 s{sTN}, s{sTNN}')
    decode_task(a, sTN, sJN, sPHN)
    a('s_branch K2_TASK')

def gen_k2(a):
    a.raw('.globl k2_kernel\n.p2align 8\n.type k2_kernel,@function')
    a.label('k2_kernel')
    a('s_load_dwordx4 s[4:7], s[0:1], 0')
    a('s_load_dwordx2 s[96:97], s[0:1], 32')
    a('s_load_dwordx2 s[8:9], s[0:1], 64')
    a('s_load_dwordx2 s[10:11], s[0:1], 80')
    a(f's_cmp_ge_u32 s2, {G.NB}')
    a('s_cbranch_scc1 K2_END')
    a(f's_mov_b32 s{sMASK}, 0xffff0000')
    a(f's_mov_b32 s{sSELLO}, 0x05040100')
    a(f's_mov_b32 s{sSELHI}, 0x07060302')
    a(f's_mov_b32 s{s384}, 384')
    a(f's_mov_b32 s{s128}, 128')
    a(f's_and_b32 s{sBK}, s2, 7')
    a(f's_lshl_b32 s{sBK}, s{sBK}, 5')
    a(f's_lshr_b32 s{sT}, s2, 3')
    a(f's_or_b32 s{sBK}, s{sBK}, s{sT}')
    a(f's_mul_i32 s{sN0}, s{sBK}, 12500')
    a(f's_add_u32 s{sNN}, s{sN0}, {12500+255}')
    a(f's_add_u32 s{sN0}, s{sN0}, 255')
    a(f's_lshr_b32 s{sN0}, s{sN0}, 8')
    a(f's_lshr_b32 s{sNN}, s{sNN}, 8')
    a(f's_sub_u32 s{sNN}, s{sNN}, s{sN0}')
    a(f's_lshl_b32 s{sNN2}, s{sNN}, 1')
    a(f'v_and_b32 v{vLANE}, 63, v0')
    a(f'v_and_b32 v{vT1}, 15, v{vLANE}')
    a(f'v_lshrrev_b32 v{vT2}, 4, v{vLANE}')
    a(f'v_lshlrev_b32 v{vLANE16}, 4, v{vT1}')
    a(f'v_lshlrev_b32 v{vLANE8}, 3, v{vT1}')
    a(f'v_sub_u32 v{vOFF1}, 256, v{vLANE8}')
    a('v_lshrrev_b32 v16, 6, v0')
    a(f'v_readfirstlane_b32 s{sWAVE}, v16')
    a(f'v_lshlrev_b32 v{vKGDS}, 4, v{vT2}')
    a(f'v_lshl_add_u32 v{vOUTOFF}, v{vT1}, 2, v{vT2}')
    a(f'v_lshlrev_b32 v{vOUTOFF}, 1, v{vOUTOFF}')
    a(f'v_lshlrev_b32 v{vIMG}, 4, v{vLANE}')
    a(f'v_add_u32 v{vIMG}, {W2IMG}, v{vIMG}')
    a(f's_mul_i32 s{sGS}, s{sWAVE}, {GSW}')
    a(f's_add_u32 s{sGS}, s{sGS}, {GS}')
    a(f'v_mov_b32 v{vGSW}, s{sGS}')
    a(f'v_lshrrev_b32 v{vKGWV}, 2, v{vT1}')
    a(f'v_lshl_add_u32 v{vKGWV}, v{vT2}, 3, v{vKGWV}')
    a(f'v_lshl_add_u32 v{vKGWV}, v{vKGWV}, 2, v{vGSW}')
    a(f'v_and_b32 v{vC8}, 3, v{vLANE}')
    a(f'v_lshlrev_b32 v{vC8}, 3, v{vC8}')
    a(f'v_lshlrev_b32 v{vKGD}, 5, v{vT2}')
    a(f'v_add_u32 v{vKGD}, v{vKGD}, v{vGSW}')
    a(f'v_mov_b32 v{vFREQ}, 0')
    a(f'v_lshlrev_b32 v{vT1}, 1, v{vT1}')
    a('s_waitcnt lgkmcnt(0)')
    G.srd(a, sWS, 10, G.WS_USED)
    G.srd(a, sTAB, 10, G.TAB2_OFF); G.srd_off(a, sTAB2, 10, G.TAB2_OFF, N*128)
    G.srd(a, sSV, 4, N*512); G.srd(a, sOUT, 8, N*512); G.srd(a, sPOSP, 6, N*6)
    a(f'global_load_short_d16_hi v{vFREQ}, v{vT1}, s[96:97]')
    if STAMP:
        a('s_mov_b32 s7, 0')
        a('v_mov_b32 v252, -1')
    mark(a, True); mark(a)
    a(f's_mov_b32 s{sF0}, 0')
    a(f's_mov_b32 s{sW}, {WCAP}')
    a(f's_mov_b32 s{sFIRST}, 1')
    a('s_branch K2_ROUND_IN')
    a.label('K2_ROUND')
    a('s_barrier')
    a.label('K2_ROUND_IN')
    a('v_lshrrev_b32 v16, 6, v0')
    a(f'v_lshl_add_u32 v17, v16, 5, v{vLANE}')
    a(f'v_cmp_gt_u32 vcc, 32, v{vLANE}')
    a(f'v_mov_b32 v{vSEGLO}, 0')
    a(f'v_mov_b32 v18, {G.NCH}')
    a(f'v_cmp_lt_u32 s[{sT}:{sT+1}], v17, v18')
    a(f's_and_b64 vcc, vcc, s[{sT}:{sT+1}]')
    a('v_lshlrev_b32 v18, 2, v17')
    a(f's_lshl_b32 s{sT}, s{sBK}, 10')
    a(f's_add_u32 s{sT}, s{sT}, {G.SEG_OFF}')
    a(f's_and_saveexec_b64 s[{sEX}:{sEX+1}], vcc')
    a(f'buffer_load_dword v{vSEGLO}, v18, s[{sWS}:{sWS+3}], s{sT} offen')
    a(f's_mov_b64 exec, s[{sEX}:{sEX+1}]')
    a(f'v_mul_u32_u24 v{vSEGHI}, {G.CHE}, v17')
    dma_pos(a, 0, NP1, 'P1')
    a(f's_cmp_eq_u32 s{sFIRST}, 1')
    a('s_cbranch_scc1 K2_WSEG')
    a('s_waitcnt vmcnt(0)')
    a.label('K2_WSEG')
    a(f's_waitcnt vmcnt({NP1})')
    mark(a)
    a(f'v_and_b32 v18, 0xffff, v{vSEGLO}')
    a(f'v_add_u32 v{vSEGHI}, v{vSEGHI}, v18')
    a(f'v_lshrrev_b32 v{vSEGLO}, 16, v{vSEGLO}')
    a(f'v_mov_b32 v{vPFX}, v{vSEGLO}')
    for sh in (1, 2, 4, 8):
        a(f'v_add_u32_dpp v{vPFX}, v{vPFX}, v{vPFX} row_shr:{sh} row_mask:0xf bank_mask:0xf')
    a(f'v_add_u32_dpp v{vPFX}, v{vPFX}, v{vPFX} row_bcast:15 row_mask:0xa bank_mask:0xf')
    a(f'v_readlane_b32 s{sTOT}, v{vPFX}, 31')
    a(f'v_sub_u32 v{vPFX}, v{vPFX}, v{vSEGLO}')
    a('v_lshlrev_b32 v18, 4, v0')
    a('v_mov_b32 v24, 0\nv_mov_b32 v25, 0\nv_mov_b32 v26, 0\nv_mov_b32 v27, 0')
    a(f'v_add_u32 v19, {CNT}, v18')
    a('v_cmp_gt_u32 vcc, 40, v0')
    a(f's_and_saveexec_b64 s[{sEX}:{sEX+1}], vcc')
    a('ds_write_b128 v19, v[24:27]')
    a(f's_mov_b64 exec, s[{sEX}:{sEX+1}]')
    a(f'v_subrev_u32 v30, s{sF0}, v{vPFX}')
    a('v_sub_u32 v31, 0, v30')
    a('v_max_i32 v31, 0, v31')
    a(f'v_sub_u32 v32, s{sW}, v30')
    a(f'v_min_i32 v32, v32, v{vSEGLO}')
    a('v_add_u32 v33, v30, v31')
    a('v_lshlrev_b32 v33, 2, v33')
    a(f'v_add_u32 v33, s{sGS}, v33')
    a(f'v_add_lshl_u32 v28, v{vSEGHI}, v31, 2')
    a('v_sub_u32 v32, v32, v31')
    a.label('K2_MK')
    a('v_cmp_lt_i32 vcc, 0, v32')
    a('s_cbranch_vccz K2_MK_DONE')
    a(f's_and_saveexec_b64 s[{sEX}:{sEX+1}], vcc')
    a('ds_write_b32 v33, v28')
    a('v_add_u32 v29, 4, v28')
    a('v_cmp_lt_i32 vcc, 1, v32')
    a('s_and_b64 exec, exec, vcc')
    a('ds_write_b32 v33, v29 offset:4')
    a(f's_mov_b64 exec, s[{sEX}:{sEX+1}]')
    a('v_add_u32 v33, 8, v33')
    a('v_add_u32 v28, 8, v28')
    a('v_subrev_u32 v32, 2, v32')
    a('s_branch K2_MK')
    a.label('K2_MK_DONE')
    dma_pos(a, NP1, NP1+NP2, 'P2')
    a(f's_sub_i32 s{sT}, s{sTOT}, s{sF0}')
    a(f's_max_i32 s{sT}, s{sT}, 0')
    a(f's_min_i32 s{sNV}, s{sT}, s{sW}')
    a(f's_cmp_gt_i32 s{sT}, s{sW}')
    a(f's_cselect_b32 s{sMORE}, 1, 0')
    U = WCAP // 64
    a(f'v_lshl_add_u32 v30, v{vLANE}, 2, v{vGSW}')
    RIDX = lambda u: 116 + u
    for u in range(U):
        a(f'ds_read_b32 v{RIDX(u)}, v30 offset:{256*u}')
    for u in range(U):
        a(f's_sub_i32 s{sT}, s{sNV}, {64*u}')
        a(f'v_cmp_gt_i32 s[{sMK+2*u}:{sMK+2*u+1}], s{sT}, v{vLANE}')
    dma_pos(a, NP1+NP2, 10, 'P3')
    a(f's_mov_b32 s{sT2}, {G.REC_OFF}')
    RR = lambda u: 136 + u
    a(f's_mov_b64 s[{sEX}:{sEX+1}], exec')
    for u in range(U):
        a(f's_waitcnt lgkmcnt({U-1-u})')
        a(f's_mov_b64 exec, s[{sMK+2*u}:{sMK+2*u+1}]')
        a(f'buffer_load_dword v{RR(u)}, v{RIDX(u)}, s[{sWS}:{sWS+3}], s{sT2} offen')
    a(f's_mov_b64 exec, s[{sEX}:{sEX+1}]')
    dma_const(a, 'C')
    if NPF > 0:
        a(f's_lshr_b32 s{sT}, s2, 3')
        a(f's_lshl_b32 s{sT}, s{sT}, 17')
        a(f's_lshl_b32 s{sT+1}, s{sWAVE}, 14')
        a(f's_add_u32 s{sT}, s{sT}, s{sT+1}')
        a(f'v_lshlrev_b32 v35, 4, v{vLANE}')
        for i in range(NPF):
            a(f'buffer_load_dwordx4 v[{188+4*(i%16)}:{191+4*(i%16)}], v35, s[{sTAB}:{sTAB+3}], s{sT} offen offset:{(i%4)*1024}')
            if i % 4 == 3: a(f's_add_u32 s{sT}, s{sT}, 4096')
    a('s_waitcnt lgkmcnt(0)')
    mark(a)
    a('s_barrier')
    a(f's_cmp_eq_u32 s{sFIRST}, 1')
    a('s_cbranch_scc1 K2_WREC1')
    a('s_waitcnt vmcnt(0)')
    a('s_branch K2_WREC2')
    a.label('K2_WREC1')
    a(f's_waitcnt vmcnt({7+NPF})')
    a.label('K2_WREC2')
    mark(a)
    DL = lambda u: 92 + u
    RK = lambda u: 102 + u
    a('v_mov_b32 v28, 1')
    for u in range(U):
        a(f's_cmp_eq_u64 s[{sMK+2*u}:{sMK+2*u+1}], 0')
        a('s_cbranch_scc1 K2_AT_DONE')
        a(f's_mov_b64 exec, s[{sMK+2*u}:{sMK+2*u+1}]')
        a(f'v_lshrrev_b32 v{DL(u)}, 16, v{RR(u)}')
        a(f'v_subrev_u32 v{DL(u)}, s{sN0}, v{DL(u)}')
        a(f'v_lshlrev_b32 v36, 2, v{DL(u)}')
        a(f'v_add_u32 v36, {CNT}, v36')
        a(f'ds_add_rtn_u32 v{RK(u)}, v36, v28')
    a.label('K2_AT_DONE')
    a('s_waitcnt lgkmcnt(0)')
    a(f's_mov_b64 s[{sOVF}:{sOVF+1}], 0')
    for u in range(U):
        a(f's_cmp_eq_u64 s[{sMK+2*u}:{sMK+2*u+1}], 0')
        a('s_cbranch_scc1 K2_PL_DONE')
        a(f's_mov_b64 exec, s[{sMK+2*u}:{sMK+2*u+1}]')
        a(f'v_cmp_gt_u32 vcc, 128, v{RK(u)}')
        a(f'v_lshl_add_u32 v34, v{DL(u)}, 7, v{RK(u)}')
        a(f's_andn2_b64 s[{sT}:{sT+1}], exec, vcc')
        a(f's_or_b64 s[{sOVF}:{sOVF+1}], s[{sOVF}:{sOVF+1}], s[{sT}:{sT+1}]')
        a('s_and_b64 exec, exec, vcc')
        a('v_lshlrev_b32 v34, 1, v34')
        a(f'ds_write_b16 v34, v{RR(u)}')
    a.label('K2_PL_DONE')
    a(f's_mov_b64 exec, s[{sEX}:{sEX+1}]')
    a(f'v_mov_b32 v35, {MISC}')
    a(f's_cmp_eq_u64 s[{sOVF}:{sOVF+1}], 0')
    a('s_cbranch_scc1 K2_NOOVF')
    a('ds_write_b32 v35, v28 offset:4')
    a.label('K2_NOOVF')
    a(f's_cmp_eq_u32 s{sMORE}, 0')
    a('s_cbranch_scc1 K2_NOMORE')
    a('ds_write_b32 v35, v28 offset:8')
    a.label('K2_NOMORE')
    a('s_waitcnt lgkmcnt(0)')
    mark(a)
    a('s_barrier')
    a('ds_read_b32 v30, v35 offset:4')
    a('ds_read_b32 v31, v35 offset:8')
    a(f'v_lshrrev_b32 v32, 5, v{vLANE}')
    a(f'v_and_b32 v33, 31, v{vLANE}')
    a(f's_lshl_b32 s{sT}, s{sWAVE}, 1')
    a(f'v_add_u32 v32, s{sT}, v32')
    for i in range(4):
        a(f'v_lshlrev_b32 v{40+i}, 2, v32')
        a(f'v_add_u32 v{40+i}, {CNT+64*i}, v{40+i}')
        a(f'ds_read_b32 v{44+i}, v{40+i}')
    a('s_waitcnt lgkmcnt(4)')
    a(f'v_readfirstlane_b32 s{sT}, v30')
    a(f'v_readfirstlane_b32 s{sMORE}, v31')
    a(f's_cmp_eq_u32 s{sT}, 0')
    a('s_cbranch_scc1 K2_GO')
    a('s_waitcnt vmcnt(0) lgkmcnt(0)')
    a(f's_lshr_b32 s{sW}, s{sW}, 1')
    a('s_branch K2_ROUND')
    a.label('K2_GO')
    a(f's_xor_b32 s{sRLAST}, s{sMORE}, 1')
    a(f'v_mov_b32 v36, {PADMARK}')
    a('s_waitcnt lgkmcnt(0)')
    for i in range(4):
        c = 44+i
        a(f'v_add_u32 v37, 31, v{c}')
        a('v_lshrrev_b32 v37, 5, v37')
        a('v_max_u32 v37, 1, v37')
        a('v_subrev_u32 v37, 1, v37')
        a('v_lshl_add_u32 v37, v37, 5, v33')
        a(f'v_cmp_ge_u32 vcc, v37, v{c}')
        a(f'v_add_u32 v38, {16*i}, v32')
        a(f'v_cmp_gt_u32 s[{sT}:{sT+1}], 50, v38')
        a(f's_and_b64 vcc, vcc, s[{sT}:{sT+1}]')
        a('v_lshl_add_u32 v37, v38, 7, v37')
        a('s_and_b64 exec, exec, vcc')
        a('v_lshlrev_b32 v39, 1, v37')
        a('ds_write_b16 v39, v36')
        a(f's_mov_b64 exec, s[{sEX}:{sEX+1}]')
    a(f's_waitcnt vmcnt({NPF}) lgkmcnt(0)')
    mark(a)
    a('s_barrier')
    mark(a)
    a(f's_mov_b32 s{sPEND}, -1')
    a(f's_mov_b32 s{sZWARM}, 0')
    a(f'v_mov_b32 v{vT0}, {MISC}')
    a(f'v_mov_b32 v{vT1}, 1')
    a('s_mov_b64 exec, 1')
    a(f'ds_add_rtn_u32 v{vM1}, v{vT0}, v{vT1}')
    a(f'ds_add_rtn_u32 v{vM2}, v{vT0}, v{vT1}')
    a(f's_mov_b64 exec, s[{sEX}:{sEX+1}]')
    a('s_waitcnt lgkmcnt(0)')
    a(f'v_readfirstlane_b32 s{sTC}, v{vM1}')
    a(f'v_readfirstlane_b32 s{sTN}, v{vM2}')
    a(f's_cmp_ge_u32 s{sTC}, s{sNN2}')
    a('s_cbranch_scc1 K2_WAVE_DONE')
    decode_task(a, sTC, sJC, sPH)
    decode_task(a, sTN, sJN, sPHN)
    a(f's_lshl_b32 s{sT}, s{sJC}, 2')
    a(f's_add_u32 s{sT}, s{sT}, {CNT}')
    a(f'v_mov_b32 v{vT2}, s{sT}')
    a(f'ds_read_b32 v{vM1}, v{vT2}')
    a(f's_lshl_b32 s{sBASE}, s{sJC}, 7')
    a(f's_lshl_b32 s{sT}, s{sBASE}, 1')
    a(f'v_add_u32 v{vDSA}, s{sT}, v{vKGDS}')
    a(f'ds_read_b128 {rng(DS)}, v{vDSA}')
    for w in range(4): a(f'v_mov_b32 v{SV+w}, 0')
    a('s_waitcnt lgkmcnt(0)')
    a(f'v_readfirstlane_b32 s{sCNTN}, v{vM1}')
    a(f's_add_u32 s{sNSTC}, s{sCNTN}, 31')
    a(f's_lshr_b32 s{sNSTC}, s{sNSTC}, 5')
    a(f's_max_u32 s{sNSTC}, s{sNSTC}, 1')
    sv_loads(a, sJC)
    a(f's_cmp_eq_u32 s{sPH}, 1')
    a('s_cbranch_scc1 K2_TASK')
    x_loads0(a); x_loads1(a)
    geo_compute(a, sJC, sCNTN, sPH, 'P')
    a(f's_mov_b32 s{sSLOW}, s{sNSL}')
    geo_write(a, 'P')
    a(f'v_mov_b32 v{vWVA}, v{vKGWV}')
    a(f'v_mov_b32 v{vDA}, v{vKGD}')
    a(f'ds_read2_b32 v[{TMP}:{TMP+1}], v{vWVA} offset0:0 offset1:4')
    r_reads(a)
    a('s_waitcnt lgkmcnt(6)')
    a(f'v_add_u32 v{TMP}, v{TMP}, v{vC8}')
    a(f'v_add_u32 v{TMP+1}, v{TMP+1}, v{vC8}')
    next_tr(a, True)
    a.label('K2_TASK')
    a(f's_cmp_ge_u32 s{sTC}, s{sNN2}')
    a('s_cbranch_scc1 K2_WAVE_DONE')
    mark(a)
    a(f's_mov_b32 s{sK}, 0')
    a(f's_cmp_eq_u32 s{sPH}, 1')
    a('s_cbranch_scc1 K2_NODE_Z')
    step(a, 0, True)
    a(f's_cmp_eq_u32 s{sLAST}, 1')
    a('s_cbranch_scc1 K2_EPI_X')
    a.label('K2_STEP_X')
    a(f's_add_u32 s{sK}, s{sK}, 1')
    step(a, 0, False)
    a(f's_cmp_eq_u32 s{sLAST}, 1')
    a('s_cbranch_scc0 K2_STEP_X')
    a.label('K2_EPI_X')
    mark(a)
    a.safe()
    a('s_waitcnt vmcnt(16)')
    flush_pending(a, 'EX', 16)
    epilogueX(a)
    rotate(a)
    z_task(a)
    a.label('K2_WAVE_DONE')
    flush_pending(a, 'WD', 0)
    a(f's_cmp_eq_u32 s{sRLAST}, 1')
    a('s_cbranch_scc1 K2_END')
    a('s_waitcnt vmcnt(0) lgkmcnt(0)')
    a(f's_mov_b32 s{sFIRST}, 0')
    a(f's_add_u32 s{sF0}, s{sF0}, s{sW}')
    a(f's_lshl_b32 s{sW}, s{sW}, 1')
    a(f's_min_u32 s{sW}, s{sW}, {WCAP}')
    a('s_branch K2_ROUND')
    a.label('K2_END')
    if STAMP:
        a(f's_cmp_ge_u32 s2, {G.NB}')
        a('s_cbranch_scc1 K2_END2')
        a('s_waitcnt vmcnt(0)')
        mark(a); mark(a, True)
        dump(a)
        a.label('K2_END2')
    a('s_endpgm')
    return True
```

```python
import os
import gen as G

N = 12500
NSLOT = 49*128 + 32
DS_BASE = 0
POS = 12800
GS = POS + 75776
GSW = 2048
W2IMG = GS + 8*GSW
WRIMG = W2IMG + 16384
GT = WRIMG + 12288
CNT = GT + 26*1024
MISC = CNT + 256
K2_LDS = MISC + 128
PADMARK = 0x7000
MREG = GS
WCAP = 512
NTS = ' nt' if os.environ.get('NT','0')=='1' else ''
PRIO = int(os.environ.get('PRIO','0'))
LPRIO = int(os.environ.get('LPRIO','0'))
PK = int(os.environ.get('PK','0'))
NPF = int(os.environ.get('NPF','0'))
NPF2 = int(os.environ.get('NPF2','0'))
NPF3 = int(os.environ.get('NPF3','0'))
NP4 = int(os.environ.get('NP4','0'))
NP1 = int(os.environ.get('NP1','4'))
NP2 = int(os.environ.get('NP2','3'))

vLANE16, vFREQ, vKGWV, vKGDS, vWVA, vDSA, vOUTOFF = 1, 2, 3, 4, 5, 6, 7
SV = 8
vIMG = 12
vT0, vT1, vT2 = 13, 14, 15
DS = 16
vKGD, vDA, vLANE, vGSW = 20, 21, 22, 23
vC8 = 254
POOL = 24
GR = 56
L0 = 72; L1 = 104
ACCV = 136; ACCH = 184
vSEGLO, vSEGHI = 248, 249
vM1, vM2 = 250, 251
vPFX = 253
sTAB, sWS, sSV, sOUT = 12, 16, 20, 24
sMASK, sSELLO, sSELHI, s512 = 28, 29, 30, 31
sN0, sNN = 32, 33
sJC, sNSTC, sJN, sNSTN, sK, sBASE, sNBASE, sJNN, sLAST = 34, 35, 36, 37, 38, 39, 40, 41, 42
sWAVE, sF0, sW, sTOT, sNV, sFIRST, sRLAST = 43, 44, 45, 46, 47, 48, 49
sEX = 50
sT = 52
sMK = 56
sMORE, sCNTN, sFIVE, sGS = 76, 77, 78, 79
sSLOW = 84
sPOSP = 80
sOVF = 88
sT2 = 90
sBK = 91

STAMP = os.environ.get('STAMP','0') == '1'
def mark(a, real=False):
    if not STAMP: return
    a(f"{'s_memrealtime' if real else 's_memtime'} s[100:101]")
    a('s_waitcnt lgkmcnt(0)')
    a('s_min_u32 s98, s98, 63')
    a('s_mov_b32 m0, s98')
    a('s_nop 1')
    a('v_writelane_b32 v252, s100, m0')
    a('s_add_u32 s98, s98, 1')
def dump(a):
    if not STAMP: return
    a('s_load_dwordx2 s[100:101], s[0:1], 80')
    a('s_waitcnt lgkmcnt(0)')
    a(f's_add_u32 s56, s100, {G.STAMP_OFF+0x100000}')
    a('s_addc_u32 s57, s101, 0')
    a('s_and_b32 s57, s57, 0xffff')
    a('s_mov_b32 s58, 0x100000')
    a('s_mov_b32 s59, 0x20000')
    a('s_mov_b64 exec, -1')
    a('v_lshrrev_b32 v13, 6, v0')
    a('v_lshlrev_b32 v13, 8, v13')
    a('v_and_b32 v14, 63, v0')
    a('v_lshl_add_u32 v13, v14, 2, v13')
    a('s_lshl_b32 s60, s2, 11')
    a('buffer_store_dword v252, v13, s[56:59], s60 offen')
    a('s_waitcnt vmcnt(0)')

def Gr(w, p): return GR + 4*w + p
def accV(k, tau): return ACCV + 16*k + 4*tau
def accH(w, t): return ACCH + 16*w + 4*t
def rng(b, n=4): return f'v[{b}:{b+n-1}]'

def addr_calc(a, ADDR):
    for j in range(8):
        a(f'v_mad_u32_u16 v{ADDR+j}, v{DS+(j>>1)}, s{s512}, v{vLANE16} op_sel:[{j&1},0,0,0]')

def step(a, first):
    tag = 'F' if first else 'R'
    RX, RY, RZ = POOL, POOL + 8, POOL + 16
    TMP = POOL + 24
    if first:
        a(f'v_mov_b32 v{vT0}, {MISC}')
        a(f'v_mov_b32 v{vT1}, 1')
        a(f's_min_u32 s{sT}, s{sJN}, 49')
        a(f's_lshl_b32 s{sT}, s{sT}, 2')
        a(f's_add_u32 s{sT}, s{sT}, {CNT}')
        a(f'v_mov_b32 v{vT2}, s{sT}')
        a(f's_mov_b64 s[{sEX}:{sEX+1}], exec')
        a('s_mov_b64 exec, 1')
        a(f'ds_add_rtn_u32 v{vM1}, v{vT0}, v{vT1}')
        a(f'ds_read_b32 v{vM2}, v{vT2}')
        a(f's_mov_b64 exec, s[{sEX}:{sEX+1}]')
    a(f's_add_u32 s{sT}, s{sK}, 1')
    a(f's_cmp_eq_u32 s{sT}, s{sNSTC}')
    a(f's_cselect_b32 s{sLAST}, 1, 0')
    a(f's_min_u32 s{sT+1}, s{sJN}, 49')
    a(f's_lshl_b32 s{sT+1}, s{sT+1}, 7')
    a(f's_add_u32 s{sT+2}, s{sBASE}, 32')
    a(f's_cmp_eq_u32 s{sLAST}, 1')
    a(f's_cselect_b32 s{sNBASE}, s{sT+1}, s{sT+2}')
    a(f's_lshl_b32 s{sT}, s{sNBASE}, 1')
    a(f'v_add_u32 v{vDSA}, s{sT}, v{vKGDS}')
    a(f's_cmp_eq_u32 s{sSLOW}, 1')
    a(f's_cbranch_scc1 K2_SLOWG_{tag}')
    a(f'ds_read2_b32 v[{TMP}:{TMP+1}], v{vWVA} offset0:0 offset1:4')
    for (R, off) in ((RX, 512), (RY, 1024), (RZ, 1536)):
        a(f'ds_read_b128 {rng(R)}, v{vDA} offset:{off}')
        a(f'ds_read_b128 {rng(R+4)}, v{vDA} offset:{off+16}')
    a('s_waitcnt lgkmcnt(6)')
    a(f'v_add_u32 v{TMP}, v{TMP}, v{vC8}')
    a(f'v_add_u32 v{TMP+1}, v{TMP+1}, v{vC8}')
    a(f'ds_read_b64_tr_b16 v[{Gr(0,0)}:{Gr(0,1)}], v{TMP}')
    a(f'ds_read_b64_tr_b16 v[{Gr(0,2)}:{Gr(0,3)}], v{TMP+1}')
    a(f'ds_read_b128 {rng(DS)}, v{vDSA}')
    a('s_waitcnt lgkmcnt(1)')
    a(f's_branch K2_G1_{tag}')
    a.label(f'K2_SLOWG_{tag}')
    a(f'ds_read_b128 {rng(RX)}, v{vDA}')
    a(f'ds_read_b128 {rng(RX+4)}, v{vDA} offset:16')
    a('s_waitcnt lgkmcnt(0)')
    for p in range(4):
        for h in range(2):
            d = RX + 2*p + h; t = TMP + 2 + h; iv = TMP + 4 + h; sn = TMP + 6 + h
            def rnd1(x):
                a(f'v_cvt_pk_bf16_f32 v{x}, v{x}, v{x}')
                a(f'v_and_b32 v{x}, s{sMASK}, v{x}')
            a(f'v_rcp_f32 v{iv}, v{d}')
            a(f'v_mul_f32 v{t}, 0x40490fdb, v{d}'); rnd1(t)
            a(f'v_mul_f32 v{t}, 0x3e4ccccd, v{t}'); rnd1(t)
            a(f'v_mul_f32 v{t}, 0.15915494, v{t}')
            a(f'v_cos_f32 v{t}, v{t}'); rnd1(t)
            a(f'v_add_f32 v{t}, 1.0, v{t}'); rnd1(t)
            a(f'v_mul_f32 v{iv}, 0.5, v{iv}')
            a(f'v_mul_f32 v{t}, v{t}, v{iv}')
            a(f'v_cmp_lt_f32 vcc, 0, v{d}')
            a(f'v_mul_f32 v{sn}, v{d}, v{vFREQ}'); rnd1(sn)
            a(f'v_cndmask_b32 v{t}, 0, v{t}, vcc')
            a(f'v_mul_f32 v{sn}, 0.15915494, v{sn}')
            a(f'v_sin_f32 v{sn}, v{sn}')
            a(f'v_mul_f32 v{sn}, v{sn}, v{t}')
        a(f'v_cvt_pk_bf16_f32 v{Gr(0,p)}, v{TMP+6}, v{TMP+7}')
    for (R, off) in ((RX, 512), (RY, 1024), (RZ, 1536)):
        a(f'ds_read_b128 {rng(R)}, v{vDA} offset:{off}')
        a(f'ds_read_b128 {rng(R+4)}, v{vDA} offset:{off+16}')
    a(f'ds_read_b128 {rng(DS)}, v{vDSA}')
    a('s_waitcnt lgkmcnt(1)')
    a.label(f'K2_G1_{tag}')
    for p in range(4):
        g0, g1 = TMP + 2, TMP + 3
        a(f'v_lshlrev_b32 v{g0}, 16, v{Gr(0,p)}')
        a(f'v_and_b32 v{g1}, s{sMASK}, v{Gr(0,p)}')
        for k, R in enumerate((RX, RY, RZ)):
            t0, t1 = TMP + 4 + 2*(k % 2), TMP + 5 + 2*(k % 2)
            if PK:
                a(f'v_pk_mul_f32 v[{t0}:{t1}], v[{g0}:{g1}], v[{R+2*p}:{R+2*p+1}]')
            else:
                a(f'v_mul_f32 v{t0}, v{g0}, v{R+2*p}')
                a(f'v_mul_f32 v{t1}, v{g1}, v{R+2*p+1}')
            a(f'v_cvt_pk_bf16_f32 v{Gr(1+k,p)}, v{t0}, v{t1}')
    if first:
        a(f'v_readfirstlane_b32 s{sJNN}, v{vM1}')
        a(f'v_readfirstlane_b32 s{sCNTN}, v{vM2}')
        a(f's_add_u32 s{sNSTN}, s{sCNTN}, 31')
        a(f's_lshr_b32 s{sNSTN}, s{sNSTN}, 5')
        a(f's_max_u32 s{sNSTN}, s{sNSTN}, 1')
    TB = [POOL + 4*i for i in range(4)]
    ADDR = POOL + 16
    def perms(L, q, half, dst):
        sel = sSELHI if half else sSELLO
        for p in range(4):
            a(f'v_perm_b32 v{dst+p}, v{L+4*(2*p+1)+q}, v{L+4*(2*p)+q}, s{sel}')
    def mf(acc, A, B):
        c = '0' if first else rng(acc)
        a(f'v_mfma_f32_16x16x32_bf16 {rng(acc)}, {rng(A)}, {rng(B)}, {c}')
    a('s_waitcnt vmcnt(8)')
    for t in range(8):
        perms(L0, t >> 1, t & 1, TB[t % 4])
        if t >= 1:
            mf(accV((t-1) >> 2, (t-1) & 3), Gr(0,0), TB[(t-1) % 4])
    a('s_waitcnt lgkmcnt(0)')
    for j in range(8):
        a(f'v_mad_u32_u16 v{ADDR+j}, v{DS+(j>>1)}, s{s512}, v{vLANE16} op_sel:[{j&1},0,0,0]')
        if j == 1: mf(accV(1, 3), Gr(0,0), TB[7 % 4])
    if LPRIO: a(f's_setprio {LPRIO}')
    for j in range(8):
        a(f'buffer_load_dwordx4 {rng(L0+4*j)}, v{ADDR+j}, s[{sTAB}:{sTAB+3}], 0 offen')
    if LPRIO: a('s_setprio 0')
    a('s_waitcnt vmcnt(8)')
    order = [('h', t) for t in range(4)] + [('z', t) for t in range(4)]
    def tile_perm_list(kind, t, dst):
        q = (2 + (t >> 1)) if kind == 'h' else (t >> 1)
        half = t & 1
        sel = sSELHI if half else sSELLO
        return [f'v_perm_b32 v{dst+p}, v{L1+4*(2*p+1)+q}, v{L1+4*(2*p)+q}, s{sel}' for p in range(4)]
    def tile_mfma_list(kind, t, src):
        out = []
        if kind == 'h':
            for w in range(4):
                acc = accH(w, t); c = '0' if first else rng(acc)
                out.append(f'v_mfma_f32_16x16x32_bf16 {rng(acc)}, {rng(src)}, {rng(Gr(w,0))}, {c}')
        else:
            acc = accV(2, t); c = '0' if first else rng(acc)
            out.append(f'v_mfma_f32_16x16x32_bf16 {rng(acc)}, {rng(Gr(0,0))}, {rng(src)}, {c}')
        return out
    for l in tile_perm_list(*order[0], TB[0]): a(l)
    for i in range(1, 8):
        pl = tile_perm_list(*order[i], TB[i % 4])
        ml = tile_mfma_list(*order[i-1], TB[(i-1) % 4])
        if len(ml) == 4:
            a(pl[0]); a(pl[1]); a(ml[0]); a(pl[2]); a(ml[1]); a(pl[3]); a(ml[2]); a(ml[3])
        else:
            for l in pl: a(l)
            a(ml[0])
    ml = tile_mfma_list(*order[7], TB[7 % 4])
    if LPRIO: a(f's_setprio {LPRIO}')
    for j in range(8):
        a(f'buffer_load_dwordx4 {rng(L1+4*j)}, v{ADDR+j}, s[{sTAB}:{sTAB+3}], 0 offen offset:256')
        if j == 1: a(ml[0])
    if LPRIO: a('s_setprio 0')
    a(f's_mov_b32 s{sBASE}, s{sNBASE}')
    a(f'v_add_u32 v{vWVA}, 128, v{vWVA}')
    a(f'v_add_u32 v{vDA}, 128, v{vDA}')

def geometry(a, sJ, sCNT, tag):
    P = POOL
    src = [P, P+1]; D = [P+2, P+4]
    dp = [P+6, P+7, P+8]
    ROWV = [P+9, P+10]; DV = [P+11, P+12]
    T = list(range(P+13, P+32))
    a(f's_lshl_b32 s{sT}, s{sJ}, 8')
    a(f'v_lshlrev_b32 v{T[0]}, 1, v{vLANE}')
    a(f'v_add_u32 v{T[0]}, s{sT}, v{T[0]}')
    a(f'ds_read_u16 v{src[0]}, v{T[0]}')
    a(f'ds_read_u16 v{src[1]}, v{T[0]} offset:128')
    a(f's_add_u32 s{sT}, s{sN0}, s{sJ}')
    a(f's_mul_i32 s{sT}, s{sT}, 6')
    a(f's_add_u32 s{sT}, s{sT}, {POS}')
    a(f's_min_u32 s{sT}, s{sT}, {POS+75000-6}')
    a(f'v_mov_b32 v{T[1]}, s{sT}')
    for c in range(3): a(f'v_mov_b32 v{dp[c]}, 0')
    for c in range(3): a(f'ds_read_u16_d16_hi v{dp[c]}, v{T[1]} offset:{2*c}')
    a(f's_mov_b32 s{sSLOW}, 0')
    a(f'v_mov_b32 v{ROWV[1]}, {GT}')
    a(f'v_mov_b32 v{DV[1]}, 0')
    a('s_waitcnt lgkmcnt(3)')
    for it in range(2):
        s_ = src[it]
        a(f's_sub_i32 s{sT+1}, s{sCNT}, {64*it}')
        a(f'v_cmp_gt_i32 s[{sMK+2*it}:{sMK+2*it+1}], s{sT+1}, v{vLANE}')
        a(f'v_cndmask_b32 v{s_}, 0, v{s_}, s[{sMK+2*it}:{sMK+2*it+1}]')
        a(f'v_mul_u32_u24 v{T[0]}, 6, v{s_}')
        a(f'v_and_b32 v{T[0]}, -4, v{T[0]}')
        a(f'v_add_u32 v{T[0]}, {POS}, v{T[0]}')
        a(f'ds_read2_b32 v[{D[it]}:{D[it]+1}], v{T[0]} offset0:0 offset1:1')
        a(f'v_and_b32 v{s_}, 1, v{s_}')
        a(f'v_lshlrev_b32 v{s_}, 4, v{s_}')
    for it in range(2):
        if it == 1:
            a(f's_cmp_le_u32 s{sCNT}, 64')
            a(f's_cbranch_scc1 K2_GEO_W_{tag}')
        a(f's_waitcnt lgkmcnt({1-it})')
        rx, ry, rz, p = T[2], T[3], T[4], T[5]
        a(f'v_alignbit_b32 v{ry}, v{D[it]+1}, v{D[it]}, v{src[it]}')
        a(f'v_lshrrev_b32 v{rz}, v{src[it]}, v{D[it]+1}')
        a(f'v_lshlrev_b32 v{rx}, 16, v{ry}')
        a(f'v_and_b32 v{ry}, s{sMASK}, v{ry}')
        a(f'v_lshlrev_b32 v{rz}, 16, v{rz}')
        a(f'v_sub_f32 v{rx}, v{rx}, v{dp[0]}')
        a(f'v_sub_f32 v{ry}, v{ry}, v{dp[1]}')
        a(f'v_sub_f32 v{rz}, v{rz}, v{dp[2]}')
        def rnd2(x, y):
            a(f'v_cvt_pk_bf16_f32 v{p}, v{x}, v{y}')
            a(f'v_lshlrev_b32 v{x}, 16, v{p}')
            a(f'v_and_b32 v{y}, s{sMASK}, v{p}')
        def rnd1(x):
            a(f'v_cvt_pk_bf16_f32 v{x}, v{x}, v{x}')
            a(f'v_and_b32 v{x}, s{sMASK}, v{x}')
        rnd2(rx, ry); rnd1(rz)
        qx, qy, qz = T[6], T[7], T[8]
        a(f'v_mul_f32 v{qx}, v{rx}, v{rx}')
        a(f'v_mul_f32 v{qy}, v{ry}, v{ry}')
        a(f'v_mul_f32 v{qz}, v{rz}, v{rz}')
        rnd2(qx, qy); rnd1(qz)
        d = T[9]
        a(f'v_add_f32 v{d}, v{qx}, v{qy}')
        a(f'v_add_f32 v{d}, v{d}, v{qz}')
        rnd1(d)
        a(f'v_add_f32 v{d}, 0x322bcc77, v{d}')
        rnd1(d)
        a(f'v_sqrt_f32 v{d}, v{d}')
        rnd1(d)
        inv = qx
        a(f'v_rcp_f32 v{inv}, v{d}')
        a(f'v_cmp_gt_f32 vcc, 0x40a00000, v{d}')
        a(f's_and_b64 s[{sT+2}:{sT+3}], vcc, s[{sMK+2*it}:{sMK+2*it+1}]')
        a(f'v_lshrrev_b32 v{qy}, 16, v{d}')
        a(f'v_mul_f32 v{rx}, v{rx}, v{inv}')
        a(f'v_mul_f32 v{ry}, v{ry}, v{inv}')
        a(f'v_mul_f32 v{rz}, v{rz}, v{inv}')
        a(f'v_cmp_gt_u32 vcc, {G.GT_T0}, v{qy}')
        a(f'v_lshlrev_b32 v{qy}, 5, v{qy}')
        a(f'v_add_u32 v{qy}, {GT + 32 - 32*G.GT_T0}, v{qy}')
        a(f's_and_b64 vcc, vcc, s[{sT+2}:{sT+3}]')
        a(f's_cmp_lg_u64 vcc, 0')
        a(f's_cselect_b32 s{sT}, 1, 0')
        if os.environ.get('NOSLOW','0') != '1': a(f's_or_b32 s{sSLOW}, s{sSLOW}, s{sT}')
        rnd2(rx, ry); rnd1(rz)
        a(f'v_mov_b32 v{qz}, {GT}')
        a(f'v_cndmask_b32 v{ROWV[it]}, v{qz}, v{qy}, s[{sT+2}:{sT+3}]')
        a(f'v_cndmask_b32 v{DV[it]}, 0, v{d}, s[{sT+2}:{sT+3}]')
        a(f'v_lshl_add_u32 v{T[0]}, v{vLANE}, 2, v{vGSW}')
        a(f'ds_write_b32 v{T[0]}, v{rx} offset:{512+256*it}')
        a(f'ds_write_b32 v{T[0]}, v{ry} offset:{1024+256*it}')
        a(f'ds_write_b32 v{T[0]}, v{rz} offset:{1536+256*it}')
    a.label(f'K2_GEO_W_{tag}')
    a(f'v_lshl_add_u32 v{T[0]}, v{vLANE}, 2, v{vGSW}')
    a(f's_cmp_eq_u32 s{sSLOW}, 1')
    a(f's_cbranch_scc1 K2_GEO_S_{tag}')
    a(f'ds_write_b32 v{T[0]}, v{ROWV[0]}')
    a(f'ds_write_b32 v{T[0]}, v{ROWV[1]} offset:256')
    a(f's_branch K2_GEO_END_{tag}')
    a.label(f'K2_GEO_S_{tag}')
    a(f'ds_write_b32 v{T[0]}, v{DV[0]}')
    a(f'ds_write_b32 v{T[0]}, v{DV[1]} offset:256')
    a.label(f'K2_GEO_END_{tag}')
    a(f'v_mov_b32 v{vWVA}, v{vKGWV}')
    a(f'v_mov_b32 v{vDA}, v{vKGD}')

def epilogue(a):
    F = [accH(w, t) for w in range(4) for t in (1, 3)]
    WRB = F[0:4]
    O = F[4:8]
    W2 = POOL
    def rd_w2(part):
        for kp in range(2):
            for tau in range(4):
                a(f'ds_read_b128 {rng(W2+16*kp+4*tau)}, v{vIMG} offset:{part*8192+kp*4096+tau*1024}')
    def rd_wr(p):
        for tau in range(4):
            a(f'ds_read_b128 {rng(WRB[tau])}, v{vIMG} offset:{16384+p*4096+tau*1024}')
    rd_w2(0)
    for w in range(4):
        for kp in range(2):
            e, o = accH(w, 2*kp), accH(w, 2*kp+1)
            a(f'v_cvt_pk_bf16_f32 v{e}, v{e}, v{e+1}')
            a(f'v_cvt_pk_bf16_f32 v{e+1}, v{e+2}, v{e+3}')
            a(f'v_cvt_pk_bf16_f32 v{e+2}, v{o}, v{o+1}')
            a(f'v_cvt_pk_bf16_f32 v{e+3}, v{o+2}, v{o+3}')
    rd_wr(1)
    a('s_waitcnt lgkmcnt(4)')
    for tau in range(4):
        a(f'v_mfma_f32_16x16x32_bf16 {rng(GR+4*tau)}, {rng(accH(0,0))}, {rng(W2+4*tau)}, 0')
    for tau in range(4):
        a(f'v_mfma_f32_16x16x32_bf16 {rng(GR+4*tau)}, {rng(accH(0,2))}, {rng(W2+16+4*tau)}, {rng(GR+4*tau)}')
    rd_w2(1)
    a('s_waitcnt lgkmcnt(8)')
    for k in range(3):
        for tau in range(4):
            o = O[1+k] + tau; s = accV(k, tau); c = WRB[tau]
            a(f'v_mul_f32 v{o}, v{c}, v{s}')
        for q in range(1, 4):
            for tau in range(4):
                o = O[1+k] + tau; s = accV(k, tau); c = WRB[tau]
                a(f'v_fmac_f32 v{o}, v{c+q}, v{s+q}')
    rd_wr(0)
    a('s_waitcnt lgkmcnt(4)')
    for k in range(3):
        for tau in range(4):
            a(f'v_mfma_f32_16x16x32_bf16 {rng(accV(k,tau))}, {rng(accH(1+k,0))}, {rng(W2+4*tau)}, 0')
        for tau in range(4):
            a(f'v_mfma_f32_16x16x32_bf16 {rng(accV(k,tau))}, {rng(accH(1+k,2))}, {rng(W2+16+4*tau)}, {rng(accV(k,tau))}')
    a('s_waitcnt lgkmcnt(0)')
    for tau in range(4):
        a(f'v_mul_f32 v{O[0]+tau}, v{WRB[tau]}, v{GR+4*tau}')
    for q in range(1, 4):
        for tau in range(4):
            a(f'v_fmac_f32 v{O[0]+tau}, v{WRB[tau]+q}, v{GR+4*tau+q}')
    rd_wr(2)
    a('s_waitcnt lgkmcnt(0)')
    for k in range(3):
        for q in range(4):
            for tau in range(4):
                a(f'v_fmac_f32 v{O[1+k]+tau}, v{WRB[tau]+q}, v{accV(k,tau)+q}')
    for w in range(4):
        a(f'v_permlane32_swap_b32 v{O[w]}, v{O[w]+2}')
        a(f'v_permlane32_swap_b32 v{O[w]+1}, v{O[w]+3}')
    for w in range(4):
        a(f'v_add_f32 v{O[w]}, v{O[w]}, v{O[w]+2}')
        a(f'v_add_f32 v{O[w]+1}, v{O[w]+1}, v{O[w]+3}')
    for w in range(4):
        a(f'v_permlane16_swap_b32 v{O[w]}, v{O[w]+1}')
    for w in range(4):
        a(f'v_add_f32 v{O[w]}, v{O[w]}, v{O[w]+1}')
    R = [O[w] for w in range(4)]
    a(f's_add_u32 s{sT}, s{sN0}, s{sJC}')
    a(f's_and_b32 s{sT+1}, s{sFIRST}, s{sRLAST}')
    a(f's_cmp_eq_u32 s{sT+1}, 1')
    a('s_cbranch_scc1 K2_EPI_FINAL')
    a(f's_lshl_b32 s{sT+1}, s{sT}, 10')
    a(f's_add_u32 s{sT+1}, s{sT+1}, {G.PART_OFF}')
    a(f'v_lshlrev_b32 v{vT0}, 2, v{vLANE}')
    a(f's_cmp_eq_u32 s{sFIRST}, 1')
    a('s_cbranch_scc1 K2_EPI_NOLOAD')
    for w in range(4):
        a(f'buffer_load_dword v{GR+w}, v{vT0}, s[{sWS}:{sWS+3}], s{sT+1} offen offset:{256*w}')
    a('s_waitcnt vmcnt(0)')
    for w in range(4):
        a(f'v_add_f32 v{R[w]}, v{R[w]}, v{GR+w}')
    a.label('K2_EPI_NOLOAD')
    a(f's_cmp_eq_u32 s{sRLAST}, 1')
    a('s_cbranch_scc1 K2_EPI_FINAL')
    for w in range(4):
        a(f'buffer_store_dword v{R[w]}, v{vT0}, s[{sWS}:{sWS+3}], s{sT+1} offen offset:{256*w}')
    a('s_waitcnt vmcnt(0)')
    a('s_branch K2_EPI_DONE')
    a.label('K2_EPI_FINAL')
    p01, p23 = GR, GR+1
    x = [GR+2+w for w in range(4)]
    a(f'v_cvt_pk_bf16_f32 v{p01}, v{R[0]}, v{R[1]}')
    a(f'v_cvt_pk_bf16_f32 v{p23}, v{R[2]}, v{R[3]}')
    a(f'v_lshlrev_b32 v{x[0]}, 16, v{p01}')
    a(f'v_and_b32 v{x[1]}, s{sMASK}, v{p01}')
    a(f'v_lshlrev_b32 v{x[2]}, 16, v{p23}')
    a(f'v_and_b32 v{x[3]}, s{sMASK}, v{p23}')
    for w in range(4):
        a(f'v_add_f32 v{x[w]}, v{x[w]}, v{SV+w}')
    a(f'v_cvt_pk_bf16_f32 v{p01}, v{x[0]}, v{x[1]}')
    a(f'v_cvt_pk_bf16_f32 v{p23}, v{x[2]}, v{x[3]}')
    a(f's_lshl_b32 s{sT+1}, s{sT}, 9')
    a(f'buffer_store_short v{p01}, v{vOUTOFF}, s[{sOUT}:{sOUT+3}], s{sT+1} offen' + NTS)
    a(f'buffer_store_short_d16_hi v{p01}, v{vOUTOFF}, s[{sOUT}:{sOUT+3}], s{sT+1} offen offset:128' + NTS)
    a(f'buffer_store_short v{p23}, v{vOUTOFF}, s[{sOUT}:{sOUT+3}], s{sT+1} offen offset:256' + NTS)
    a(f'buffer_store_short_d16_hi v{p23}, v{vOUTOFF}, s[{sOUT}:{sOUT+3}], s{sT+1} offen offset:384' + NTS)
    a.label('K2_EPI_DONE')

def sv_loads(a, sj):
    a(f's_add_u32 s{sT}, s{sN0}, s{sj}')
    a(f's_lshl_b32 s{sT}, s{sT}, 9')
    for w in range(4):
        a(f'buffer_load_short_d16_hi v{SV+w}, v{vOUTOFF}, s[{sSV}:{sSV+3}], s{sT} offen offset:{128*w}' + NTS)

def dma_pos(a, lo, hi, tag):
    if hi <= lo: return
    a(f's_cmp_eq_u32 s{sFIRST}, 1')
    a(f's_cbranch_scc0 K2_XD_{tag}')
    a(f'v_lshlrev_b32 v35, 4, v{vLANE}')
    a(f's_mul_i32 s{sT}, s2, 9')
    a(f's_add_u32 s{sT}, s{sT}, s{sWAVE}')
    a(f's_add_u32 s{sT}, s{sT}, {8*lo}')
    a(f's_mul_hi_u32 s{sT+1}, s{sT}, {(1<<32)//74+1}')
    a(f's_mul_i32 s{sT+1}, s{sT+1}, 74')
    a(f's_sub_u32 s{sT}, s{sT}, s{sT+1}')
    a(f's_lshl_b32 s{sT}, s{sT}, 10')
    for i in range(lo, hi):
        a(f's_add_u32 m0, s{sT}, {POS}')
        if i + 1 < hi: a(f's_add_u32 s{sT+1}, s{sT}, 8192')
        else: a('s_nop 0')
        a(f'buffer_load_dwordx4 v35, s[{sPOSP}:{sPOSP+3}], s{sT} offen lds')
        if i + 1 < hi:
            a(f's_sub_u32 s{sT}, s{sT+1}, {74*1024}')
            a(f's_cmp_lt_u32 s{sT+1}, {74*1024}')
            a(f's_cselect_b32 s{sT}, s{sT+1}, s{sT}')
    a.label(f'K2_XD_{tag}')

def dma_const(a, tag):
    a(f's_cmp_eq_u32 s{sFIRST}, 1')
    a(f's_cbranch_scc0 K2_XD_{tag}')
    a(f'v_lshlrev_b32 v35, 4, v{vLANE}')
    a(f's_mul_i32 s{sT+3}, s2, 5')
    a(f's_add_u32 s{sT+3}, s{sT+3}, s{sWAVE}')
    for i in range(7):
        a(f's_add_u32 s{sT}, s{sT+3}, {8*i}')
        a(f's_mul_hi_u32 s{sT+1}, s{sT}, {(1<<32)//56+1}')
        a(f's_mul_i32 s{sT+1}, s{sT+1}, 56')
        a(f's_sub_u32 s{sT}, s{sT}, s{sT+1}')
        a(f's_min_u32 s{sT}, s{sT}, 53')
        a(f's_lshl_b32 s{sT+1}, s{sT}, 10')
        a(f's_add_u32 s{sT+2}, s{sT+1}, {W2IMG}')
        a(f's_mov_b32 m0, s{sT+2}')
        a(f's_cmp_ge_u32 s{sT}, 28')
        a(f's_mov_b32 s{sT+2}, {G.CIMG_OFF}')
        a(f's_cselect_b32 s{sT+2}, {G.GT_OFF - 28*1024}, s{sT+2}')
        a(f's_add_u32 s{sT+1}, s{sT+1}, s{sT+2}')
        a(f'buffer_load_dwordx4 v35, s[{sWS}:{sWS+3}], s{sT+1} offen lds')
    a.label(f'K2_XD_{tag}')

def pf(a, lo, hi):
    if hi <= lo: return
    a(f's_lshr_b32 s{sT}, s2, 3')
    a(f's_lshl_b32 s{sT}, s{sT}, 17')
    a(f's_lshl_b32 s{sT+1}, s{sWAVE}, 14')
    a(f's_add_u32 s{sT}, s{sT}, s{sT+1}')
    a(f's_add_u32 s{sT}, s{sT}, {(lo//4)*4096}')
    a(f'v_lshlrev_b32 v35, 4, v{vLANE}')
    for i in range(lo, hi):
        a(f'buffer_load_dwordx4 v[{184+4*(i%16)}:{187+4*(i%16)}], v35, s[{sTAB}:{sTAB+3}], s{sT} offen offset:{(i%4)*1024}')
        if i % 4 == 3: a(f's_add_u32 s{sT}, s{sT}, 4096')

def gen_k2(a):
    a.raw('.globl k2_kernel\n.p2align 8\n.type k2_kernel,@function')
    a.label('k2_kernel')
    a('s_load_dwordx4 s[4:7], s[0:1], 0')
    a('s_load_dwordx2 s[96:97], s[0:1], 32')
    a('s_load_dwordx2 s[8:9], s[0:1], 64')
    a('s_load_dwordx2 s[10:11], s[0:1], 80')
    a(f's_cmp_ge_u32 s2, {G.NB}')
    a('s_cbranch_scc1 K2_END')
    a(f's_mov_b32 s{sMASK}, 0xffff0000')
    a(f's_mov_b32 s{sSELLO}, 0x05040100')
    a(f's_mov_b32 s{sSELHI}, 0x07060302')
    a(f's_mov_b32 s{s512}, 512')
    a(f's_and_b32 s{sBK}, s2, 7')
    a(f's_lshl_b32 s{sBK}, s{sBK}, 5')
    a(f's_lshr_b32 s{sT}, s2, 3')
    a(f's_or_b32 s{sBK}, s{sBK}, s{sT}')
    a(f's_mul_i32 s{sN0}, s{sBK}, 12500')
    a(f's_add_u32 s{sNN}, s{sN0}, {12500+255}')
    a(f's_add_u32 s{sN0}, s{sN0}, 255')
    a(f's_lshr_b32 s{sN0}, s{sN0}, 8')
    a(f's_lshr_b32 s{sNN}, s{sNN}, 8')
    a(f's_sub_u32 s{sNN}, s{sNN}, s{sN0}')
    a(f'v_and_b32 v{vLANE}, 63, v0')
    a(f'v_and_b32 v{vT1}, 15, v{vLANE}')
    a(f'v_lshrrev_b32 v{vT2}, 4, v{vLANE}')
    a(f'v_lshlrev_b32 v{vLANE16}, 4, v{vT1}')
    a('v_lshrrev_b32 v16, 6, v0')
    a(f'v_readfirstlane_b32 s{sWAVE}, v16')
    a(f'v_lshlrev_b32 v{vKGDS}, 4, v{vT2}')
    a(f'v_lshl_add_u32 v{vOUTOFF}, v{vT1}, 2, v{vT2}')
    a(f'v_lshlrev_b32 v{vOUTOFF}, 1, v{vOUTOFF}')
    a(f'v_lshlrev_b32 v{vIMG}, 4, v{vLANE}')
    a(f'v_add_u32 v{vIMG}, {W2IMG}, v{vIMG}')
    a(f's_mul_i32 s{sGS}, s{sWAVE}, {GSW}')
    a(f's_add_u32 s{sGS}, s{sGS}, {GS}')
    a(f'v_mov_b32 v{vGSW}, s{sGS}')
    a(f'v_lshrrev_b32 v{vKGWV}, 2, v{vT1}')
    a(f'v_lshl_add_u32 v{vKGWV}, v{vT2}, 3, v{vKGWV}')
    a(f'v_lshl_add_u32 v{vKGWV}, v{vKGWV}, 2, v{vGSW}')
    a(f'v_and_b32 v{vC8}, 3, v{vLANE}')
    a(f'v_lshlrev_b32 v{vC8}, 3, v{vC8}')
    a(f'v_lshlrev_b32 v{vKGD}, 5, v{vT2}')
    a(f'v_add_u32 v{vKGD}, v{vKGD}, v{vGSW}')
    a(f'v_mov_b32 v{vFREQ}, 0')
    a(f'v_lshlrev_b32 v{vT1}, 1, v{vT1}')
    a('s_waitcnt lgkmcnt(0)')
    G.srd(a, sWS, 10, G.WS_USED)
    if STAMP:
        a('s_mov_b32 s98, 0')
        a('v_mov_b32 v252, -1')
    mark(a, True); mark(a)
    a(f'v_lshl_add_u32 v17, v16, 5, v{vLANE}')
    a(f'v_cmp_gt_u32 vcc, 32, v{vLANE}')
    a(f'v_mov_b32 v{vSEGLO}, 0')
    a(f'v_mov_b32 v18, {G.NCH}')
    a(f'v_cmp_lt_u32 s[{sT}:{sT+1}], v17, v18')
    a(f's_and_b64 vcc, vcc, s[{sT}:{sT+1}]')
    a('v_lshlrev_b32 v18, 2, v17')
    a(f's_lshl_b32 s{sT}, s{sBK}, 10')
    a(f's_add_u32 s{sT}, s{sT}, {G.SEG_OFF}')
    a(f's_and_saveexec_b64 s[{sEX}:{sEX+1}], vcc')
    a(f'buffer_load_dword v{vSEGLO}, v18, s[{sWS}:{sWS+3}], s{sT} offen')
    a(f's_mov_b64 exec, s[{sEX}:{sEX+1}]')
    G.srd(a, sTAB, 10, G.TAB_SZ); G.srd(a, sSV, 4, N*512); G.srd(a, sOUT, 8, N*512); G.srd(a, sPOSP, 6, N*6)
    a(f'global_load_short_d16_hi v{vFREQ}, v{vT1}, s[96:97]')
    a(f's_mov_b32 s{sF0}, 0')
    a(f's_mov_b32 s{sW}, {WCAP}')
    a(f's_mov_b32 s{sFIRST}, 1')
    a(f'v_mul_u32_u24 v{vSEGHI}, {G.CHE}, v17')
    dma_pos(a, 0, NP1, 'P1')
    a(f's_waitcnt vmcnt({1+NP1})')
    mark(a)
    a(f'v_and_b32 v18, 0xffff, v{vSEGLO}')
    a(f'v_add_u32 v{vSEGHI}, v{vSEGHI}, v18')
    a(f'v_lshrrev_b32 v{vSEGLO}, 16, v{vSEGLO}')
    a(f'v_mov_b32 v{vPFX}, v{vSEGLO}')
    for sh in (1, 2, 4, 8):
        a(f'v_add_u32_dpp v{vPFX}, v{vPFX}, v{vPFX} row_shr:{sh} row_mask:0xf bank_mask:0xf')
    a(f'v_add_u32_dpp v{vPFX}, v{vPFX}, v{vPFX} row_bcast:15 row_mask:0xa bank_mask:0xf')
    a(f'v_readlane_b32 s{sTOT}, v{vPFX}, 31')
    a(f'v_sub_u32 v{vPFX}, v{vPFX}, v{vSEGLO}')
    a('s_branch K2_ROUND_IN')
    a.label('K2_ROUND')
    a('s_barrier')
    a.label('K2_ROUND_IN')
    a('v_lshlrev_b32 v18, 4, v0')
    a('v_mov_b32 v24, 0\nv_mov_b32 v25, 0\nv_mov_b32 v26, 0\nv_mov_b32 v27, 0')
    a(f'v_add_u32 v19, {CNT}, v18')
    a('v_cmp_gt_u32 vcc, 24, v0')
    a(f's_and_saveexec_b64 s[{sEX}:{sEX+1}], vcc')
    a('ds_write_b128 v19, v[24:27]')
    a(f's_mov_b64 exec, s[{sEX}:{sEX+1}]')
    a(f'v_subrev_u32 v30, s{sF0}, v{vPFX}')
    a('v_sub_u32 v31, 0, v30')
    a('v_max_i32 v31, 0, v31')
    a(f'v_sub_u32 v32, s{sW}, v30')
    a(f'v_min_i32 v32, v32, v{vSEGLO}')
    a('v_add_u32 v33, v30, v31')
    a('v_lshlrev_b32 v33, 2, v33')
    a(f'v_add_u32 v33, s{sGS}, v33')
    a(f'v_add_lshl_u32 v28, v{vSEGHI}, v31, 2')
    a('v_sub_u32 v32, v32, v31')
    a.label('K2_MK')
    a('v_cmp_lt_i32 vcc, 0, v32')
    a('s_cbranch_vccz K2_MK_DONE')
    a(f's_and_saveexec_b64 s[{sEX}:{sEX+1}], vcc')
    a('ds_write_b32 v33, v28')
    a('v_add_u32 v29, 4, v28')
    a('v_cmp_lt_i32 vcc, 1, v32')
    a('s_and_b64 exec, exec, vcc')
    a('ds_write_b32 v33, v29 offset:4')
    a(f's_mov_b64 exec, s[{sEX}:{sEX+1}]')
    a('v_add_u32 v33, 8, v33')
    a('v_add_u32 v28, 8, v28')
    a('v_subrev_u32 v32, 2, v32')
    a('s_branch K2_MK')
    a.label('K2_MK_DONE')
    dma_pos(a, NP1, NP1+NP2, 'P2')
    a(f's_sub_i32 s{sT}, s{sTOT}, s{sF0}')
    a(f's_max_i32 s{sT}, s{sT}, 0')
    a(f's_min_i32 s{sNV}, s{sT}, s{sW}')
    a(f's_cmp_gt_i32 s{sT}, s{sW}')
    a(f's_cselect_b32 s{sMORE}, 1, 0')
    U = WCAP // 64
    a(f'v_lshl_add_u32 v30, v{vLANE}, 2, v{vGSW}')
    RIDX = lambda u: 116 + u
    for u in range(U):
        a(f'ds_read_b32 v{RIDX(u)}, v30 offset:{256*u}')
    for u in range(U):
        a(f's_sub_i32 s{sT}, s{sNV}, {64*u}')
        a(f'v_cmp_gt_i32 s[{sMK+2*u}:{sMK+2*u+1}], s{sT}, v{vLANE}')
    dma_pos(a, NP1+NP2, 10-NP4, 'P3')
    a(f's_mov_b32 s{sT2}, {G.REC_OFF}')
    RR = lambda u: 136 + u
    a(f's_mov_b64 s[{sEX}:{sEX+1}], exec')
    for u in range(U):
        a(f's_waitcnt lgkmcnt({U-1-u})')
        a(f's_mov_b64 exec, s[{sMK+2*u}:{sMK+2*u+1}]')
        a(f'buffer_load_dword v{RR(u)}, v{RIDX(u)}, s[{sWS}:{sWS+3}], s{sT2} offen')
    a(f's_mov_b64 exec, s[{sEX}:{sEX+1}]')
    dma_const(a, 'C')
    pf(a, 0, NPF)
    a('s_waitcnt lgkmcnt(0)')
    mark(a)
    a('s_barrier')
    a(f's_cmp_eq_u32 s{sFIRST}, 1')
    a('s_cbranch_scc1 K2_WREC1')
    a('s_waitcnt vmcnt(0)')
    a('s_branch K2_WREC2')
    a.label('K2_WREC1')
    a(f's_waitcnt vmcnt({7+NPF})')
    a.label('K2_WREC2')
    mark(a)
    DL = lambda u: 92 + u
    RK = lambda u: 102 + u
    a('v_mov_b32 v28, 1')
    for u in range(U):
        a(f's_cmp_eq_u64 s[{sMK+2*u}:{sMK+2*u+1}], 0')
        a('s_cbranch_scc1 K2_AT_DONE')
        a(f's_mov_b64 exec, s[{sMK+2*u}:{sMK+2*u+1}]')
        a(f'v_lshrrev_b32 v{DL(u)}, 16, v{RR(u)}')
        a(f'v_subrev_u32 v{DL(u)}, s{sN0}, v{DL(u)}')
        a(f'v_lshlrev_b32 v36, 2, v{DL(u)}')
        a(f'v_add_u32 v36, {CNT}, v36')
        a(f'ds_add_rtn_u32 v{RK(u)}, v36, v28')
    a.label('K2_AT_DONE')
    a(f's_mov_b64 exec, s[{sEX}:{sEX+1}]')
    dma_pos(a, 10-NP4, 10, 'P4')
    pf(a, NPF, NPF+NPF2)
    a('s_waitcnt lgkmcnt(0)')
    a(f's_mov_b64 s[{sOVF}:{sOVF+1}], 0')
    for u in range(U):
        a(f's_cmp_eq_u64 s[{sMK+2*u}:{sMK+2*u+1}], 0')
        a('s_cbranch_scc1 K2_PL_DONE')
        a(f's_mov_b64 exec, s[{sMK+2*u}:{sMK+2*u+1}]')
        a(f'v_cmp_gt_u32 vcc, 128, v{RK(u)}')
        a(f'v_lshl_add_u32 v34, v{DL(u)}, 7, v{RK(u)}')
        a(f's_andn2_b64 s[{sT}:{sT+1}], exec, vcc')
        a(f's_or_b64 s[{sOVF}:{sOVF+1}], s[{sOVF}:{sOVF+1}], s[{sT}:{sT+1}]')
        a('s_and_b64 exec, exec, vcc')
        a('v_lshlrev_b32 v34, 1, v34')
        a(f'ds_write_b16 v34, v{RR(u)}')
    a.label('K2_PL_DONE')
    a(f's_mov_b64 exec, s[{sEX}:{sEX+1}]')
    pf(a, NPF+NPF2, NPF+NPF2+NPF3)
    a(f'v_mov_b32 v35, {MISC}')
    a(f's_cmp_eq_u64 s[{sOVF}:{sOVF+1}], 0')
    a('s_cbranch_scc1 K2_NOOVF')
    a('ds_write_b32 v35, v28 offset:4')
    a.label('K2_NOOVF')
    a(f's_cmp_eq_u32 s{sMORE}, 0')
    a('s_cbranch_scc1 K2_NOMORE')
    a('ds_write_b32 v35, v28 offset:8')
    a.label('K2_NOMORE')
    a('s_waitcnt lgkmcnt(0)')
    mark(a)
    a('s_barrier')
    a('ds_read_b32 v30, v35 offset:4')
    a('ds_read_b32 v31, v35 offset:8')
    a(f'v_lshrrev_b32 v32, 5, v{vLANE}')
    a(f'v_and_b32 v33, 31, v{vLANE}')
    a(f's_lshl_b32 s{sT}, s{sWAVE}, 1')
    a(f'v_add_u32 v32, s{sT}, v32')
    for i in range(4):
        a(f'v_lshlrev_b32 v{40+i}, 2, v32')
        a(f'v_add_u32 v{40+i}, {CNT+64*i}, v{40+i}')
        a(f'ds_read_b32 v{44+i}, v{40+i}')
    a('s_waitcnt lgkmcnt(4)')
    a(f'v_readfirstlane_b32 s{sT}, v30')
    a(f'v_readfirstlane_b32 s{sMORE}, v31')
    a(f's_cmp_eq_u32 s{sT}, 0')
    a('s_cbranch_scc1 K2_GO')
    a('s_waitcnt vmcnt(0) lgkmcnt(0)')
    a(f's_lshr_b32 s{sW}, s{sW}, 1')
    a('s_branch K2_ROUND')
    a.label('K2_GO')
    a(f's_xor_b32 s{sRLAST}, s{sMORE}, 1')
    a(f'v_mov_b32 v36, {PADMARK}')
    a('s_waitcnt lgkmcnt(0)')
    for i in range(4):
        c = 44+i
        a(f'v_add_u32 v37, 31, v{c}')
        a('v_lshrrev_b32 v37, 5, v37')
        a('v_max_u32 v37, 1, v37')
        a('v_subrev_u32 v37, 1, v37')
        a('v_lshl_add_u32 v37, v37, 5, v33')
        a(f'v_cmp_ge_u32 vcc, v37, v{c}')
        a(f'v_add_u32 v38, {16*i}, v32')
        a(f'v_cmp_gt_u32 s[{sT}:{sT+1}], 50, v38')
        a(f's_and_b64 vcc, vcc, s[{sT}:{sT+1}]')
        a('v_lshl_add_u32 v37, v38, 7, v37')
        a('s_and_b64 exec, exec, vcc')
        a('v_lshlrev_b32 v39, 1, v37')
        a('ds_write_b16 v39, v36')
        a(f's_mov_b64 exec, s[{sEX}:{sEX+1}]')
    a(f's_waitcnt vmcnt({(NPF2+NPF3) if NP4 else (NPF+NPF2+NPF3)}) lgkmcnt(0)')
    mark(a)
    a('s_barrier')
    mark(a)
    if PRIO:
        a(f's_cmp_ge_u32 s{sWAVE}, 4')
        a('s_cbranch_scc0 K2_NOPRIO')
        a(f's_setprio {PRIO}')
        a.label('K2_NOPRIO')
    a(f'v_mov_b32 v{vT0}, {MISC}')
    a(f'v_mov_b32 v{vT1}, 1')
    a('s_mov_b64 exec, 1')
    a(f'ds_add_rtn_u32 v{vM1}, v{vT0}, v{vT1}')
    a(f'ds_add_rtn_u32 v{vM2}, v{vT0}, v{vT1}')
    a(f's_mov_b64 exec, s[{sEX}:{sEX+1}]')
    a('s_waitcnt lgkmcnt(0)')
    a(f'v_readfirstlane_b32 s{sJC}, v{vM1}')
    a(f'v_readfirstlane_b32 s{sJN}, v{vM2}')
    a(f's_cmp_ge_u32 s{sJC}, s{sNN}')
    a('s_cbranch_scc1 K2_WAVE_DONE')
    a(f's_lshl_b32 s{sT}, s{sJC}, 2')
    a(f's_add_u32 s{sT}, s{sT}, {CNT}')
    a(f'v_mov_b32 v{vT2}, s{sT}')
    a(f'ds_read_b32 v{vM1}, v{vT2}')
    a(f's_lshl_b32 s{sBASE}, s{sJC}, 7')
    a(f's_lshl_b32 s{sT}, s{sBASE}, 1')
    a(f'v_add_u32 v{vDSA}, s{sT}, v{vKGDS}')
    a(f'ds_read_b128 {rng(DS)}, v{vDSA}')
    for w in range(4): a(f'v_mov_b32 v{SV+w}, 0')
    a('s_waitcnt lgkmcnt(0)')
    a(f'v_readfirstlane_b32 s{sCNTN}, v{vM1}')
    ADDR = POOL + 16
    addr_calc(a, ADDR)
    for j in range(8):
        a(f'buffer_load_dwordx4 {rng(L0+4*j)}, v{ADDR+j}, s[{sTAB}:{sTAB+3}], 0 offen')
    for j in range(8):
        a(f'buffer_load_dwordx4 {rng(L1+4*j)}, v{ADDR+j}, s[{sTAB}:{sTAB+3}], 0 offen offset:256')
    sv_loads(a, sJC)
    a(f's_add_u32 s{sNSTC}, s{sCNTN}, 31')
    a(f's_lshr_b32 s{sNSTC}, s{sNSTC}, 5')
    a(f's_max_u32 s{sNSTC}, s{sNSTC}, 1')
    geometry(a, sJC, sCNTN, 'P')
    a.label('K2_NODE')
    mark(a)
    a(f's_mov_b32 s{sK}, 0')
    step(a, True)
    a(f's_cmp_eq_u32 s{sLAST}, 1')
    a('s_cbranch_scc1 K2_EPI')
    a.label('K2_STEP')
    a(f's_add_u32 s{sK}, s{sK}, 1')
    step(a, False)
    a(f's_cmp_eq_u32 s{sLAST}, 1')
    a('s_cbranch_scc0 K2_STEP')
    a.label('K2_EPI')
    mark(a)
    a.safe()
    epilogue(a)
    sv_loads(a, sJN)
    a(f's_min_u32 s{sJC}, s{sJN}, 49')
    geometry(a, sJC, sCNTN, 'E')
    a(f's_mov_b32 s{sJC}, s{sJN}')
    a(f's_mov_b32 s{sNSTC}, s{sNSTN}')
    a(f's_mov_b32 s{sJN}, s{sJNN}')
    a(f's_cmp_lt_u32 s{sJC}, s{sNN}')
    a('s_cbranch_scc1 K2_NODE')
    a.label('K2_WAVE_DONE')
    a(f's_cmp_eq_u32 s{sRLAST}, 1')
    a('s_cbranch_scc1 K2_END')
    a('s_waitcnt vmcnt(0) lgkmcnt(0)')
    a(f's_mov_b32 s{sFIRST}, 0')
    a(f's_add_u32 s{sF0}, s{sF0}, s{sW}')
    a(f's_lshl_b32 s{sW}, s{sW}, 1')
    a(f's_min_u32 s{sW}, s{sW}, {WCAP}')
    a('s_branch K2_ROUND')
    a.label('K2_END')
    if STAMP:
        a(f's_cmp_ge_u32 s2, {G.NB}')
        a('s_cbranch_scc1 K2_END2')
        a('s_waitcnt vmcnt(0)')
        mark(a); mark(a, True)
        dump(a)
        a.label('K2_END2')
    a('s_endpgm')
    return True
```

```python
import os
import gen as G

N = 12500
NSLOT = 49*128 + 32
DS_BASE = 0
POS = 12800
GS = POS + 75776
GSW = 2048
W2IMG = GS + 8*GSW
WRIMG = W2IMG + 16384
GT = WRIMG + 12288
CNT = GT + 26*1024
MISC = CNT + 256
K2_LDS = MISC + 128
PADMARK = 0x7000
MREG = GS
WCAP = 512
NTS = ' nt' if os.environ.get('NT','0')=='1' else ''
PRIO = int(os.environ.get('PRIO','0'))
LPRIO = int(os.environ.get('LPRIO','0'))
PK = int(os.environ.get('PK','0'))
NPF = int(os.environ.get('NPF','0'))
NPF2 = int(os.environ.get('NPF2','0'))
NPF3 = int(os.environ.get('NPF3','0'))
NP4 = int(os.environ.get('NP4','0'))
NPF0 = int(os.environ.get('NPF0','0'))
NP1 = int(os.environ.get('NP1','4'))
NP2 = int(os.environ.get('NP2','3'))

vLANE16, vFREQ, vKGWV, vKGDS, vWVA, vDSA, vOUTOFF = 1, 2, 3, 4, 5, 6, 7
SV = 8
vIMG = 12
vT0, vT1, vT2 = 13, 14, 15
DS = 16
vKGD, vDA, vLANE, vGSW = 20, 21, 22, 23
vC8 = 254
POOL = 24
GR = 56
L0 = 72; L1 = 104
ACCV = 136; ACCH = 184
vSEGLO, vSEGHI = 248, 249
vM1, vM2 = 250, 251
vPFX = 253
sTAB, sWS, sSV, sOUT = 12, 16, 20, 24
sMASK, sSELLO, sSELHI, s512 = 28, 29, 30, 31
sN0, sNN = 32, 33
sJC, sNSTC, sJN, sNSTN, sK, sBASE, sNBASE, sJNN, sLAST = 34, 35, 36, 37, 38, 39, 40, 41, 42
sWAVE, sF0, sW, sTOT, sNV, sFIRST, sRLAST = 43, 44, 45, 46, 47, 48, 49
sEX = 50
sT = 52
sMK = 56
sMORE, sCNTN, sFIVE, sGS = 76, 77, 78, 79
sSLOW = 84
sPOSP = 80
sOVF = 88
sT2 = 90
sBK = 91

STAMP = os.environ.get('STAMP','0') == '1'
def mark(a, real=False):
    if not STAMP: return
    a(f"{'s_memrealtime' if real else 's_memtime'} s[100:101]")
    a('s_waitcnt lgkmcnt(0)')
    a('s_min_u32 s98, s98, 63')
    a('s_mov_b32 m0, s98')
    a('s_nop 1')
    a('v_writelane_b32 v252, s100, m0')
    a('s_add_u32 s98, s98, 1')
def dump(a):
    if not STAMP: return
    a('s_load_dwordx2 s[100:101], s[0:1], 80')
    a('s_waitcnt lgkmcnt(0)')
    a(f's_add_u32 s56, s100, {G.STAMP_OFF+0x100000}')
    a('s_addc_u32 s57, s101, 0')
    a('s_and_b32 s57, s57, 0xffff')
    a('s_mov_b32 s58, 0x100000')
    a('s_mov_b32 s59, 0x20000')
    a('s_mov_b64 exec, -1')
    a('v_lshrrev_b32 v13, 6, v0')
    a('v_lshlrev_b32 v13, 8, v13')
    a('v_and_b32 v14, 63, v0')
    a('v_lshl_add_u32 v13, v14, 2, v13')
    a('s_lshl_b32 s60, s2, 11')
    a('buffer_store_dword v252, v13, s[56:59], s60 offen')
    a('s_waitcnt vmcnt(0)')

def Gr(w, p): return GR + 4*w + p
def accV(k, tau): return ACCV + 16*k + 4*tau
def accH(w, t): return ACCH + 16*w + 4*t
def rng(b, n=4): return f'v[{b}:{b+n-1}]'

def addr_calc(a, ADDR):
    for j in range(8):
        a(f'v_mad_u32_u16 v{ADDR+j}, v{DS+(j>>1)}, s{s512}, v{vLANE16} op_sel:[{j&1},0,0,0]')

def step(a, first):
    tag = 'F' if first else 'R'
    RX, RY, RZ = POOL, POOL + 8, POOL + 16
    TMP = POOL + 24
    if first:
        a(f'v_mov_b32 v{vT0}, {MISC}')
        a(f'v_mov_b32 v{vT1}, 1')
        a(f's_min_u32 s{sT}, s{sJN}, 49')
        a(f's_lshl_b32 s{sT}, s{sT}, 2')
        a(f's_add_u32 s{sT}, s{sT}, {CNT}')
        a(f'v_mov_b32 v{vT2}, s{sT}')
        a(f's_mov_b64 s[{sEX}:{sEX+1}], exec')
        a('s_mov_b64 exec, 1')
        a(f'ds_add_rtn_u32 v{vM1}, v{vT0}, v{vT1}')
        a(f'ds_read_b32 v{vM2}, v{vT2}')
        a(f's_mov_b64 exec, s[{sEX}:{sEX+1}]')
    a(f's_add_u32 s{sT}, s{sK}, 1')
    a(f's_cmp_eq_u32 s{sT}, s{sNSTC}')
    a(f's_cselect_b32 s{sLAST}, 1, 0')
    a(f's_min_u32 s{sT+1}, s{sJN}, 49')
    a(f's_lshl_b32 s{sT+1}, s{sT+1}, 7')
    a(f's_add_u32 s{sT+2}, s{sBASE}, 32')
    a(f's_cmp_eq_u32 s{sLAST}, 1')
    a(f's_cselect_b32 s{sNBASE}, s{sT+1}, s{sT+2}')
    a(f's_lshl_b32 s{sT}, s{sNBASE}, 1')
    a(f'v_add_u32 v{vDSA}, s{sT}, v{vKGDS}')
    a(f's_cmp_eq_u32 s{sSLOW}, 1')
    a(f's_cbranch_scc1 K2_SLOWG_{tag}')
    a(f'ds_read2_b32 v[{TMP}:{TMP+1}], v{vWVA} offset0:0 offset1:4')
    for (R, off) in ((RX, 512), (RY, 1024), (RZ, 1536)):
        a(f'ds_read_b128 {rng(R)}, v{vDA} offset:{off}')
        a(f'ds_read_b128 {rng(R+4)}, v{vDA} offset:{off+16}')
    a('s_waitcnt lgkmcnt(6)')
    a(f'v_add_u32 v{TMP}, v{TMP}, v{vC8}')
    a(f'v_add_u32 v{TMP+1}, v{TMP+1}, v{vC8}')
    a(f'ds_read_b64_tr_b16 v[{Gr(0,0)}:{Gr(0,1)}], v{TMP}')
    a(f'ds_read_b64_tr_b16 v[{Gr(0,2)}:{Gr(0,3)}], v{TMP+1}')
    a(f'ds_read_b128 {rng(DS)}, v{vDSA}')
    a('s_waitcnt lgkmcnt(1)')
    a(f's_branch K2_G1_{tag}')
    a.label(f'K2_SLOWG_{tag}')
    a(f'ds_read_b128 {rng(RX)}, v{vDA}')
    a(f'ds_read_b128 {rng(RX+4)}, v{vDA} offset:16')
    a('s_waitcnt lgkmcnt(0)')
    for p in range(4):
        for h in range(2):
            d = RX + 2*p + h; t = TMP + 2 + h; iv = TMP + 4 + h; sn = TMP + 6 + h
            def rnd1(x):
                a(f'v_cvt_pk_bf16_f32 v{x}, v{x}, v{x}')
                a(f'v_and_b32 v{x}, s{sMASK}, v{x}')
            a(f'v_rcp_f32 v{iv}, v{d}')
            a(f'v_mul_f32 v{t}, 0x40490fdb, v{d}'); rnd1(t)
            a(f'v_mul_f32 v{t}, 0x3e4ccccd, v{t}'); rnd1(t)
            a(f'v_mul_f32 v{t}, 0.15915494, v{t}')
            a(f'v_cos_f32 v{t}, v{t}'); rnd1(t)
            a(f'v_add_f32 v{t}, 1.0, v{t}'); rnd1(t)
            a(f'v_mul_f32 v{iv}, 0.5, v{iv}')
            a(f'v_mul_f32 v{t}, v{t}, v{iv}')
            a(f'v_cmp_lt_f32 vcc, 0, v{d}')
            a(f'v_mul_f32 v{sn}, v{d}, v{vFREQ}'); rnd1(sn)
            a(f'v_cndmask_b32 v{t}, 0, v{t}, vcc')
            a(f'v_mul_f32 v{sn}, 0.15915494, v{sn}')
            a(f'v_sin_f32 v{sn}, v{sn}')
            a(f'v_mul_f32 v{sn}, v{sn}, v{t}')
        a(f'v_cvt_pk_bf16_f32 v{Gr(0,p)}, v{TMP+6}, v{TMP+7}')
    for (R, off) in ((RX, 512), (RY, 1024), (RZ, 1536)):
        a(f'ds_read_b128 {rng(R)}, v{vDA} offset:{off}')
        a(f'ds_read_b128 {rng(R+4)}, v{vDA} offset:{off+16}')
    a(f'ds_read_b128 {rng(DS)}, v{vDSA}')
    a('s_waitcnt lgkmcnt(1)')
    a.label(f'K2_G1_{tag}')
    for p in range(4):
        g0, g1 = TMP + 2, TMP + 3
        a(f'v_lshlrev_b32 v{g0}, 16, v{Gr(0,p)}')
        a(f'v_and_b32 v{g1}, s{sMASK}, v{Gr(0,p)}')
        for k, R in enumerate((RX, RY, RZ)):
            t0, t1 = TMP + 4 + 2*(k % 2), TMP + 5 + 2*(k % 2)
            if PK:
                a(f'v_pk_mul_f32 v[{t0}:{t1}], v[{g0}:{g1}], v[{R+2*p}:{R+2*p+1}]')
            else:
                a(f'v_mul_f32 v{t0}, v{g0}, v{R+2*p}')
                a(f'v_mul_f32 v{t1}, v{g1}, v{R+2*p+1}')
            a(f'v_cvt_pk_bf16_f32 v{Gr(1+k,p)}, v{t0}, v{t1}')
    if first:
        a(f'v_readfirstlane_b32 s{sJNN}, v{vM1}')
        a(f'v_readfirstlane_b32 s{sCNTN}, v{vM2}')
        a(f's_add_u32 s{sNSTN}, s{sCNTN}, 31')
        a(f's_lshr_b32 s{sNSTN}, s{sNSTN}, 5')
        a(f's_max_u32 s{sNSTN}, s{sNSTN}, 1')
    TB = [POOL + 4*i for i in range(4)]
    ADDR = POOL + 16
    def perms(L, q, half, dst):
        sel = sSELHI if half else sSELLO
        for p in range(4):
            a(f'v_perm_b32 v{dst+p}, v{L+4*(2*p+1)+q}, v{L+4*(2*p)+q}, s{sel}')
    def mf(acc, A, B):
        c = '0' if first else rng(acc)
        a(f'v_mfma_f32_16x16x32_bf16 {rng(acc)}, {rng(A)}, {rng(B)}, {c}')
    a('s_waitcnt vmcnt(8)')
    for t in range(8):
        perms(L0, t >> 1, t & 1, TB[t % 4])
        if t >= 1:
            mf(accV((t-1) >> 2, (t-1) & 3), Gr(0,0), TB[(t-1) % 4])
    a('s_waitcnt lgkmcnt(0)')
    for j in range(8):
        a(f'v_mad_u32_u16 v{ADDR+j}, v{DS+(j>>1)}, s{s512}, v{vLANE16} op_sel:[{j&1},0,0,0]')
        if j == 1: mf(accV(1, 3), Gr(0,0), TB[7 % 4])
    if LPRIO: a(f's_setprio {LPRIO}')
    for j in range(8):
        a(f'buffer_load_dwordx4 {rng(L0+4*j)}, v{ADDR+j}, s[{sTAB}:{sTAB+3}], 0 offen')
    if LPRIO: a('s_setprio 0')
    a('s_waitcnt vmcnt(8)')
    order = [('h', t) for t in range(4)] + [('z', t) for t in range(4)]
    def tile_perm_list(kind, t, dst):
        q = (2 + (t >> 1)) if kind == 'h' else (t >> 1)
        half = t & 1
        sel = sSELHI if half else sSELLO
        return [f'v_perm_b32 v{dst+p}, v{L1+4*(2*p+1)+q}, v{L1+4*(2*p)+q}, s{sel}' for p in range(4)]
    def tile_mfma_list(kind, t, src):
        out = []
        if kind == 'h':
            for w in range(4):
                acc = accH(w, t); c = '0' if first else rng(acc)
                out.append(f'v_mfma_f32_16x16x32_bf16 {rng(acc)}, {rng(src)}, {rng(Gr(w,0))}, {c}')
        else:
            acc = accV(2, t); c = '0' if first else rng(acc)
            out.append(f'v_mfma_f32_16x16x32_bf16 {rng(acc)}, {rng(Gr(0,0))}, {rng(src)}, {c}')
        return out
    for l in tile_perm_list(*order[0], TB[0]): a(l)
    for i in range(1, 8):
        pl = tile_perm_list(*order[i], TB[i % 4])
        ml = tile_mfma_list(*order[i-1], TB[(i-1) % 4])
        if len(ml) == 4:
            a(pl[0]); a(pl[1]); a(ml[0]); a(pl[2]); a(ml[1]); a(pl[3]); a(ml[2]); a(ml[3])
        else:
            for l in pl: a(l)
            a(ml[0])
    ml = tile_mfma_list(*order[7], TB[7 % 4])
    if LPRIO: a(f's_setprio {LPRIO}')
    for j in range(8):
        a(f'buffer_load_dwordx4 {rng(L1+4*j)}, v{ADDR+j}, s[{sTAB}:{sTAB+3}], 0 offen offset:256')
        if j == 1: a(ml[0])
    if LPRIO: a('s_setprio 0')
    a(f's_mov_b32 s{sBASE}, s{sNBASE}')
    a(f'v_add_u32 v{vWVA}, 128, v{vWVA}')
    a(f'v_add_u32 v{vDA}, 128, v{vDA}')

def geometry(a, sJ, sCNT, tag):
    P = POOL
    src = [P, P+1]; D = [P+2, P+4]
    dp = [P+6, P+7, P+8]
    ROWV = [P+9, P+10]; DV = [P+11, P+12]
    T = list(range(P+13, P+32))
    a(f's_lshl_b32 s{sT}, s{sJ}, 8')
    a(f'v_lshlrev_b32 v{T[0]}, 1, v{vLANE}')
    a(f'v_add_u32 v{T[0]}, s{sT}, v{T[0]}')
    a(f'ds_read_u16 v{src[0]}, v{T[0]}')
    a(f'ds_read_u16 v{src[1]}, v{T[0]} offset:128')
    a(f's_add_u32 s{sT}, s{sN0}, s{sJ}')
    a(f's_mul_i32 s{sT}, s{sT}, 6')
    a(f's_add_u32 s{sT}, s{sT}, {POS}')
    a(f's_min_u32 s{sT}, s{sT}, {POS+75000-6}')
    a(f'v_mov_b32 v{T[1]}, s{sT}')
    for c in range(3): a(f'v_mov_b32 v{dp[c]}, 0')
    for c in range(3): a(f'ds_read_u16_d16_hi v{dp[c]}, v{T[1]} offset:{2*c}')
    a(f's_mov_b32 s{sSLOW}, 0')
    a(f'v_mov_b32 v{ROWV[1]}, {GT}')
    a(f'v_mov_b32 v{DV[1]}, 0')
    a('s_waitcnt lgkmcnt(3)')
    for it in range(2):
        s_ = src[it]
        a(f's_sub_i32 s{sT+1}, s{sCNT}, {64*it}')
        a(f'v_cmp_gt_i32 s[{sMK+2*it}:{sMK+2*it+1}], s{sT+1}, v{vLANE}')
        a(f'v_cndmask_b32 v{s_}, 0, v{s_}, s[{sMK+2*it}:{sMK+2*it+1}]')
        a(f'v_mul_u32_u24 v{T[0]}, 6, v{s_}')
        a(f'v_and_b32 v{T[0]}, -4, v{T[0]}')
        a(f'v_add_u32 v{T[0]}, {POS}, v{T[0]}')
        a(f'ds_read2_b32 v[{D[it]}:{D[it]+1}], v{T[0]} offset0:0 offset1:1')
        a(f'v_and_b32 v{s_}, 1, v{s_}')
        a(f'v_lshlrev_b32 v{s_}, 4, v{s_}')
    for it in range(2):
        if it == 1:
            a(f's_cmp_le_u32 s{sCNT}, 64')
            a(f's_cbranch_scc1 K2_GEO_W_{tag}')
        a(f's_waitcnt lgkmcnt({1-it})')
        rx, ry, rz, p = T[2], T[3], T[4], T[5]
        a(f'v_alignbit_b32 v{ry}, v{D[it]+1}, v{D[it]}, v{src[it]}')
        a(f'v_lshrrev_b32 v{rz}, v{src[it]}, v{D[it]+1}')
        a(f'v_lshlrev_b32 v{rx}, 16, v{ry}')
        a(f'v_and_b32 v{ry}, s{sMASK}, v{ry}')
        a(f'v_lshlrev_b32 v{rz}, 16, v{rz}')
        a(f'v_sub_f32 v{rx}, v{rx}, v{dp[0]}')
        a(f'v_sub_f32 v{ry}, v{ry}, v{dp[1]}')
        a(f'v_sub_f32 v{rz}, v{rz}, v{dp[2]}')
        def rnd2(x, y):
            a(f'v_cvt_pk_bf16_f32 v{p}, v{x}, v{y}')
            a(f'v_lshlrev_b32 v{x}, 16, v{p}')
            a(f'v_and_b32 v{y}, s{sMASK}, v{p}')
        def rnd1(x):
            a(f'v_cvt_pk_bf16_f32 v{x}, v{x}, v{x}')
            a(f'v_and_b32 v{x}, s{sMASK}, v{x}')
        rnd2(rx, ry); rnd1(rz)
        qx, qy, qz = T[6], T[7], T[8]
        a(f'v_mul_f32 v{qx}, v{rx}, v{rx}')
        a(f'v_mul_f32 v{qy}, v{ry}, v{ry}')
        a(f'v_mul_f32 v{qz}, v{rz}, v{rz}')
        rnd2(qx, qy); rnd1(qz)
        d = T[9]
        a(f'v_add_f32 v{d}, v{qx}, v{qy}')
        a(f'v_add_f32 v{d}, v{d}, v{qz}')
        rnd1(d)
        a(f'v_add_f32 v{d}, 0x322bcc77, v{d}')
        rnd1(d)
        a(f'v_sqrt_f32 v{d}, v{d}')
        rnd1(d)
        inv = qx
        a(f'v_rcp_f32 v{inv}, v{d}')
        a(f'v_cmp_gt_f32 vcc, 0x40a00000, v{d}')
        a(f's_and_b64 s[{sT+2}:{sT+3}], vcc, s[{sMK+2*it}:{sMK+2*it+1}]')
        a(f'v_lshrrev_b32 v{qy}, 16, v{d}')
        a(f'v_mul_f32 v{rx}, v{rx}, v{inv}')
        a(f'v_mul_f32 v{ry}, v{ry}, v{inv}')
        a(f'v_mul_f32 v{rz}, v{rz}, v{inv}')
        a(f'v_cmp_gt_u32 vcc, {G.GT_T0}, v{qy}')
        a(f'v_lshlrev_b32 v{qy}, 5, v{qy}')
        a(f'v_add_u32 v{qy}, {GT + 32 - 32*G.GT_T0}, v{qy}')
        a(f's_and_b64 vcc, vcc, s[{sT+2}:{sT+3}]')
        a(f's_cmp_lg_u64 vcc, 0')
        a(f's_cselect_b32 s{sT}, 1, 0')
        if os.environ.get('NOSLOW','0') != '1': a(f's_or_b32 s{sSLOW}, s{sSLOW}, s{sT}')
        rnd2(rx, ry); rnd1(rz)
        a(f'v_mov_b32 v{qz}, {GT}')
        a(f'v_cndmask_b32 v{ROWV[it]}, v{qz}, v{qy}, s[{sT+2}:{sT+3}]')
        a(f'v_cndmask_b32 v{DV[it]}, 0, v{d}, s[{sT+2}:{sT+3}]')
        a(f'v_lshl_add_u32 v{T[0]}, v{vLANE}, 2, v{vGSW}')
        a(f'ds_write_b32 v{T[0]}, v{rx} offset:{512+256*it}')
        a(f'ds_write_b32 v{T[0]}, v{ry} offset:{1024+256*it}')
        a(f'ds_write_b32 v{T[0]}, v{rz} offset:{1536+256*it}')
    a.label(f'K2_GEO_W_{tag}')
    a(f'v_lshl_add_u32 v{T[0]}, v{vLANE}, 2, v{vGSW}')
    a(f's_cmp_eq_u32 s{sSLOW}, 1')
    a(f's_cbranch_scc1 K2_GEO_S_{tag}')
    a(f'ds_write_b32 v{T[0]}, v{ROWV[0]}')
    a(f'ds_write_b32 v{T[0]}, v{ROWV[1]} offset:256')
    a(f's_branch K2_GEO_END_{tag}')
    a.label(f'K2_GEO_S_{tag}')
    a(f'ds_write_b32 v{T[0]}, v{DV[0]}')
    a(f'ds_write_b32 v{T[0]}, v{DV[1]} offset:256')
    a.label(f'K2_GEO_END_{tag}')
    a(f'v_mov_b32 v{vWVA}, v{vKGWV}')
    a(f'v_mov_b32 v{vDA}, v{vKGD}')

def epilogue(a):
    F = [accH(w, t) for w in range(4) for t in (1, 3)]
    WRB = F[0:4]
    O = F[4:8]
    W2 = POOL
    def rd_w2(part):
        for kp in range(2):
            for tau in range(4):
                a(f'ds_read_b128 {rng(W2+16*kp+4*tau)}, v{vIMG} offset:{part*8192+kp*4096+tau*1024}')
    def rd_wr(p):
        for tau in range(4):
            a(f'ds_read_b128 {rng(WRB[tau])}, v{vIMG} offset:{16384+p*4096+tau*1024}')
    rd_w2(0)
    for w in range(4):
        for kp in range(2):
            e, o = accH(w, 2*kp), accH(w, 2*kp+1)
            a(f'v_cvt_pk_bf16_f32 v{e}, v{e}, v{e+1}')
            a(f'v_cvt_pk_bf16_f32 v{e+1}, v{e+2}, v{e+3}')
            a(f'v_cvt_pk_bf16_f32 v{e+2}, v{o}, v{o+1}')
            a(f'v_cvt_pk_bf16_f32 v{e+3}, v{o+2}, v{o+3}')
    rd_wr(1)
    a('s_waitcnt lgkmcnt(4)')
    for tau in range(4):
        a(f'v_mfma_f32_16x16x32_bf16 {rng(GR+4*tau)}, {rng(accH(0,0))}, {rng(W2+4*tau)}, 0')
    for tau in range(4):
        a(f'v_mfma_f32_16x16x32_bf16 {rng(GR+4*tau)}, {rng(accH(0,2))}, {rng(W2+16+4*tau)}, {rng(GR+4*tau)}')
    rd_w2(1)
    a('s_waitcnt lgkmcnt(8)')
    for k in range(3):
        for tau in range(4):
            o = O[1+k] + tau; s = accV(k, tau); c = WRB[tau]
            a(f'v_mul_f32 v{o}, v{c}, v{s}')
        for q in range(1, 4):
            for tau in range(4):
                o = O[1+k] + tau; s = accV(k, tau); c = WRB[tau]
                a(f'v_fmac_f32 v{o}, v{c+q}, v{s+q}')
    rd_wr(0)
    a('s_waitcnt lgkmcnt(4)')
    for k in range(3):
        for tau in range(4):
            a(f'v_mfma_f32_16x16x32_bf16 {rng(accV(k,tau))}, {rng(accH(1+k,0))}, {rng(W2+4*tau)}, 0')
        for tau in range(4):
            a(f'v_mfma_f32_16x16x32_bf16 {rng(accV(k,tau))}, {rng(accH(1+k,2))}, {rng(W2+16+4*tau)}, {rng(accV(k,tau))}')
    a('s_waitcnt lgkmcnt(0)')
    for tau in range(4):
        a(f'v_mul_f32 v{O[0]+tau}, v{WRB[tau]}, v{GR+4*tau}')
    for q in range(1, 4):
        for tau in range(4):
            a(f'v_fmac_f32 v{O[0]+tau}, v{WRB[tau]+q}, v{GR+4*tau+q}')
    rd_wr(2)
    a('s_waitcnt lgkmcnt(0)')
    for k in range(3):
        for q in range(4):
            for tau in range(4):
                a(f'v_fmac_f32 v{O[1+k]+tau}, v{WRB[tau]+q}, v{accV(k,tau)+q}')
    for w in range(4):
        a(f'v_permlane32_swap_b32 v{O[w]}, v{O[w]+2}')
        a(f'v_permlane32_swap_b32 v{O[w]+1}, v{O[w]+3}')
    for w in range(4):
        a(f'v_add_f32 v{O[w]}, v{O[w]}, v{O[w]+2}')
        a(f'v_add_f32 v{O[w]+1}, v{O[w]+1}, v{O[w]+3}')
    for w in range(4):
        a(f'v_permlane16_swap_b32 v{O[w]}, v{O[w]+1}')
    for w in range(4):
        a(f'v_add_f32 v{O[w]}, v{O[w]}, v{O[w]+1}')
    R = [O[w] for w in range(4)]
    a(f's_add_u32 s{sT}, s{sN0}, s{sJC}')
    a(f's_and_b32 s{sT+1}, s{sFIRST}, s{sRLAST}')
    a(f's_cmp_eq_u32 s{sT+1}, 1')
    a('s_cbranch_scc1 K2_EPI_FINAL')
    a(f's_lshl_b32 s{sT+1}, s{sT}, 10')
    a(f's_add_u32 s{sT+1}, s{sT+1}, {G.PART_OFF}')
    a(f'v_lshlrev_b32 v{vT0}, 2, v{vLANE}')
    a(f's_cmp_eq_u32 s{sFIRST}, 1')
    a('s_cbranch_scc1 K2_EPI_NOLOAD')
    for w in range(4):
        a(f'buffer_load_dword v{GR+w}, v{vT0}, s[{sWS}:{sWS+3}], s{sT+1} offen offset:{256*w}')
    a('s_waitcnt vmcnt(0)')
    for w in range(4):
        a(f'v_add_f32 v{R[w]}, v{R[w]}, v{GR+w}')
    a.label('K2_EPI_NOLOAD')
    a(f's_cmp_eq_u32 s{sRLAST}, 1')
    a('s_cbranch_scc1 K2_EPI_FINAL')
    for w in range(4):
        a(f'buffer_store_dword v{R[w]}, v{vT0}, s[{sWS}:{sWS+3}], s{sT+1} offen offset:{256*w}')
    a('s_waitcnt vmcnt(0)')
    a('s_branch K2_EPI_DONE')
    a.label('K2_EPI_FINAL')
    p01, p23 = GR, GR+1
    x = [GR+2+w for w in range(4)]
    a(f'v_cvt_pk_bf16_f32 v{p01}, v{R[0]}, v{R[1]}')
    a(f'v_cvt_pk_bf16_f32 v{p23}, v{R[2]}, v{R[3]}')
    a(f'v_lshlrev_b32 v{x[0]}, 16, v{p01}')
    a(f'v_and_b32 v{x[1]}, s{sMASK}, v{p01}')
    a(f'v_lshlrev_b32 v{x[2]}, 16, v{p23}')
    a(f'v_and_b32 v{x[3]}, s{sMASK}, v{p23}')
    for w in range(4):
        a(f'v_add_f32 v{x[w]}, v{x[w]}, v{SV+w}')
    a(f'v_cvt_pk_bf16_f32 v{p01}, v{x[0]}, v{x[1]}')
    a(f'v_cvt_pk_bf16_f32 v{p23}, v{x[2]}, v{x[3]}')
    a(f's_lshl_b32 s{sT+1}, s{sT}, 9')
    a(f'buffer_store_short v{p01}, v{vOUTOFF}, s[{sOUT}:{sOUT+3}], s{sT+1} offen' + NTS)
    a(f'buffer_store_short_d16_hi v{p01}, v{vOUTOFF}, s[{sOUT}:{sOUT+3}], s{sT+1} offen offset:128' + NTS)
    a(f'buffer_store_short v{p23}, v{vOUTOFF}, s[{sOUT}:{sOUT+3}], s{sT+1} offen offset:256' + NTS)
    a(f'buffer_store_short_d16_hi v{p23}, v{vOUTOFF}, s[{sOUT}:{sOUT+3}], s{sT+1} offen offset:384' + NTS)
    a.label('K2_EPI_DONE')

def sv_loads(a, sj):
    a(f's_add_u32 s{sT}, s{sN0}, s{sj}')
    a(f's_lshl_b32 s{sT}, s{sT}, 9')
    for w in range(4):
        a(f'buffer_load_short_d16_hi v{SV+w}, v{vOUTOFF}, s[{sSV}:{sSV+3}], s{sT} offen offset:{128*w}' + NTS)

def dma_pos(a, lo, hi, tag):
    if hi <= lo: return
    a(f's_cmp_eq_u32 s{sFIRST}, 1')
    a(f's_cbranch_scc0 K2_XD_{tag}')
    a(f'v_lshlrev_b32 v35, 4, v{vLANE}')
    a(f's_mul_i32 s{sT}, s2, 9')
    a(f's_add_u32 s{sT}, s{sT}, s{sWAVE}')
    a(f's_add_u32 s{sT}, s{sT}, {8*lo}')
    a(f's_mul_hi_u32 s{sT+1}, s{sT}, {(1<<32)//74+1}')
    a(f's_mul_i32 s{sT+1}, s{sT+1}, 74')
    a(f's_sub_u32 s{sT}, s{sT}, s{sT+1}')
    a(f's_lshl_b32 s{sT}, s{sT}, 10')
    for i in range(lo, hi):
        a(f's_add_u32 m0, s{sT}, {POS}')
        if i + 1 < hi: a(f's_add_u32 s{sT+1}, s{sT}, 8192')
        else: a('s_nop 0')
        a(f'buffer_load_dwordx4 v35, s[{sPOSP}:{sPOSP+3}], s{sT} offen lds')
        if i + 1 < hi:
            a(f's_sub_u32 s{sT}, s{sT+1}, {74*1024}')
            a(f's_cmp_lt_u32 s{sT+1}, {74*1024}')
            a(f's_cselect_b32 s{sT}, s{sT+1}, s{sT}')
    a.label(f'K2_XD_{tag}')

def dma_const(a, tag):
    a(f's_cmp_eq_u32 s{sFIRST}, 1')
    a(f's_cbranch_scc0 K2_XD_{tag}')
    a(f'v_lshlrev_b32 v35, 4, v{vLANE}')
    a(f's_mul_i32 s{sT+3}, s2, 5')
    a(f's_add_u32 s{sT+3}, s{sT+3}, s{sWAVE}')
    for i in range(7):
        a(f's_add_u32 s{sT}, s{sT+3}, {8*i}')
        a(f's_mul_hi_u32 s{sT+1}, s{sT}, {(1<<32)//56+1}')
        a(f's_mul_i32 s{sT+1}, s{sT+1}, 56')
        a(f's_sub_u32 s{sT}, s{sT}, s{sT+1}')
        a(f's_min_u32 s{sT}, s{sT}, 53')
        a(f's_lshl_b32 s{sT+1}, s{sT}, 10')
        a(f's_add_u32 s{sT+2}, s{sT+1}, {W2IMG}')
        a(f's_mov_b32 m0, s{sT+2}')
        a(f's_cmp_ge_u32 s{sT}, 28')
        a(f's_mov_b32 s{sT+2}, {G.CIMG_OFF}')
        a(f's_cselect_b32 s{sT+2}, {G.GT_OFF - 28*1024}, s{sT+2}')
        a(f's_add_u32 s{sT+1}, s{sT+1}, s{sT+2}')
        a(f'buffer_load_dwordx4 v35, s[{sWS}:{sWS+3}], s{sT+1} offen lds')
    a.label(f'K2_XD_{tag}')

def pf(a, lo, hi):
    if hi <= lo: return
    a(f's_lshr_b32 s{sT}, s2, 3')
    a(f's_lshl_b32 s{sT}, s{sT}, 17')
    a(f's_lshl_b32 s{sT+1}, s{sWAVE}, 14')
    a(f's_add_u32 s{sT}, s{sT}, s{sT+1}')
    a(f's_add_u32 s{sT}, s{sT}, {(lo//4)*4096}')
    a(f'v_lshlrev_b32 v35, 4, v{vLANE}')
    for i in range(lo, hi):
        a(f'buffer_load_dwordx4 v[{184+4*(i%16)}:{187+4*(i%16)}], v35, s[{sTAB}:{sTAB+3}], s{sT} offen offset:{(i%4)*1024}')
        if i % 4 == 3: a(f's_add_u32 s{sT}, s{sT}, 4096')

def gen_k2(a):
    a.raw('.globl k2_kernel\n.p2align 8\n.type k2_kernel,@function')
    a.label('k2_kernel')
    a('s_load_dwordx4 s[4:7], s[0:1], 0')
    a('s_load_dwordx2 s[96:97], s[0:1], 32')
    a('s_load_dwordx2 s[8:9], s[0:1], 64')
    a('s_load_dwordx2 s[10:11], s[0:1], 80')
    a(f's_cmp_ge_u32 s2, {G.NB}')
    a('s_cbranch_scc1 K2_END')
    a(f's_mov_b32 s{sMASK}, 0xffff0000')
    a(f's_mov_b32 s{sSELLO}, 0x05040100')
    a(f's_mov_b32 s{sSELHI}, 0x07060302')
    a(f's_mov_b32 s{s512}, 512')
    a(f's_and_b32 s{sBK}, s2, 7')
    a(f's_lshl_b32 s{sBK}, s{sBK}, 5')
    a(f's_lshr_b32 s{sT}, s2, 3')
    a(f's_or_b32 s{sBK}, s{sBK}, s{sT}')
    a(f's_mul_i32 s{sN0}, s{sBK}, 12500')
    a(f's_add_u32 s{sNN}, s{sN0}, {12500+255}')
    a(f's_add_u32 s{sN0}, s{sN0}, 255')
    a(f's_lshr_b32 s{sN0}, s{sN0}, 8')
    a(f's_lshr_b32 s{sNN}, s{sNN}, 8')
    a(f's_sub_u32 s{sNN}, s{sNN}, s{sN0}')
    a(f'v_and_b32 v{vLANE}, 63, v0')
    a(f'v_and_b32 v{vT1}, 15, v{vLANE}')
    a(f'v_lshrrev_b32 v{vT2}, 4, v{vLANE}')
    a(f'v_lshlrev_b32 v{vLANE16}, 4, v{vT1}')
    a('v_lshrrev_b32 v16, 6, v0')
    a(f'v_readfirstlane_b32 s{sWAVE}, v16')
    a(f'v_lshlrev_b32 v{vKGDS}, 4, v{vT2}')
    a(f'v_lshl_add_u32 v{vOUTOFF}, v{vT1}, 2, v{vT2}')
    a(f'v_lshlrev_b32 v{vOUTOFF}, 1, v{vOUTOFF}')
    a(f'v_lshlrev_b32 v{vIMG}, 4, v{vLANE}')
    a(f'v_add_u32 v{vIMG}, {W2IMG}, v{vIMG}')
    a(f's_mul_i32 s{sGS}, s{sWAVE}, {GSW}')
    a(f's_add_u32 s{sGS}, s{sGS}, {GS}')
    a(f'v_mov_b32 v{vGSW}, s{sGS}')
    a(f'v_lshrrev_b32 v{vKGWV}, 2, v{vT1}')
    a(f'v_lshl_add_u32 v{vKGWV}, v{vT2}, 3, v{vKGWV}')
    a(f'v_lshl_add_u32 v{vKGWV}, v{vKGWV}, 2, v{vGSW}')
    a(f'v_and_b32 v{vC8}, 3, v{vLANE}')
    a(f'v_lshlrev_b32 v{vC8}, 3, v{vC8}')
    a(f'v_lshlrev_b32 v{vKGD}, 5, v{vT2}')
    a(f'v_add_u32 v{vKGD}, v{vKGD}, v{vGSW}')
    a(f'v_mov_b32 v{vFREQ}, 0')
    a(f'v_lshlrev_b32 v{vT1}, 1, v{vT1}')
    a('s_waitcnt lgkmcnt(0)')
    G.srd(a, sWS, 10, G.WS_USED)
    if STAMP:
        a('s_mov_b32 s98, 0')
        a('v_mov_b32 v252, -1')
    mark(a, True); mark(a)
    a(f'v_lshl_add_u32 v17, v16, 5, v{vLANE}')
    a(f'v_cmp_gt_u32 vcc, 32, v{vLANE}')
    a(f'v_mov_b32 v{vSEGLO}, 0')
    a(f'v_mov_b32 v18, {G.NCH}')
    a(f'v_cmp_lt_u32 s[{sT}:{sT+1}], v17, v18')
    a(f's_and_b64 vcc, vcc, s[{sT}:{sT+1}]')
    a('v_lshlrev_b32 v18, 2, v17')
    a(f's_lshl_b32 s{sT}, s{sBK}, 10')
    a(f's_add_u32 s{sT}, s{sT}, {G.SEG_OFF}')
    a(f's_and_saveexec_b64 s[{sEX}:{sEX+1}], vcc')
    a(f'buffer_load_dword v{vSEGLO}, v18, s[{sWS}:{sWS+3}], s{sT} offen')
    a(f's_mov_b64 exec, s[{sEX}:{sEX+1}]')
    G.srd(a, sTAB, 10, G.TAB_SZ); G.srd(a, sSV, 4, N*512); G.srd(a, sOUT, 8, N*512); G.srd(a, sPOSP, 6, N*6)
    a(f'global_load_short_d16_hi v{vFREQ}, v{vT1}, s[96:97]')
    a(f's_mov_b32 s{sF0}, 0')
    a(f's_mov_b32 s{sW}, {WCAP}')
    a(f's_mov_b32 s{sFIRST}, 1')
    a(f'v_mul_u32_u24 v{vSEGHI}, {G.CHE}, v17')
    dma_pos(a, 0, NP1, 'P1')
    pf(a, 16-NPF0, 16)
    a(f's_waitcnt vmcnt({1+NP1+NPF0})')
    mark(a)
    a(f'v_and_b32 v18, 0xffff, v{vSEGLO}')
    a(f'v_add_u32 v{vSEGHI}, v{vSEGHI}, v18')
    a(f'v_lshrrev_b32 v{vSEGLO}, 16, v{vSEGLO}')
    a(f'v_mov_b32 v{vPFX}, v{vSEGLO}')
    for sh in (1, 2, 4, 8):
        a(f'v_add_u32_dpp v{vPFX}, v{vPFX}, v{vPFX} row_shr:{sh} row_mask:0xf bank_mask:0xf')
    a(f'v_add_u32_dpp v{vPFX}, v{vPFX}, v{vPFX} row_bcast:15 row_mask:0xa bank_mask:0xf')
    a(f'v_readlane_b32 s{sTOT}, v{vPFX}, 31')
    a(f'v_sub_u32 v{vPFX}, v{vPFX}, v{vSEGLO}')
    a('s_branch K2_ROUND_IN')
    a.label('K2_ROUND')
    a('s_barrier')
    a.label('K2_ROUND_IN')
    a('v_lshlrev_b32 v18, 4, v0')
    a('v_mov_b32 v24, 0\nv_mov_b32 v25, 0\nv_mov_b32 v26, 0\nv_mov_b32 v27, 0')
    a(f'v_add_u32 v19, {CNT}, v18')
    a('v_cmp_gt_u32 vcc, 24, v0')
    a(f's_and_saveexec_b64 s[{sEX}:{sEX+1}], vcc')
    a('ds_write_b128 v19, v[24:27]')
    a(f's_mov_b64 exec, s[{sEX}:{sEX+1}]')
    a(f'v_mov_b32 v24, {PADMARK | (PADMARK << 16)}')
    a('v_mov_b32 v25, v24\nv_mov_b32 v26, v24\nv_mov_b32 v27, v24')
    a('ds_write_b128 v18, v[24:27]')
    a(f'v_cmp_gt_u32 vcc, {NSLOT*2//16 - 512}, v0')
    a(f's_and_saveexec_b64 s[{sEX}:{sEX+1}], vcc')
    a('ds_write_b128 v18, v[24:27] offset:8192')
    a(f's_mov_b64 exec, s[{sEX}:{sEX+1}]')
    a(f'v_subrev_u32 v30, s{sF0}, v{vPFX}')
    a('v_sub_u32 v31, 0, v30')
    a('v_max_i32 v31, 0, v31')
    a(f'v_sub_u32 v32, s{sW}, v30')
    a(f'v_min_i32 v32, v32, v{vSEGLO}')
    a('v_add_u32 v33, v30, v31')
    a('v_lshlrev_b32 v33, 2, v33')
    a(f'v_add_u32 v33, s{sGS}, v33')
    a(f'v_add_lshl_u32 v28, v{vSEGHI}, v31, 2')
    a('v_sub_u32 v32, v32, v31')
    a.label('K2_MK')
    a('v_cmp_lt_i32 vcc, 0, v32')
    a('s_cbranch_vccz K2_MK_DONE')
    a(f's_and_saveexec_b64 s[{sEX}:{sEX+1}], vcc')
    a('ds_write_b32 v33, v28')
    a('v_add_u32 v29, 4, v28')
    a('v_cmp_lt_i32 vcc, 1, v32')
    a('s_and_b64 exec, exec, vcc')
    a('ds_write_b32 v33, v29 offset:4')
    a(f's_mov_b64 exec, s[{sEX}:{sEX+1}]')
    a('v_add_u32 v33, 8, v33')
    a('v_add_u32 v28, 8, v28')
    a('v_subrev_u32 v32, 2, v32')
    a('s_branch K2_MK')
    a.label('K2_MK_DONE')
    dma_pos(a, NP1, NP1+NP2, 'P2')
    a(f's_sub_i32 s{sT}, s{sTOT}, s{sF0}')
    a(f's_max_i32 s{sT}, s{sT}, 0')
    a(f's_min_i32 s{sNV}, s{sT}, s{sW}')
    a(f's_cmp_gt_i32 s{sT}, s{sW}')
    a(f's_cselect_b32 s{sMORE}, 1, 0')
    U = WCAP // 64
    a(f'v_lshl_add_u32 v30, v{vLANE}, 2, v{vGSW}')
    RIDX = lambda u: 116 + u
    for u in range(U):
        a(f'ds_read_b32 v{RIDX(u)}, v30 offset:{256*u}')
    for u in range(U):
        a(f's_sub_i32 s{sT}, s{sNV}, {64*u}')
        a(f'v_cmp_gt_i32 s[{sMK+2*u}:{sMK+2*u+1}], s{sT}, v{vLANE}')
    dma_pos(a, NP1+NP2, 10-NP4, 'P3')
    a(f's_mov_b32 s{sT2}, {G.REC_OFF}')
    RR = lambda u: 136 + u
    a(f's_mov_b64 s[{sEX}:{sEX+1}], exec')
    for u in range(U):
        a(f's_waitcnt lgkmcnt({U-1-u})')
        a(f's_mov_b64 exec, s[{sMK+2*u}:{sMK+2*u+1}]')
        a(f'buffer_load_dword v{RR(u)}, v{RIDX(u)}, s[{sWS}:{sWS+3}], s{sT2} offen')
    a(f's_mov_b64 exec, s[{sEX}:{sEX+1}]')
    dma_const(a, 'C')
    pf(a, 0, NPF)
    a('s_waitcnt lgkmcnt(0)')
    mark(a)
    a('s_barrier')
    a(f's_cmp_eq_u32 s{sFIRST}, 1')
    a('s_cbranch_scc1 K2_WREC1')
    a('s_waitcnt vmcnt(0)')
    a('s_branch K2_WREC2')
    a.label('K2_WREC1')
    a(f's_waitcnt vmcnt({7+NPF})')
    a.label('K2_WREC2')
    mark(a)
    DL = lambda u: 92 + u
    RK = lambda u: 102 + u
    a('v_mov_b32 v28, 1')
    for u in range(U):
        a(f's_cmp_eq_u64 s[{sMK+2*u}:{sMK+2*u+1}], 0')
        a('s_cbranch_scc1 K2_AT_DONE')
        a(f's_mov_b64 exec, s[{sMK+2*u}:{sMK+2*u+1}]')
        a(f'v_lshrrev_b32 v{DL(u)}, 16, v{RR(u)}')
        a(f'v_subrev_u32 v{DL(u)}, s{sN0}, v{DL(u)}')
        a(f'v_lshlrev_b32 v36, 2, v{DL(u)}')
        a(f'v_add_u32 v36, {CNT}, v36')
        a(f'ds_add_rtn_u32 v{RK(u)}, v36, v28')
    a.label('K2_AT_DONE')
    a(f's_mov_b64 exec, s[{sEX}:{sEX+1}]')
    dma_pos(a, 10-NP4, 10, 'P4')
    pf(a, NPF, NPF+NPF2)
    a('s_waitcnt lgkmcnt(0)')
    a(f's_mov_b64 s[{sOVF}:{sOVF+1}], 0')
    for u in range(U):
        a(f's_cmp_eq_u64 s[{sMK+2*u}:{sMK+2*u+1}], 0')
        a('s_cbranch_scc1 K2_PL_DONE')
        a(f's_mov_b64 exec, s[{sMK+2*u}:{sMK+2*u+1}]')
        a(f'v_cmp_gt_u32 vcc, 128, v{RK(u)}')
        a(f'v_lshl_add_u32 v34, v{DL(u)}, 7, v{RK(u)}')
        a(f's_andn2_b64 s[{sT}:{sT+1}], exec, vcc')
        a(f's_or_b64 s[{sOVF}:{sOVF+1}], s[{sOVF}:{sOVF+1}], s[{sT}:{sT+1}]')
        a('s_and_b64 exec, exec, vcc')
        a('v_lshlrev_b32 v34, 1, v34')
        a(f'ds_write_b16 v34, v{RR(u)}')
    a.label('K2_PL_DONE')
    a(f's_mov_b64 exec, s[{sEX}:{sEX+1}]')
    pf(a, NPF+NPF2, NPF+NPF2+NPF3)
    a(f'v_mov_b32 v35, {MISC}')
    a(f's_cmp_eq_u64 s[{sOVF}:{sOVF+1}], 0')
    a('s_cbranch_scc1 K2_NOOVF')
    a('ds_write_b32 v35, v28 offset:4')
    a.label('K2_NOOVF')
    a(f's_cmp_eq_u32 s{sMORE}, 0')
    a('s_cbranch_scc1 K2_NOMORE')
    a('ds_write_b32 v35, v28 offset:8')
    a.label('K2_NOMORE')
    a(f's_waitcnt vmcnt({(NPF2+NPF3) if NP4 else (NPF+NPF2+NPF3)}) lgkmcnt(0)')
    mark(a)
    a('s_barrier')
    a('ds_read_b32 v30, v35 offset:4')
    a('ds_read_b32 v31, v35 offset:8')
    a('s_waitcnt lgkmcnt(0)')
    a(f'v_readfirstlane_b32 s{sT}, v30')
    a(f'v_readfirstlane_b32 s{sMORE}, v31')
    a(f's_cmp_eq_u32 s{sT}, 0')
    a('s_cbranch_scc1 K2_GO')
    a('s_waitcnt vmcnt(0) lgkmcnt(0)')
    a(f's_lshr_b32 s{sW}, s{sW}, 1')
    a('s_branch K2_ROUND')
    a.label('K2_GO')
    a(f's_xor_b32 s{sRLAST}, s{sMORE}, 1')
    mark(a); mark(a)
    if PRIO:
        a(f's_cmp_ge_u32 s{sWAVE}, 4')
        a('s_cbranch_scc0 K2_NOPRIO')
        a(f's_setprio {PRIO}')
        a.label('K2_NOPRIO')
    a(f'v_mov_b32 v{vT0}, {MISC}')
    a(f'v_mov_b32 v{vT1}, 1')
    a('s_mov_b64 exec, 1')
    a(f'ds_add_rtn_u32 v{vM1}, v{vT0}, v{vT1}')
    a(f'ds_add_rtn_u32 v{vM2}, v{vT0}, v{vT1}')
    a(f's_mov_b64 exec, s[{sEX}:{sEX+1}]')
    a('s_waitcnt lgkmcnt(0)')
    a(f'v_readfirstlane_b32 s{sJC}, v{vM1}')
    a(f'v_readfirstlane_b32 s{sJN}, v{vM2}')
    a(f's_cmp_ge_u32 s{sJC}, s{sNN}')
    a('s_cbranch_scc1 K2_WAVE_DONE')
    a(f's_lshl_b32 s{sT}, s{sJC}, 2')
    a(f's_add_u32 s{sT}, s{sT}, {CNT}')
    a(f'v_mov_b32 v{vT2}, s{sT}')
    a(f'ds_read_b32 v{vM1}, v{vT2}')
    a(f's_lshl_b32 s{sBASE}, s{sJC}, 7')
    a(f's_lshl_b32 s{sT}, s{sBASE}, 1')
    a(f'v_add_u32 v{vDSA}, s{sT}, v{vKGDS}')
    a(f'ds_read_b128 {rng(DS)}, v{vDSA}')
    for w in range(4): a(f'v_mov_b32 v{SV+w}, 0')
    a('s_waitcnt lgkmcnt(0)')
    a(f'v_readfirstlane_b32 s{sCNTN}, v{vM1}')
    ADDR = POOL + 16
    addr_calc(a, ADDR)
    for j in range(8):
        a(f'buffer_load_dwordx4 {rng(L0+4*j)}, v{ADDR+j}, s[{sTAB}:{sTAB+3}], 0 offen')
    for j in range(8):
        a(f'buffer_load_dwordx4 {rng(L1+4*j)}, v{ADDR+j}, s[{sTAB}:{sTAB+3}], 0 offen offset:256')
    sv_loads(a, sJC)
    a(f's_add_u32 s{sNSTC}, s{sCNTN}, 31')
    a(f's_lshr_b32 s{sNSTC}, s{sNSTC}, 5')
    a(f's_max_u32 s{sNSTC}, s{sNSTC}, 1')
    geometry(a, sJC, sCNTN, 'P')
    a.label('K2_NODE')
    mark(a)
    a(f's_mov_b32 s{sK}, 0')
    step(a, True)
    a(f's_cmp_eq_u32 s{sLAST}, 1')
    a('s_cbranch_scc1 K2_EPI')
    a.label('K2_STEP')
    a(f's_add_u32 s{sK}, s{sK}, 1')
    step(a, False)
    a(f's_cmp_eq_u32 s{sLAST}, 1')
    a('s_cbranch_scc0 K2_STEP')
    a.label('K2_EPI')
    mark(a)
    a.safe()
    epilogue(a)
    sv_loads(a, sJN)
    a(f's_min_u32 s{sJC}, s{sJN}, 49')
    geometry(a, sJC, sCNTN, 'E')
    a(f's_mov_b32 s{sJC}, s{sJN}')
    a(f's_mov_b32 s{sNSTC}, s{sNSTN}')
    a(f's_mov_b32 s{sJN}, s{sJNN}')
    a(f's_cmp_lt_u32 s{sJC}, s{sNN}')
    a('s_cbranch_scc1 K2_NODE')
    a.label('K2_WAVE_DONE')
    a(f's_cmp_eq_u32 s{sRLAST}, 1')
    a('s_cbranch_scc1 K2_END')
    a('s_waitcnt vmcnt(0) lgkmcnt(0)')
    a(f's_mov_b32 s{sFIRST}, 0')
    a(f's_add_u32 s{sF0}, s{sF0}, s{sW}')
    a(f's_lshl_b32 s{sW}, s{sW}, 1')
    a(f's_min_u32 s{sW}, s{sW}, {WCAP}')
    a('s_branch K2_ROUND')
    a.label('K2_END')
    if STAMP:
        a(f's_cmp_ge_u32 s2, {G.NB}')
        a('s_cbranch_scc1 K2_END2')
        a('s_waitcnt vmcnt(0)')
        mark(a); mark(a, True)
        dump(a)
        a.label('K2_END2')
    a('s_endpgm')
    return True
```

```python
import sys, os
from asmlib import Asm

NAME = 'gather_scatter__molecular_angular_painn__graph'
N = 12500; E = 800000
NCH = 250; CHE = 3200; NB = 256
TAB_OFF = 0; TAB_SZ = N * 512
CIMG_OFF = 0x620000
SEG_OFF = 0x630000
REC_OFF = 0x700000
PART_OFF = 0x1400000
PART2_OFF = 0x1B00000
WS_USED = 0x3600000
NODE_WGS = 196
K1_GRID = NCH + NODE_WGS + 2
GT_OFF = 0x628000
GT_T0 = 0x3DC0
GT_ROWS = 738
GT_SELF = 0x38D2
TABB_OFF = 3200000
GEO_OFF = 0x2800000
K1_LDS = 16384
HIST = 12800
MASKHI = 0xffff0000

def srd(a, d, base, size):
    a(f's_mov_b32 s{d}, s{base}')
    a(f's_and_b32 s{d+1}, s{base+1}, 0xffff')
    a(f's_mov_b32 s{d+2}, {size}')
    a(f's_mov_b32 s{d+3}, 0x20000')

def srd_off(a, d, base, off, size):
    a(f's_add_u32 s{d}, s{base}, {off}')
    a(f's_addc_u32 s{d+1}, s{base+1}, 0')
    a(f's_and_b32 s{d+1}, s{d+1}, 0xffff')
    a(f's_mov_b32 s{d+2}, {size}')
    a(f's_mov_b32 s{d+3}, 0x20000')

import os
STAMP = os.environ.get('STAMP','0') == '1'
STAMP_OFF = 0x4000000
class Stamper:
    def __init__(self, a, base, wsreg, kid):
        self.a=a; self.base=base; self.n=0; self.ws=wsreg; self.kid=kid
    def mark(self, real=False):
        if not STAMP: return
        a=self.a
        r=self.base+2*self.n
        a(f"{'s_memrealtime' if real else 's_memtime'} s[{r}:{r+1}]")
        a('s_waitcnt lgkmcnt(0)')
        self.n+=1
    def dump(self, vt0, wgreg='s2'):
        if not STAMP: return
        a=self.a
        b=self.base+2*self.n
        b=(b+3)//4*4
        a(f's_add_u32 s{b}, s{self.ws}, {STAMP_OFF+self.kid*0x100000}')
        a(f's_addc_u32 s{b+1}, s{self.ws+1}, 0')
        a(f's_and_b32 s{b+1}, s{b+1}, 0xffff')
        a(f's_mov_b32 s{b+2}, 0x100000')
        a(f's_mov_b32 s{b+3}, 0x20000')
        a('s_mov_b64 exec, 1')
        a(f'v_lshrrev_b32 v{vt0}, 6, v0')
        a(f'v_lshlrev_b32 v{vt0}, 7, v{vt0}')
        a(f's_lshl_b32 s{b+4}, {wgreg}, 11')
        a(f'v_add_u32 v{vt0}, s{b+4}, v{vt0}')
        for i in range(self.n):
            a(f'v_mov_b32 v{vt0+1}, s{self.base+2*i}')
            a(f'buffer_store_dword v{vt0+1}, v{vt0}, s[{b}:{b+3}], 0 offen offset:{4*i}')
        a('s_waitcnt vmcnt(0)')

def gen_k1(a):
    a.raw('.globl k1_kernel\n.p2align 8\n.type k1_kernel,@function')
    a.label('k1_kernel')
    a('s_load_dwordx4 s[4:7], s[0:1], 0')
    a('s_load_dwordx4 s[8:11], s[0:1], 16')
    a('s_load_dwordx4 s[12:15], s[0:1], 32')
    a('s_load_dwordx4 s[16:19], s[0:1], 48')
    a('s_load_dwordx2 s[20:21], s[0:1], 80')
    a(f's_cmp_ge_u32 s2, {K1_GRID}')
    a('s_cbranch_scc1 K1_END')
    a('s_mov_b32 s22, 0xffff0000')
    a('s_mov_b32 s47, 0x40a00000')
    a('s_mov_b32 s99, s2')
    a('s_waitcnt lgkmcnt(0)')
    if os.environ.get('EDGEFIRST','0') == '1':
        a(f's_add_u32 s23, s2, {NODE_WGS+2}')
        a(f's_sub_u32 s2, s2, {NCH}')
        a(f's_cmp_lt_u32 s23, {NCH+NODE_WGS+2}')
        a('s_cselect_b32 s2, s23, s2')
    a(f's_cmp_lt_u32 s2, {NODE_WGS+2}')
    a('s_cbranch_scc1 K1_NOTEDGE')
    a(f's_sub_u32 s2, s2, {NODE_WGS+2}')
    srd(a, 24, 8, E*4); srd(a, 28, 10, E*4); srd(a, 36, 20, WS_USED)
    st = Stamper(a, 48, 20, 0)
    st.mark(True); st.mark()
    a(f's_mul_i32 s3, s2, {CHE*4}')
    a('v_lshlrev_b32 v1, 4, v0')
    a('v_cmp_gt_u32 vcc, 400, v0')
    a('s_and_saveexec_b64 s[40:41], vcc')
    a('s_mov_b64 s[42:43], exec')
    a('buffer_load_dwordx4 v[4:7], v1, s[28:31], s3 offen')
    a('buffer_load_dwordx4 v[12:15], v1, s[24:27], s3 offen')
    a(f's_add_u32 s4, s3, {1600*4}')
    a('buffer_load_dwordx4 v[8:11], v1, s[28:31], s4 offen')
    a('buffer_load_dwordx4 v[16:19], v1, s[24:27], s4 offen')
    a('s_mov_b64 exec, s[40:41]')
    a('v_mov_b32 v60, 0\nv_mov_b32 v61, 0\nv_mov_b32 v62, 0\nv_mov_b32 v63, 0')
    a('v_cmp_gt_u32 vcc, 64, v0')
    a('s_and_saveexec_b64 s[44:45], vcc')
    a(f'v_add_u32 v2, {HIST}, v1')
    a('ds_write_b128 v2, v[60:63]')
    a('s_mov_b64 exec, s[40:41]')
    a('s_mov_b32 s46, 87960931')
    a('v_mov_b32 v40, 1')
    a('s_waitcnt lgkmcnt(0)')
    a('s_barrier')
    st.mark()
    a('s_mov_b64 exec, s[42:43]')
    DST = lambda e: 4+e
    SRC = lambda e: 12+e
    BK = lambda e: 20+e
    RK = lambda e: 28+e
    REC = lambda e: 44+e
    for e in range(8):
        if e == 0: a('s_waitcnt vmcnt(3)')
        if e == 4: a('s_waitcnt vmcnt(1)')
        a(f'v_mul_hi_u32 v{BK(e)}, v{DST(e)}, s46')
        a(f'v_lshlrev_b32 v{BK(e)}, 2, v{BK(e)}')
        a(f'v_add_u32 v{BK(e)}, {HIST}, v{BK(e)}')
        a(f'ds_add_rtn_u32 v{RK(e)}, v{BK(e)}, v40')
    a('s_waitcnt vmcnt(0)')
    for e in range(8):
        a(f'v_lshl_or_b32 v{REC(e)}, v{DST(e)}, 16, v{SRC(e)}')
    a('s_mov_b64 exec, s[40:41]')
    a('s_waitcnt lgkmcnt(0)')
    st.mark()
    a('s_barrier')
    st.mark()
    a('v_lshrrev_b32 v1, 6, v0')
    a('v_readfirstlane_b32 s4, v1')
    a('s_cmp_lg_u32 s4, 0')
    a('s_cbranch_scc1 K1_E_SCANDONE')
    a('v_lshlrev_b32 v1, 4, v0')
    a(f'v_add_u32 v2, {HIST}, v1')
    a('ds_read_b128 v[80:83], v2')
    a('s_waitcnt lgkmcnt(0)')
    a('v_add_u32 v84, v80, v81')
    a('v_add_u32 v85, v84, v82')
    a('v_add_u32 v86, v85, v83')
    a('v_mov_b32 v87, v86')
    for sh in (1, 2, 4, 8):
        a(f'v_add_u32_dpp v87, v87, v87 row_shr:{sh} row_mask:0xf bank_mask:0xf')
    a('v_add_u32_dpp v87, v87, v87 row_bcast:15 row_mask:0xa bank_mask:0xf')
    a('v_add_u32_dpp v87, v87, v87 row_bcast:31 row_mask:0xc bank_mask:0xf')
    a('v_sub_u32 v88, v87, v86')
    a('v_add_u32 v89, v88, v80')
    a('v_add_u32 v90, v88, v84')
    a('v_add_u32 v91, v88, v85')
    a('ds_write_b128 v2, v[88:91]')
    a('v_lshlrev_b32 v1, 12, v0')
    a('s_lshl_b32 s4, s2, 2')
    a(f's_add_u32 s4, s4, {SEG_OFF}')
    for i in range(4):
        a(f'v_lshl_or_b32 v{92+i}, v{80+i}, 16, v{88+i}')
        a(f'buffer_store_dword v{92+i}, v1, s[36:39], s4 offen offset:{1024*i}')
    a('s_waitcnt lgkmcnt(0)')
    a.label('K1_E_SCANDONE')
    a('s_barrier')
    st.mark()
    a('s_mov_b64 exec, s[42:43]')
    for e in range(8):
        a(f'ds_read_b32 v{BK(e)}, v{BK(e)}')
    for e in range(8):
        a(f's_waitcnt lgkmcnt({7-e})')
        a(f'v_add_lshl_u32 v{BK(e)}, v{BK(e)}, v{RK(e)}, 2')
        a(f'ds_write_b32 v{BK(e)}, v{REC(e)}')
    a('s_mov_b64 exec, s[40:41]')
    a('s_waitcnt lgkmcnt(0)')
    a('s_barrier')
    st.mark()
    a('v_lshlrev_b32 v1, 4, v0')
    a(f's_mul_i32 s4, s2, {CHE*4}')
    a(f's_add_u32 s4, s4, {REC_OFF}')
    a('ds_read_b128 v[80:83], v1')
    a('v_cmp_gt_u32 vcc, 288, v0')
    a('s_and_saveexec_b64 s[44:45], vcc')
    a('ds_read_b128 v[84:87], v1 offset:8192')
    a('s_mov_b64 exec, s[40:41]')
    a('s_waitcnt lgkmcnt(0)')
    a('buffer_store_dwordx4 v[80:83], v1, s[36:39], s4 offen')
    a('s_add_u32 s4, s4, 8192')
    a('s_mov_b64 exec, s[44:45]') if False else None
    a('v_cmp_gt_u32 vcc, 288, v0')
    a('s_and_saveexec_b64 s[44:45], vcc')
    a('buffer_store_dwordx4 v[84:87], v1, s[36:39], s4 offen')
    if STAMP:
        st.mark()
        a('s_waitcnt vmcnt(0)')
        st.mark(); st.mark(True)
        st.dump(110, 's99')
    a('s_endpgm')

    a.label('K1_NOTEDGE')
    a(f's_cmp_ge_u32 s2, {NODE_WGS}')
    a('s_cbranch_scc1 K1_CONST')
    srd(a, 24, 4, N*512); srd(a, 28, 14, 64*64*2); srd(a, 32, 16, 64*192*2); srd(a, 36, 20, TAB_SZ)
    st = Stamper(a, 48, 20, 0)
    st.mark(True); st.mark()
    a('v_lshlrev_b32 v1, 4, v0')
    a('buffer_load_dwordx4 v[4:7], v1, s[28:31], 0 offen')
    a('v_lshrrev_b32 v2, 3, v0')
    a('v_mul_u32_u24 v2, 384, v2')
    a('v_and_b32 v3, 7, v0')
    a('v_lshl_add_u32 v2, v3, 4, v2')
    a('buffer_load_dwordx4 v[8:11], v2, s[32:35], 0 offen offset:128')
    a('s_barrier')
    a('v_and_b32 v12, 63, v0')
    a('v_lshrrev_b32 v13, 6, v0')
    a('v_and_b32 v14, 15, v12')
    a('v_lshrrev_b32 v15, 4, v12')
    a('s_lshl_b32 s3, s2, 6')
    a('v_lshl_add_u32 v16, v13, 4, v14')
    a('v_add_u32 v16, s3, v16')
    a('v_lshlrev_b32 v17, 9, v16')
    a('v_lshl_add_u32 v18, v15, 4, v17')
    a('v_readfirstlane_b32 s4, v13')
    a('s_cmp_ge_u32 s4, 4')
    a('s_cbranch_scc1 K1_N_HELP')
    a('buffer_load_dwordx4 v[20:23], v18, s[24:27], 0 offen')
    a('buffer_load_dwordx4 v[24:27], v18, s[24:27], 0 offen offset:64')
    VV = lambda k, t2: 28 + 4*(2*k+t2)
    for k in range(3):
        for t2 in range(2):
            a(f'buffer_load_dwordx4 v[{VV(k,t2)}:{VV(k,t2)+3}], v18, s[24:27], 0 offen offset:{128*(k+1)+64*t2}')
    a('s_waitcnt vmcnt(8)')
    a('s_branch K1_N_W')
    a.label('K1_N_HELP')
    a('s_waitcnt vmcnt(0)')
    a('ds_write_b128 v1, v[4:7]')
    a('ds_write_b128 v1, v[8:11] offset:8192')
    a('s_waitcnt lgkmcnt(0)')
    a('s_barrier')
    a('s_endpgm')
    a.label('K1_N_W')
    a('ds_write_b128 v1, v[4:7]')
    a('ds_write_b128 v1, v[8:11] offset:8192')
    a('v_lshrrev_b32 v2, 2, v14')
    a('v_and_b32 v3, 3, v14')
    a('v_lshl_add_u32 v4, v15, 3, v2')
    a('v_lshlrev_b32 v4, 7, v4')
    a('v_lshl_add_u32 v4, v3, 4, v4')
    a('s_waitcnt lgkmcnt(0)')
    st.mark()
    a('s_barrier')
    st.mark()
    def rd_ops(base):
        for t in range(4):
            t2, b = t >> 1, t & 1
            for kp in range(2):
                r = 52 + 4*(2*t+kp)
                o = base + kp*4096 + 64*t2 + 8*b
                a(f'ds_read_b64_tr_b16 v[{r}:{r+1}], v4 offset:{o}')
                a(f'ds_read_b64_tr_b16 v[{r+2}:{r+3}], v4 offset:{o+512}')
    rd_ops(0)
    a('s_waitcnt vmcnt(6) lgkmcnt(0)')
    D1 = lambda t: 84 + 4*t
    for t in range(4):
        a(f'v_mfma_f32_16x16x32_bf16 v[{D1(t)}:{D1(t)+3}], v[{52+8*t}:{55+8*t}], v[20:23], 0')
    for t in range(4):
        a(f'v_mfma_f32_16x16x32_bf16 v[{D1(t)}:{D1(t)+3}], v[{56+8*t}:{59+8*t}], v[24:27], v[{D1(t)}:{D1(t)+3}]')
    rd_ops(8192)
    HP = lambda t: 100 + 2*t
    for t in range(4):
        for hq in range(2):
            x, y = D1(t)+2*hq, D1(t)+2*hq+1
            t7, t8 = (7, 8) if hq == 0 else (9, 10)
            a(f'v_cvt_pk_bf16_f32 v6, v{x}, v{y}')
            a(f'v_lshlrev_b32 v{x}, 16, v6')
            a(f'v_and_b32 v{y}, s22, v6')
            a(f'v_mul_f32 v{t7}, 0xbfb8aa3b, v{x}')
            a(f'v_mul_f32 v{t8}, 0xbfb8aa3b, v{y}')
            a(f'v_exp_f32 v{t7}, v{t7}')
            a(f'v_exp_f32 v{t8}, v{t8}')
            a(f'v_add_f32 v{t7}, 1.0, v{t7}')
            a(f'v_add_f32 v{t8}, 1.0, v{t8}')
            a(f'v_rcp_f32 v{t7}, v{t7}')
            a(f'v_rcp_f32 v{t8}, v{t8}')
            a(f'v_mul_f32 v{t7}, v{t7}, v{x}')
            a(f'v_mul_f32 v{t8}, v{t8}, v{y}')
            a(f'v_cvt_pk_bf16_f32 v{HP(t)+hq}, v{t7}, v{t8}')
    a('s_waitcnt lgkmcnt(0)')
    D2 = lambda t: 84 + 4*t
    for t in range(4):
        a(f'v_mfma_f32_16x16x32_bf16 v[{D2(t)}:{D2(t)+3}], v[{52+8*t}:{55+8*t}], v[100:103], 0')
    for t in range(4):
        a(f'v_mfma_f32_16x16x32_bf16 v[{D2(t)}:{D2(t)+3}], v[{56+8*t}:{59+8*t}], v[104:107], v[{D2(t)}:{D2(t)+3}]')
    a('s_waitcnt vmcnt(0)')
    a('v_lshlrev_b32 v18, 8, v16')
    a('v_lshl_add_u32 v18, v15, 5, v18')
    a(f's_mov_b32 s4, {TABB_OFF}')
    a(f'v_mov_b32 v19, {N}')
    a('v_cmp_lt_u32 vcc, v16, v19')
    a('s_and_saveexec_b64 s[44:45], vcc')
    for t in range(4):
        t2, b = t >> 1, t & 1
        for hq in range(2):
            x, y = D2(t)+2*hq, D2(t)+2*hq+1
            a(f'v_cvt_pk_bf16_f32 v6, v{x}, v{y}')
            a(f'v_lshlrev_b32 v{x}, 16, v6')
            a(f'v_and_b32 v{y}, s22, v6')
        o = 52 + 8*t
        dst = {0: o, 1: o+4, 2: o+6}
        for k in range(3):
            for hq in range(2):
                vr = VV(k,t2)+2*b+hq
                t7, t8 = (7, 8) if hq == 0 else (9, 10)
                a(f'v_lshlrev_b32 v{t7}, 16, v{vr}')
                a(f'v_and_b32 v{t8}, s22, v{vr}')
                a(f'v_mul_f32 v{t7}, v{t7}, v{D2(t)+2*hq}')
                a(f'v_mul_f32 v{t8}, v{t8}, v{D2(t)+2*hq+1}')
                a(f'v_cvt_pk_bf16_f32 v{dst[k]+hq}, v{t7}, v{t8}')
        a(f'v_mov_b32 v{o+2}, v{HP(t)}')
        a(f'v_mov_b32 v{o+3}, v{HP(t)+1}')
        a(f'buffer_store_dwordx4 v[{o}:{o+3}], v18, s[36:39], 0 offen offset:{128*t2+16*b}')
        a(f'buffer_store_dwordx4 v[{o+4}:{o+7}], v18, s[36:39], s4 offen offset:{128*t2+16*b}')
    if STAMP:
        st.mark()
        a('s_waitcnt vmcnt(0)')
        st.mark(); st.mark(True)
        st.dump(110, 's99')
    a('s_endpgm')

    a.label('K1_CONST')
    a(f's_cmp_eq_u32 s2, {NODE_WGS+1}')
    a('s_cbranch_scc1 K1_GT')
    srd(a, 28, 18, 16*192*2); srd(a, 32, 16, 64*192*2); srd_off(a, 36, 20, CIMG_OFF, 28672)
    a('v_and_b32 v1, 63, v0')
    a('v_and_b32 v2, 15, v1')
    a('v_lshrrev_b32 v3, 4, v1')
    a('v_bfe_u32 v4, v0, 6, 2')
    a('v_bfe_u32 v5, v0, 8, 1')
    a('v_lshlrev_b32 v6, 4, v3')
    a('v_lshl_add_u32 v6, v5, 1, v6')
    a('v_mul_u32_u24 v6, 384, v6')
    a('v_lshl_add_u32 v7, v2, 2, v4')
    a('v_lshl_add_u32 v6, v7, 1, v6')
    for part in range(2):
        for jj in range(8):
            off = (4*(jj & 3) + (jj >> 2))*384 + 256*part
            a(f'v_add_u32 v8, {off}, v6')
            a(f'buffer_load_ushort v{16+8*part+jj}, v8, s[32:35], 0 offen')
    a('v_lshlrev_b32 v9, 2, v3')
    a('v_mul_u32_u24 v9, 384, v9')
    a('v_lshl_add_u32 v9, v7, 1, v9')
    a('v_lshl_add_u32 v10, v5, 7, v9')
    for q in range(4):
        a(f'buffer_load_ushort v{32+q}, v10, s[28:31], 0 offen offset:{q*384}')
    for q in range(4):
        a(f'buffer_load_ushort v{36+q}, v9, s[28:31], 0 offen offset:{q*384+256}')
    a('s_waitcnt vmcnt(0)')
    a('v_lshlrev_b32 v11, 4, v0')
    for part in range(2):
        for h in range(4):
            a(f'v_lshl_or_b32 v{40+4*part+h}, v{16+8*part+2*h+1}, 16, v{16+8*part+2*h}')
        a(f'buffer_store_dwordx4 v[{40+4*part}:{43+4*part}], v11, s[36:39], 0 offen') if part == 0 else None
    a('v_add_u32 v12, 8192, v11')
    a('buffer_store_dwordx4 v[44:47], v12, s[36:39], 0 offen')
    for q in range(8):
        a(f'v_lshlrev_b32 v{32+q}, 16, v{32+q}')
    a('v_add_u32 v12, 16384, v11')
    a('buffer_store_dwordx4 v[32:35], v12, s[36:39], 0 offen')
    a('v_cmp_gt_u32 vcc, 256, v0')
    a('s_and_saveexec_b64 s[44:45], vcc')
    a('v_add_u32 v12, 24576, v11')
    a('buffer_store_dwordx4 v[36:39], v12, s[36:39], 0 offen')
    a('s_endpgm')
    a.label('K1_GT')
    srd_off(a, 36, 20, GT_OFF, GT_ROWS*32)
    a('s_load_dwordx8 s[24:31], s[12:13], 0')
    a('s_waitcnt lgkmcnt(0)')
    for it in range(2):
        a(f'v_add_u32 v1, {512*it}, v0')
        a(f'v_add_u32 v2, {GT_T0-1}, v1')
        a(f'v_mov_b32 v5, {GT_SELF}')
        a(f'v_cmp_eq_u32 vcc, {GT_ROWS-1}, v1')
        a('v_cndmask_b32 v2, v2, v5, vcc')
        a('v_lshlrev_b32 v2, 16, v2')
        def rnd1(x):
            a(f'v_cvt_pk_bf16_f32 v{x}, v{x}, v{x}')
            a(f'v_and_b32 v{x}, s22, v{x}')
        a('v_rcp_f32 v3, v2')
        a('v_mul_f32 v4, 0x40490fdb, v2'); rnd1(4)
        a('v_mul_f32 v4, 0x3e4ccccd, v4'); rnd1(4)
        a('v_mul_f32 v4, 0.15915494, v4')
        a('v_cos_f32 v4, v4'); rnd1(4)
        a('v_add_f32 v4, 1.0, v4'); rnd1(4)
        a('v_mul_f32 v3, 0.5, v3')
        a('v_mul_f32 v4, v4, v3')
        a('v_cmp_eq_u32 vcc, 0, v1')
        a('v_cndmask_b32 v4, v4, 0, vcc') if False else None
        a('v_mov_b32 v5, 0')
        a('v_cndmask_b32 v4, v4, v5, vcc')
        a('v_cndmask_b32 v2, v2, v5, vcc')
        for h in range(8):
            a(f's_lshl_b32 s4, s{24+h}, 16')
            a(f's_and_b32 s5, s{24+h}, s22')
            a('v_mul_f32 v6, s4, v2')
            a('v_mul_f32 v7, s5, v2')
            a('v_cvt_pk_bf16_f32 v8, v6, v7')
            a('v_lshlrev_b32 v6, 16, v8')
            a('v_and_b32 v7, s22, v8')
            a('v_mul_f32 v6, 0.15915494, v6')
            a('v_mul_f32 v7, 0.15915494, v7')
            a('v_sin_f32 v6, v6')
            a('v_sin_f32 v7, v7')
            a('v_mul_f32 v6, v6, v4')
            a('v_mul_f32 v7, v7, v4')
            a(f'v_cvt_pk_bf16_f32 v{16+h}, v6, v7')
        a('v_lshlrev_b32 v9, 5, v1')
        a('buffer_store_dwordx4 v[16:19], v9, s[36:39], 0 offen')
        a('buffer_store_dwordx4 v[20:23], v9, s[36:39], 0 offen offset:16')
        a('s_nop 2')
    a.label('K1_END')
    a('s_endpgm')

def kd(name, vgpr, sgpr):
    return f'''.amdhsa_kernel {name}
  .amdhsa_next_free_vgpr {vgpr}
  .amdhsa_next_free_sgpr {sgpr}
  .amdhsa_accum_offset {(vgpr+3)//4*4}
  .amdhsa_group_segment_fixed_size 0
  .amdhsa_kernarg_size 88
  .amdhsa_user_sgpr_count 2
  .amdhsa_user_sgpr_kernarg_segment_ptr 1
  .amdhsa_system_sgpr_workgroup_id_x 1
.end_amdhsa_kernel
'''

def main():
    import gen_k2
    a = Asm()
    gen_k1(a)
    k2 = gen_k2.gen_k2(a)
    hdr = open('cdna_kernels/%s.s.ref' % NAME).read().split('; Override')[0]
    hdr += f'; @launch kernel=k1_kernel grid=({K1_GRID},1,1) block=(512,1,1) lds={K1_LDS}\n'
    if k2:
        hdr += f'; @launch kernel=k2_kernel grid=({NB},1,1) block=({gen_k2.K2_THREADS},1,1) lds={gen_k2.K2_LDS}\n'
    hdr += '.amdgcn_target "amdgcn-amd-amdhsa--gfx950"\n.text\n'
    body = a.finish()
    tail = '.section .rodata,"a"\n.p2align 6\n' + kd('k1_kernel', 120, 102)
    if k2:
        tail += '.p2align 6\n' + kd('k2_kernel', gen_k2.K2_VGPRS, 102)
    out = sys.argv[1] if len(sys.argv) > 1 else 'cdna_kernels/%s.s' % NAME
    open(out, 'w').write(hdr + body + tail)
    print('wrote', out, 'nops inserted', a.nops_inserted)

if __name__ == '__main__':
    main()
```

```python
import os
import gen as G

N = 12500
NW = 12
K2_THREADS = NW*64
K2_VGPRS = 168
NSLOT = 49*128 + 32
S16 = 0
POS = 12800
GS = POS + 75008
GSW = 1792
W2IMG = GS + NW*GSW
WRIMG = W2IMG + 16384
GT = WRIMG + 12288
CNT = GT + 24*1024
FLG = CNT + 256
MISC = FLG + 256
K2_LDS = MISC + 128
PADMARK = 0x7000
SEGW = 21
WCAP = 384
MSTR = WCAP*4
NPF = int(os.environ.get('NPF','4'))

vT0, vLANE16, vKG16, vKGR, vGTC, vOUTOFF, vIMG, PT0, SV0, SV1, PT1, vT1 = range(12)
DS = 12
GR = 16
L = 32
POOL = 64
ACCV = 88
ACCH = 104
vLANE = 160
sTAB, sWS, sSV, sOUT = 12, 16, 20, 24
sMASK, sSELLO, sSELHI, s256 = 28, 29, 30, 31
sN0, sNN = 32, 33
sJC, sNSTC, sJN, sNSTN, sK, sBASE, sNBASE, sTNN, sLAST = 34, 35, 36, 37, 38, 39, 40, 41, 42
sWAVE, sF0, sW, sTOT, sNV, sFIRST, sRLAST = 43, 44, 45, 46, 47, 48, 49
sEX = 50
sT = 52
sMK = 56
sMORE, sSLOWN, sSLOW, sPH, sPHN, sNOFF, sPEND, sTC, sTN, sNN2 = 68, 69, 70, 71, 72, 73, 74, 75, 76, 77
sOVF = 78
sT2 = 80
sBK = 81
sCN = 82
sGS = 83
sPOSP = 84
sGEO = 88
sKOFF = 89

STAMP = os.environ.get('STAMP','0') == '1'
def mark(a, real=False):
    if not STAMP: return
    a(f"{'s_memrealtime' if real else 's_memtime'} s[100:101]")
    a('s_waitcnt lgkmcnt(0)')
    a('s_min_u32 s98, s98, 63')
    a('s_lshl_b32 s99, s98, 2')
    a(f's_lshl_b32 s94, s{sWAVE}, 8')
    a('s_add_u32 s99, s99, s94')
    a('s_lshl_b32 s94, s2, 12')
    a('s_add_u32 s99, s99, s94')
    a(f's_add_u32 s99, s99, {G.STAMP_OFF+0x100000}')
    a('s_mov_b64 s[92:93], exec')
    a('s_mov_b64 exec, 1')
    a(f'v_mov_b32 v{vT0}, s100')
    a(f'v_mov_b32 v{vT1}, 0')
    a(f'buffer_store_dword v{vT0}, v{vT1}, s[{sWS}:{sWS+3}], s99 offen')
    a('s_mov_b64 exec, s[92:93]')
    a('s_add_u32 s98, s98, 1')

def Gr(w, p): return GR + 4*w + p
def accH(w, t): return ACCH + 16*w + 4*t
def rng(b, n=4): return f'v[{b}:{b+n-1}]'
def grp(base, i): return base + 4*i

def lane_reg(a, r):
    a(f'v_subrev_u32 v{r}, {W2IMG}, v{vIMG}')
    a(f'v_lshrrev_b32 v{r}, 4, v{r}')

def issue_loads(a, interleave=None):
    ADDR = POOL + 16
    for j in range(8):
        a(f'v_mad_u32_u16 v{ADDR+j}, v{DS+(j>>1)}, s{s256}, v{vLANE16} op_sel:[{j&1},0,0,0]')
        if interleave and j in interleave: a(interleave[j])
    for j in range(8):
        a(f'buffer_load_dwordx4 {rng(L+4*j)}, v{ADDR+j}, s[{sTAB}:{sTAB+3}], s{sNOFF} offen')

def slow_g1(a):
    a(f's_add_u32 s{sT}, s{sGS}, s{sKOFF}')
    a(f'v_add_u32 v{vT0}, s{sT}, v{vKG16}')
    a(f'ds_read_b128 {rng(POOL)}, v{vT0}')
    a(f'v_lshrrev_b32 v{POOL+13}, 3, v{vLANE16}')
    a(f'v_mov_b32 v{POOL+14}, 0')
    a(f'global_load_short_d16_hi v{POOL+14}, v{POOL+13}, s[96:97]')
    a('s_waitcnt vmcnt(0) lgkmcnt(0)')
    FR = POOL + 14
    for p in range(4):
        for h in range(2):
            d = POOL + 4 + h; t = POOL + 6 + h; iv = POOL + 8 + h; sn = POOL + 10 + h; u = POOL + 12
            def rnd1(x):
                a(f'v_cvt_pk_bf16_f32 v{x}, v{x}, v{x}')
                a(f'v_and_b32 v{x}, s{sMASK}, v{x}')
            if h == 0: a(f'v_and_b32 v{u}, 0xffff, v{POOL+p}')
            else: a(f'v_lshrrev_b32 v{u}, 16, v{POOL+p}')
            a(f'v_add_u32 v{d}, {G.GT_T0-1}, v{u}')
            a(f'v_mov_b32 v{t}, {G.GT_SELF}')
            a(f'v_cmp_eq_u32 vcc, {G.GT_ROWS-1}, v{u}')
            a(f'v_cndmask_b32 v{d}, v{d}, v{t}, vcc')
            a(f'v_and_b32 v{t}, 0x7fff, v{u}')
            a(f'v_cmp_lt_u32 vcc, 0x7fff, v{u}')
            a(f'v_cndmask_b32 v{d}, v{d}, v{t}, vcc')
            a(f'v_cmp_eq_u32 vcc, 0, v{u}')
            a(f'v_cndmask_b32 v{d}, v{d}, v{u}, vcc')
            a(f'v_lshlrev_b32 v{d}, 16, v{d}')
            a(f'v_rcp_f32 v{iv}, v{d}')
            a(f'v_mul_f32 v{t}, 0x40490fdb, v{d}'); rnd1(t)
            a(f'v_mul_f32 v{t}, 0x3e4ccccd, v{t}'); rnd1(t)
            a(f'v_mul_f32 v{t}, 0.15915494, v{t}')
            a(f'v_cos_f32 v{t}, v{t}'); rnd1(t)
            a(f'v_add_f32 v{t}, 1.0, v{t}'); rnd1(t)
            a(f'v_mul_f32 v{iv}, 0.5, v{iv}')
            a(f'v_mul_f32 v{t}, v{t}, v{iv}')
            a(f'v_cmp_lt_f32 vcc, 0, v{d}')
            a(f'v_mul_f32 v{sn}, v{d}, v{FR}'); rnd1(sn)
            a(f'v_cndmask_b32 v{t}, 0, v{t}, vcc')
            a(f'v_mul_f32 v{sn}, 0.15915494, v{sn}')
            a(f'v_sin_f32 v{sn}, v{sn}')
            a(f'v_mul_f32 v{sn}, v{sn}, v{t}')
        a(f'v_cvt_pk_bf16_f32 v{Gr(0,p)}, v{POOL+10}, v{POOL+11}')

def step(a, ph, first):
    tag = ('V' if ph == 0 else 'H') + ('F' if first else 'R')
    RXr, RYr, RZr = POOL, POOL + 8, POOL + 16
    M1, M2 = (ACCV, ACCV+1)
    if first:
        a(f'v_mov_b32 v{vT0}, {MISC}')
        a(f'v_mov_b32 v{vT1}, 1')
        a(f's_lshl_b32 s{sT}, s{sJN}, 2')
        a(f's_add_u32 s{sT}, s{sT}, {CNT}')
        a(f'v_mov_b32 v{DS+2}, s{sT}')
        a(f's_mov_b64 s[{sEX}:{sEX+1}], exec')
        a('s_mov_b64 exec, 1')
        a(f'ds_add_rtn_u32 v{M1}, v{vT0}, v{vT1}')
        a(f'ds_read_b32 v{M2}, v{DS+2}')
        a(f's_mov_b64 exec, s[{sEX}:{sEX+1}]')
    a(f's_add_u32 s{sT}, s{sK}, 1')
    a(f's_cmp_eq_u32 s{sT}, s{sNSTC}')
    a(f's_cselect_b32 s{sLAST}, 1, 0')
    a(f's_lshl_b32 s{sT+1}, s{sJN}, 7')
    a(f's_add_u32 s{sT+2}, s{sBASE}, 32')
    a(f's_cmp_eq_u32 s{sLAST}, 1')
    a(f's_cselect_b32 s{sNBASE}, s{sT+1}, s{sT+2}')
    a(f's_cselect_b32 s{sT}, s{sPHN}, s{sPH}')
    a(f's_xor_b32 s{sT}, s{sT}, 1')
    a(f's_mul_i32 s{sNOFF}, s{sT}, {G.TABB_OFF}')
    a(f's_lshl_b32 s{sKOFF}, s{sK}, 6')
    a(f'v_add_u32 v{vT0}, s{sKOFF}, v{vKGR}')
    if ph == 1:
        a(f's_lshl_b32 s{sT+1}, s{sK}, 7')
        a(f's_add_u32 s{sT+1}, s{sT+1}, s{sGS}')
        a(f's_add_u32 s{sT+1}, s{sT+1}, 256')
        a(f'v_lshl_add_u32 v{vT1}, v{vKG16}, 1, s{sT+1}')
    a(f's_cmp_eq_u32 s{sSLOW}, 1')
    a(f's_cbranch_scc1 K2_SLOWG_{tag}')
    a(f'ds_read_u16 v{DS}, v{vT0}')
    a(f'ds_read_u16 v{DS+1}, v{vT0} offset:8')
    if ph == 1:
        for (R, off) in ((RXr, 0), (RYr, 512), (RZr, 1024)):
            a(f'ds_read_b128 {rng(R)}, v{vT1} offset:{off}')
            a(f'ds_read_b128 {rng(R+4)}, v{vT1} offset:{off+16}')
    a(f's_waitcnt lgkmcnt({6 if ph == 1 else 0})')
    a(f'v_mad_u32_u16 v{DS}, v{DS}, 32, v{vGTC}')
    a(f'v_mad_u32_u16 v{DS+1}, v{DS+1}, 32, v{vGTC}')
    a(f'ds_read_b64_tr_b16 v[{Gr(0,0)}:{Gr(0,1)}], v{DS}')
    a(f'ds_read_b64_tr_b16 v[{Gr(0,2)}:{Gr(0,3)}], v{DS+1}')
    if ph == 1: a('s_waitcnt lgkmcnt(0)')
    a(f's_branch K2_G1_{tag}')
    a.label(f'K2_SLOWG_{tag}')
    if ph == 1: a(f'v_mov_b32 v{DS+3}, v{vT1}')
    slow_g1(a)
    if ph == 1:
        for (R, off) in ((RXr, 0), (RYr, 512), (RZr, 1024)):
            a(f'ds_read_b128 {rng(R)}, v{DS+3} offset:{off}')
            a(f'ds_read_b128 {rng(R+4)}, v{DS+3} offset:{off+16}')
        a('s_waitcnt lgkmcnt(0)')
    a.label(f'K2_G1_{tag}')
    if ph == 1:
        for p in range(4):
            g0, g1 = DS, DS+1
            a(f'v_lshlrev_b32 v{g0}, 16, v{Gr(0,p)}')
            a(f'v_and_b32 v{g1}, s{sMASK}, v{Gr(0,p)}')
            for k, R in enumerate((RXr, RYr, RZr)):
                t0 = DS+2 if k % 2 == 0 else vT0
                if k % 2 == 0:
                    a(f'v_pk_mul_f32 v[{DS+2}:{DS+3}], v[{g0}:{g1}], v[{R+2*p}:{R+2*p+1}]')
                    a(f'v_cvt_pk_bf16_f32 v{Gr(1+k,p)}, v{DS+2}, v{DS+3}')
                else:
                    a(f'v_mul_f32 v{vT0}, v{g0}, v{R+2*p}')
                    a(f'v_mul_f32 v{vT1}, v{g1}, v{R+2*p+1}')
                    a(f'v_cvt_pk_bf16_f32 v{Gr(1+k,p)}, v{vT0}, v{vT1}')
    a(f's_lshl_b32 s{sT}, s{sNBASE}, 1')
    a(f'v_add_u32 v{vT0}, s{sT}, v{vKG16}')
    a(f'ds_read_b128 {rng(DS)}, v{vT0}')
    if first:
        a(f'v_readfirstlane_b32 s{sTNN}, v{M1}')
        a(f'v_readfirstlane_b32 s{sCN}, v{M2}')
        a(f's_add_u32 s{sNSTN}, s{sCN}, 31')
        a(f's_lshr_b32 s{sNSTN}, s{sNSTN}, 5')
        a(f's_max_u32 s{sNSTN}, s{sNSTN}, 1')
    TB = [POOL + 4*i for i in range(4)]
    a(f's_waitcnt vmcnt({4 if first else 0})')
    if ph == 1:
        order = [('h', t) for t in range(4)] + [('v', 0, t) for t in range(4)]
    else:
        order = [('v', 1, t) for t in range(4)] + [('v', 2, t) for t in range(4)]
    def tile_perm_list(o, dst):
        if o[0] == 'h': q = 2 + (o[1] >> 1); half = o[1] & 1
        else:
            t = o[2]; half = t & 1
            q = (t >> 1) if (o[1] in (0, 1)) else 2 + (t >> 1)
        sel = sSELHI if half else sSELLO
        return [f'v_perm_b32 v{dst+p}, v{L+4*(2*p+1)+q}, v{L+4*(2*p)+q}, s{sel}' for p in range(4)]
    def tile_mfma_list(o, src):
        out = []
        if o[0] == 'h':
            for w in range(4):
                acc = accH(w, o[1]); c = '0' if first else rng(acc)
                out.append(f'v_mfma_f32_16x16x32_bf16 {rng(acc)}, {rng(src)}, {rng(Gr(w,0))}, {c}')
        else:
            acc = {0: ACCV, 1: ACCH, 2: ACCH+16}[o[1]] + 4*o[2]; c = '0' if first else rng(acc)
            out.append(f'v_mfma_f32_16x16x32_bf16 {rng(acc)}, {rng(Gr(0,0))}, {rng(src)}, {c}')
        return out
    if ph == 0: a('s_waitcnt lgkmcnt(1)')
    for l in tile_perm_list(order[0], TB[0]): a(l)
    for i in range(1, 8):
        pl = tile_perm_list(order[i], TB[i % 4])
        ml = tile_mfma_list(order[i-1], TB[(i-1) % 4])
        if len(ml) == 4:
            a(pl[0]); a(pl[1]); a(ml[0]); a(pl[2]); a(ml[1]); a(pl[3]); a(ml[2]); a(ml[3])
        else:
            for l in pl: a(l)
            a(ml[0])
    ml = tile_mfma_list(order[7], TB[7 % 4])
    a('s_waitcnt lgkmcnt(0)')
    issue_loads(a, {1: ml[0]})
    a(f's_mov_b32 s{sBASE}, s{sNBASE}')

def geometry(a, sJ, sCNT, tag):
    P = POOL
    src = [P, P+1]; D = [P+2, P+4]; dp = [P+6, P+7, P+8]
    T = list(range(P+9, P+24))
    lane_reg(a, vLANE)
    a(f's_lshl_b32 s{sT}, s{sJ}, 8')
    a(f'v_lshlrev_b32 v{T[0]}, 1, v{vLANE}')
    a(f'v_add_u32 v{T[0]}, s{sT}, v{T[0]}')
    a(f'ds_read_u16 v{src[0]}, v{T[0]}')
    a(f'ds_read_u16 v{src[1]}, v{T[0]} offset:128')
    a(f's_add_u32 s{sT}, s{sN0}, s{sJ}')
    a(f's_mul_i32 s{sT}, s{sT}, 6')
    a(f's_add_u32 s{sT}, s{sT}, {POS}')
    a(f's_min_u32 s{sT}, s{sT}, {POS+75000-6}')
    a(f'v_mov_b32 v{T[1]}, s{sT}')
    for c in range(3): a(f'v_mov_b32 v{dp[c]}, 0')
    for c in range(3): a(f'ds_read_u16_d16_hi v{dp[c]}, v{T[1]} offset:{2*c}')
    a(f's_mov_b32 s{sSLOWN}, 0')
    a('s_waitcnt lgkmcnt(3)')
    for it in range(2):
        s_ = src[it]
        a(f's_sub_i32 s{sT+1}, s{sCNT}, {64*it}')
        a(f'v_cmp_gt_i32 s[{sMK+2*it}:{sMK+2*it+1}], s{sT+1}, v{vLANE}')
        a(f'v_cndmask_b32 v{s_}, 0, v{s_}, s[{sMK+2*it}:{sMK+2*it+1}]')
        a(f'v_mul_u32_u24 v{T[0]}, 6, v{s_}')
        a(f'v_and_b32 v{T[0]}, -4, v{T[0]}')
        a(f'v_add_u32 v{T[0]}, {POS}, v{T[0]}')
        a(f'ds_read2_b32 v[{D[it]}:{D[it]+1}], v{T[0]} offset0:0 offset1:1')
        a(f'v_and_b32 v{s_}, 1, v{s_}')
        a(f'v_lshlrev_b32 v{s_}, 4, v{s_}')
    a(f's_lshl_b32 s{sT2}, s{sJ}, 10')
    a(f's_add_u32 s{sT2}, s{sT2}, s{sGEO}')
    for it in range(2):
        if it == 1:
            a(f's_cmp_le_u32 s{sCNT}, 64')
            a(f's_cbranch_scc1 K2_GEO_END_{tag}')
        a(f's_waitcnt lgkmcnt({1 if it == 0 else 0})')
        rx, ry, rz, p = T[2], T[3], T[4], T[5]
        a(f'v_alignbit_b32 v{ry}, v{D[it]+1}, v{D[it]}, v{src[it]}')
        a(f'v_lshrrev_b32 v{rz}, v{src[it]}, v{D[it]+1}')
        a(f'v_lshlrev_b32 v{rx}, 16, v{ry}')
        a(f'v_and_b32 v{ry}, s{sMASK}, v{ry}')
        a(f'v_lshlrev_b32 v{rz}, 16, v{rz}')
        a(f'v_sub_f32 v{rx}, v{rx}, v{dp[0]}')
        a(f'v_sub_f32 v{ry}, v{ry}, v{dp[1]}')
        a(f'v_sub_f32 v{rz}, v{rz}, v{dp[2]}')
        def rnd2(x, y):
            a(f'v_cvt_pk_bf16_f32 v{p}, v{x}, v{y}')
            a(f'v_lshlrev_b32 v{x}, 16, v{p}')
            a(f'v_and_b32 v{y}, s{sMASK}, v{p}')
        def rnd1(x):
            a(f'v_cvt_pk_bf16_f32 v{x}, v{x}, v{x}')
            a(f'v_and_b32 v{x}, s{sMASK}, v{x}')
        rnd2(rx, ry); rnd1(rz)
        qx, qy, qz = T[6], T[7], T[8]
        a(f'v_mul_f32 v{qx}, v{rx}, v{rx}')
        a(f'v_mul_f32 v{qy}, v{ry}, v{ry}')
        a(f'v_mul_f32 v{qz}, v{rz}, v{rz}')
        rnd2(qx, qy); rnd1(qz)
        d = T[9]
        a(f'v_add_f32 v{d}, v{qx}, v{qy}')
        a(f'v_add_f32 v{d}, v{d}, v{qz}')
        rnd1(d)
        a(f'v_add_f32 v{d}, 0x322bcc77, v{d}')
        rnd1(d)
        a(f'v_sqrt_f32 v{d}, v{d}')
        rnd1(d)
        inv = qx
        a(f'v_rcp_f32 v{inv}, v{d}')
        a(f'v_lshrrev_b32 v{qy}, 16, v{d}')
        a(f'v_cmp_gt_u32 vcc, 0x40a0, v{qy}')
        a(f'v_mul_f32 v{rx}, v{rx}, v{inv}')
        a(f's_and_b64 s[{sT+2}:{sT+3}], vcc, s[{sMK+2*it}:{sMK+2*it+1}]')
        a(f'v_mul_f32 v{ry}, v{ry}, v{inv}')
        a(f'v_mul_f32 v{rz}, v{rz}, v{inv}')
        row, t1 = T[10], T[11]
        a(f'v_subrev_u32 v{row}, {G.GT_T0-1}, v{qy}')
        a(f'v_cmp_gt_u32 vcc, {G.GT_T0}, v{qy}')
        a(f'v_or_b32 v{t1}, 0x8000, v{qy}')
        a(f'v_cndmask_b32 v{row}, v{row}, v{t1}, vcc')
        a(f'v_cmp_eq_u32 vcc, {G.GT_SELF}, v{qy}')
        a(f'v_mov_b32 v{t1}, {G.GT_ROWS-1}')
        a(f'v_cndmask_b32 v{row}, v{row}, v{t1}, vcc')
        a(f'v_cndmask_b32 v{row}, 0, v{row}, s[{sT+2}:{sT+3}]')
        a(f'v_cvt_pk_bf16_f32 v{T[12]}, v{rx}, v{rx}')
        a(f'v_cvt_pk_bf16_f32 v141, v{ry}, v{rz}')
        a(f'v_cmp_lt_u32 vcc, 0x7fff, v{row}')
        a(f'v_and_or_b32 v140, v{T[12]}, s{sMASK}, v{row}')
        a(f's_cmp_lg_u64 vcc, 0')
        a(f's_cselect_b32 s{sT}, 1, 0')
        a(f's_or_b32 s{sSLOWN}, s{sSLOWN}, s{sT}')
        a(f'v_lshl_add_u32 v{T[0]}, v{vLANE}, 1, s{sGS}') if False else None
        a(f'v_lshlrev_b32 v{T[0]}, 1, v{vLANE}')
        a(f'v_add_u32 v{T[0]}, s{sGS}, v{T[0]}')
        a(f'ds_write_b16 v{T[0]}, v{row} offset:{128*it}')
        a(f'v_lshlrev_b32 v{T[1]}, 3, v{vLANE}')
        a(f'buffer_store_dwordx2 v[140:141], v{T[1]}, s[{sWS}:{sWS+3}], s{sT2} offen offset:{512*it}')
    a.label(f'K2_GEO_END_{tag}')

def geo_load(a, tag):
    a(f's_lshl_b32 s{sT}, s{sJN}, 2')
    a(f's_add_u32 s{sT}, s{sT}, {FLG}')
    a(f'v_mov_b32 v{vT0}, s{sT}')
    a.label(f'K2_SPIN_{tag}')
    a(f'ds_read_b32 v{vT1}, v{vT0}')
    a('s_waitcnt lgkmcnt(0)')
    a(f'v_readfirstlane_b32 s{sT+1}, v{vT1}')
    a(f's_cmp_eq_u32 s{sT+1}, 1')
    a(f's_cbranch_scc1 K2_SPOK_{tag}')
    a('s_sleep 4')
    a(f's_branch K2_SPIN_{tag}')
    a.label(f'K2_SPOK_{tag}')
    a(f's_lshl_b32 s{sT2}, s{sJN}, 10')
    a(f's_add_u32 s{sT2}, s{sT2}, s{sGEO}')
    lane_reg(a, vT0)
    a(f'v_lshlrev_b32 v{vT0}, 3, v{vT0}')
    a(f'buffer_load_dwordx2 v[{DS}:{DS+1}], v{vT0}, s[{sWS}:{sWS+3}], s{sT2} offen sc1')
    a(f'buffer_load_dwordx2 v[{DS+2}:{DS+3}], v{vT0}, s[{sWS}:{sWS+3}], s{sT2} offen offset:512 sc1')

def geo_unpack(a, T):
    ln, ad, x = T, T+1, T+2
    lane_reg(a, ln)
    a(f's_mov_b32 s{sSLOWN}, 0')
    for it in range(2):
        w0, w1 = DS+2*it, DS+2*it+1
        a(f's_sub_i32 s{sT+1}, s{sCN}, {64*it}')
        a(f'v_cmp_gt_i32 vcc, s{sT+1}, v{ln}')
        a(f'v_and_b32 v{x}, 0xffff, v{w0}')
        a(f'v_cndmask_b32 v{w0}, 0, v{w0}, vcc')
        a(f'v_cndmask_b32 v{w1}, 0, v{w1}, vcc')
        a(f'v_cndmask_b32 v{x}, 0, v{x}, vcc')
        a(f'v_lshlrev_b32 v{ad}, 1, v{ln}')
        a(f'v_add_u32 v{ad}, s{sGS}, v{ad}')
        a(f'ds_write_b16 v{ad}, v{x} offset:{128*it}')
        a(f'v_cmp_lt_u32 vcc, 0x7fff, v{x}')
        a(f'v_lshlrev_b32 v{ad}, 2, v{ln}')
        a(f'v_add_u32 v{ad}, s{sGS}, v{ad}')
        a(f's_cmp_lg_u64 vcc, 0')
        a(f's_cselect_b32 s{sT}, 1, 0')
        a(f's_or_b32 s{sSLOWN}, s{sSLOWN}, s{sT}')
        a(f'v_and_b32 v{x}, s{sMASK}, v{w0}')
        a(f'ds_write_b32 v{ad}, v{x} offset:{256+256*it}')
        a(f'v_lshlrev_b32 v{x+1}, 16, v{w1}')
        a(f'ds_write_b32 v{ad}, v{x+1} offset:{256+512+256*it}')
        a(f'v_and_b32 v{x+2}, s{sMASK}, v{w1}')
        a(f'ds_write_b32 v{ad}, v{x+2} offset:{256+1024+256*it}')

def flush_pending(a, tag, nyoung):
    a(f's_cmp_lt_i32 s{sPEND}, 0')
    a(f's_cbranch_scc1 K2_NOPEND_{tag}')
    a(f's_waitcnt vmcnt({nyoung})')
    a(f's_lshl_b32 s{sT}, s{sPEND}, 2')
    a(f's_add_u32 s{sT}, s{sT}, {FLG}')
    a(f'v_mov_b32 v{vT0}, s{sT}')
    a(f'v_mov_b32 v{vT1}, 1')
    a(f'ds_write_b32 v{vT0}, v{vT1}')
    a(f's_mov_b32 s{sPEND}, -1')
    a.label(f'K2_NOPEND_{tag}')

def reduce_groups(a, O):
    for o in O:
        a(f'v_permlane32_swap_b32 v{o}, v{o+2}')
        a(f'v_permlane32_swap_b32 v{o+1}, v{o+3}')
    for o in O:
        a(f'v_add_f32 v{o}, v{o}, v{o+2}')
        a(f'v_add_f32 v{o+1}, v{o+1}, v{o+3}')
    for o in O: a(f'v_permlane16_swap_b32 v{o}, v{o+1}')
    for o in O: a(f'v_add_f32 v{o}, v{o}, v{o+1}')

def finalize4(a, R, tmp):
    a(f's_add_u32 s{sT}, s{sN0}, s{sJC}')
    a(f's_and_b32 s{sT+1}, s{sFIRST}, s{sRLAST}')
    a(f's_cmp_eq_u32 s{sT+1}, 1')
    a('s_cbranch_scc1 K2_FIN')
    a(f's_lshl_b32 s{sT+1}, s{sT}, 10')
    a(f's_add_u32 s{sT+1}, s{sT+1}, {G.PART2_OFF}')
    lane_reg(a, vT0)
    a(f'v_lshlrev_b32 v{vT0}, 2, v{vT0}')
    a(f's_cmp_eq_u32 s{sFIRST}, 1')
    a('s_cbranch_scc1 K2_NOLD')
    for i in range(4):
        a(f'buffer_load_dword v{tmp+i}, v{vT0}, s[{sWS}:{sWS+3}], s{sT+1} offen offset:{256*i}')
    a('s_waitcnt vmcnt(0)')
    for i in range(4):
        a(f'v_add_f32 v{R[i]}, v{R[i]}, v{tmp+i}')
    a.label('K2_NOLD')
    a(f's_cmp_eq_u32 s{sRLAST}, 1')
    a('s_cbranch_scc1 K2_FIN')
    for i in range(4):
        a(f'buffer_store_dword v{R[i]}, v{vT0}, s[{sWS}:{sWS+3}], s{sT+1} offen offset:{256*i}')
    a('s_waitcnt vmcnt(0)')
    a('s_branch K2_FDONE')
    a.label('K2_FIN')
    p01, p23 = tmp, tmp+1
    x = [tmp+2+i for i in range(4)]
    y = [tmp+6+i for i in range(4)]
    a(f'v_cvt_pk_bf16_f32 v{p01}, v{R[0]}, v{R[1]}')
    a(f'v_cvt_pk_bf16_f32 v{p23}, v{R[2]}, v{R[3]}')
    a(f'v_lshlrev_b32 v{y[0]}, 16, v{SV0}')
    a(f'v_and_b32 v{y[1]}, s{sMASK}, v{SV0}')
    a(f'v_lshlrev_b32 v{y[2]}, 16, v{SV1}')
    a(f'v_and_b32 v{y[3]}, s{sMASK}, v{SV1}')
    a(f'v_lshlrev_b32 v{x[0]}, 16, v{p01}')
    a(f'v_and_b32 v{x[1]}, s{sMASK}, v{p01}')
    a(f'v_lshlrev_b32 v{x[2]}, 16, v{p23}')
    a(f'v_and_b32 v{x[3]}, s{sMASK}, v{p23}')
    for i in range(4): a(f'v_add_f32 v{x[i]}, v{x[i]}, v{y[i]}')
    a(f'v_cvt_pk_bf16_f32 v{p01}, v{x[0]}, v{x[1]}')
    a(f'v_cvt_pk_bf16_f32 v{p23}, v{x[2]}, v{x[3]}')
    a(f's_lshl_b32 s{sT+1}, s{sT}, 9')
    a(f'buffer_store_short v{p01}, v{vOUTOFF}, s[{sOUT}:{sOUT+3}], s{sT+1} offen nt')
    a(f'buffer_store_short_d16_hi v{p01}, v{vOUTOFF}, s[{sOUT}:{sOUT+3}], s{sT+1} offen offset:128 nt')
    a(f'buffer_store_short v{p23}, v{vOUTOFF}, s[{sOUT}:{sOUT+3}], s{sT+1} offen offset:256 nt')
    a(f'buffer_store_short_d16_hi v{p23}, v{vOUTOFF}, s[{sOUT}:{sOUT+3}], s{sT+1} offen offset:384 nt')
    a.label('K2_FDONE')

def next_prep_start(a, tag):
    a(f's_cmp_eq_u32 s{sPHN}, 1')
    a(f's_cbranch_scc0 K2_NPS_{tag}')
    a(f's_cmp_ge_u32 s{sTN}, s{sNN2}')
    a(f's_cbranch_scc1 K2_NPS_{tag}')
    geo_load(a, tag)
    a.label(f'K2_NPS_{tag}')

def next_prep_end(a, tag, T):
    a(f's_cmp_ge_u32 s{sTN}, s{sNN2}')
    a(f's_cbranch_scc1 K2_NPE_{tag}')
    a(f's_cmp_eq_u32 s{sPHN}, 1')
    a(f's_cbranch_scc1 K2_NPH_{tag}')
    geometry(a, sJN, sCN, tag)
    a(f's_branch K2_NPE_{tag}')
    a.label(f'K2_NPH_{tag}')
    a('s_waitcnt vmcnt(0)') if False else None
    a(f's_waitcnt vmcnt(NYG_{tag})')
    geo_unpack(a, T)
    a.label(f'K2_NPE_{tag}')

def epilogueH(a):
    F = [accH(w, t) for w in range(4) for t in (1, 3)]
    WRB = F[0:4]; O = F[4:8]
    W2 = [grp(POOL, i) for i in range(6)] + [grp(GR, 0), grp(GR, 1)]
    def rd_w2(part):
        for kp in range(2):
            for tau in range(4):
                a(f'ds_read_b128 {rng(W2[kp*4+tau])}, v{vIMG} offset:{part*8192+kp*4096+tau*1024}')
    def rd_wr(p):
        for tau in range(4):
            a(f'ds_read_b128 {rng(WRB[tau])}, v{vIMG} offset:{16384+p*4096+tau*1024}')
    def mf(d, A, B, c):
        a(f'v_mfma_f32_16x16x32_bf16 {rng(d)}, {rng(A)}, {rng(B)}, {c}')
    rd_w2(0)
    for w in range(4):
        for kp in range(2):
            e, o = accH(w, 2*kp), accH(w, 2*kp+1)
            a(f'v_cvt_pk_bf16_f32 v{e}, v{e}, v{e+1}')
            a(f'v_cvt_pk_bf16_f32 v{e+1}, v{e+2}, v{e+3}')
            a(f'v_cvt_pk_bf16_f32 v{e+2}, v{o}, v{o+1}')
            a(f'v_cvt_pk_bf16_f32 v{e+3}, v{o+2}, v{o+3}')
    rd_wr(0)
    a('s_waitcnt lgkmcnt(4)')
    TS = [grp(GR, 2), grp(GR, 3), O[2], O[3]]
    for tau in range(4): mf(TS[tau], accH(0,0), W2[tau], '0')
    for tau in range(4): mf(TS[tau], accH(0,2), W2[4+tau], rng(TS[tau]))
    rd_w2(1)
    a('s_waitcnt lgkmcnt(8)')
    for tau in range(4):
        a(f'v_mul_f32 v{O[0]+tau}, v{WRB[tau]}, v{TS[tau]}')
    for q in range(1, 4):
        for tau in range(4):
            a(f'v_fmac_f32 v{O[0]+tau}, v{WRB[tau]+q}, v{TS[tau]+q}')
    rd_wr(1)
    a('s_waitcnt lgkmcnt(0)')
    for tau in range(4):
        a(f'v_mul_f32 v{O[1]+tau}, v{WRB[tau]}, v{ACCV+4*tau}')
    for q in range(1, 4):
        for tau in range(4):
            a(f'v_fmac_f32 v{O[1]+tau}, v{WRB[tau]+q}, v{ACCV+4*tau+q}')
    rd_wr(2)
    items = [(w, tp) for w in (1, 2, 3) for tp in (0, 1)]
    def mf_item(i):
        w, tp = items[i]
        for h in range(2):
            mf(ACCV + 8*(i % 2) + 4*h, accH(w,0), W2[2*tp+h], '0')
        for h in range(2):
            d = ACCV + 8*(i % 2) + 4*h
            mf(d, accH(w,2), W2[4+2*tp+h], rng(d))
    def fm_item(i):
        w, tp = items[i]
        for q in range(4):
            for h in range(2):
                tau = 2*tp + h
                T = ACCV + 8*(i % 2) + 4*h
                if q == 0 and w != 1:
                    a(f'v_mul_f32 v{O[w]+tau}, v{WRB[tau]}, v{T}')
                else:
                    a(f'v_fmac_f32 v{O[w]+tau}, v{WRB[tau]+q}, v{T+q}')
    mf_item(0); mf_item(1)
    a('s_waitcnt lgkmcnt(0)')
    for i in range(len(items)):
        fm_item(i)
        if i + 2 < len(items): mf_item(i + 2)
    reduce_groups(a, O)
    a(f'v_add_f32 v{O[2]}, v{O[2]}, v{PT0}')
    a(f'v_add_f32 v{O[3]}, v{O[3]}, v{PT1}')
    finalize4(a, O, POOL)

def epilogueV(a):
    WRB = [grp(POOL, i) for i in range(4)]
    O = [grp(POOL, 4), grp(POOL, 5)]
    for tau in range(4):
        a(f'ds_read_b128 {rng(WRB[tau])}, v{vIMG} offset:{16384+4096+tau*1024}')
    a('s_waitcnt lgkmcnt(0)')
    for k in range(2):
        acc = ACCH + 16*k
        for tau in range(4):
            a(f'v_mul_f32 v{O[k]+tau}, v{WRB[tau]}, v{acc+4*tau}')
        for q in range(1, 4):
            for tau in range(4):
                a(f'v_fmac_f32 v{O[k]+tau}, v{WRB[tau]+q}, v{acc+4*tau+q}')
    reduce_groups(a, O)
    a(f's_add_u32 s{sT}, s{sN0}, s{sJC}')
    a(f's_lshl_b32 s{sT+1}, s{sT}, 9')
    a(f's_add_u32 s{sT+1}, s{sT+1}, {G.PART_OFF}')
    lane_reg(a, vT0)
    a(f'v_lshlrev_b32 v{vT0}, 2, v{vT0}')
    a(f'buffer_store_dword v{O[0]}, v{vT0}, s[{sWS}:{sWS+3}], s{sT+1} offen')
    a(f'buffer_store_dword v{O[1]}, v{vT0}, s[{sWS}:{sWS+3}], s{sT+1} offen offset:256')
    a(f's_mov_b32 s{sPEND}, s{sJC}')

def sv_loads(a, sj):
    a(f's_add_u32 s{sT}, s{sN0}, s{sj}')
    a(f's_lshl_b32 s{sT}, s{sT}, 9')
    a(f'buffer_load_short_d16 v{SV0}, v{vOUTOFF}, s[{sSV}:{sSV+3}], s{sT} offen nt')
    a(f'buffer_load_short_d16_hi v{SV0}, v{vOUTOFF}, s[{sSV}:{sSV+3}], s{sT} offen offset:128 nt')
    a(f'buffer_load_short_d16 v{SV1}, v{vOUTOFF}, s[{sSV}:{sSV+3}], s{sT} offen offset:256 nt')
    a(f'buffer_load_short_d16_hi v{SV1}, v{vOUTOFF}, s[{sSV}:{sSV+3}], s{sT} offen offset:384 nt')

def decode_task(a, stask, sj, sph):
    a(f's_cmp_ge_u32 s{stask}, s{sNN}')
    a(f's_cselect_b32 s{sph}, 1, 0')
    a(f's_cselect_b32 s{sT}, s{sNN}, 0')
    a(f's_sub_u32 s{sj}, s{stask}, s{sT}')
    a(f's_cmp_ge_u32 s{stask}, s{sNN2}')
    a(f's_cselect_b32 s{sj}, 49, s{sj}')

def rotate(a):
    sv_loads(a, sJN)
    a(f's_mov_b32 s{sTC}, s{sTN}')
    a(f's_mov_b32 s{sJC}, s{sJN}')
    a(f's_mov_b32 s{sPH}, s{sPHN}')
    a(f's_mov_b32 s{sNSTC}, s{sNSTN}')
    a(f's_mov_b32 s{sSLOW}, s{sSLOWN}')
    a(f's_mov_b32 s{sTN}, s{sTNN}')
    decode_task(a, sTN, sJN, sPHN)
    a('s_branch K2_TASK')

def dma_blocks(a, nblk_mod, clip, per_wave, ldsbase, srd, goff_fn, tag):
    pass

def gen_k2(a):
    a.raw('.set NYG_V, 0\n.set NYG_H, 4')
    a.raw('.globl k2_kernel\n.p2align 8\n.type k2_kernel,@function')
    a.label('k2_kernel')
    a('s_load_dwordx4 s[4:7], s[0:1], 0')
    a('s_load_dwordx2 s[96:97], s[0:1], 32')
    a('s_load_dwordx2 s[8:9], s[0:1], 64')
    a('s_load_dwordx2 s[10:11], s[0:1], 80')
    a(f's_cmp_ge_u32 s2, {G.NB}')
    a('s_cbranch_scc1 K2_END')
    a(f's_mov_b32 s{sMASK}, 0xffff0000')
    a(f's_mov_b32 s{sSELLO}, 0x05040100')
    a(f's_mov_b32 s{sSELHI}, 0x07060302')
    a(f's_mov_b32 s{s256}, 256')
    a(f's_and_b32 s{sBK}, s2, 7')
    a(f's_lshl_b32 s{sBK}, s{sBK}, 5')
    a(f's_lshr_b32 s{sT}, s2, 3')
    a(f's_or_b32 s{sBK}, s{sBK}, s{sT}')
    a(f's_mul_i32 s{sN0}, s{sBK}, 12500')
    a(f's_add_u32 s{sNN}, s{sN0}, {12500+255}')
    a(f's_add_u32 s{sN0}, s{sN0}, 255')
    a(f's_lshr_b32 s{sN0}, s{sN0}, 8')
    a(f's_lshr_b32 s{sNN}, s{sNN}, 8')
    a(f's_sub_u32 s{sNN}, s{sNN}, s{sN0}')
    a(f's_lshl_b32 s{sNN2}, s{sNN}, 1')
    a(f's_mul_i32 s{sGEO}, s{sBK}, {50*1024}')
    a(f's_add_u32 s{sGEO}, s{sGEO}, {G.GEO_OFF}')
    a(f'v_and_b32 v{vLANE}, 63, v0')
    a('v_lshrrev_b32 v16, 6, v0')
    a(f'v_readfirstlane_b32 s{sWAVE}, v16')
    a(f'v_and_b32 v17, 15, v{vLANE}')
    a(f'v_lshrrev_b32 v18, 4, v{vLANE}')
    a(f'v_lshlrev_b32 v{vLANE16}, 4, v17')
    a(f'v_lshlrev_b32 v{vKG16}, 4, v18')
    a(f's_mul_i32 s{sGS}, s{sWAVE}, {GSW}')
    a(f's_add_u32 s{sGS}, s{sGS}, {GS}')
    a(f'v_lshrrev_b32 v{vKGR}, 2, v17')
    a(f'v_lshl_add_u32 v{vKGR}, v18, 3, v{vKGR}')
    a(f'v_lshlrev_b32 v{vKGR}, 1, v{vKGR}')
    a(f'v_add_u32 v{vKGR}, s{sGS}, v{vKGR}')
    a(f'v_and_b32 v{vGTC}, 3, v{vLANE}')
    a(f'v_lshlrev_b32 v{vGTC}, 3, v{vGTC}')
    a(f'v_add_u32 v{vGTC}, {GT}, v{vGTC}')
    a(f'v_lshl_add_u32 v{vOUTOFF}, v17, 2, v18')
    a(f'v_lshlrev_b32 v{vOUTOFF}, 1, v{vOUTOFF}')
    a(f'v_lshlrev_b32 v{vIMG}, 4, v{vLANE}')
    a(f'v_add_u32 v{vIMG}, {W2IMG}, v{vIMG}')
    a('s_waitcnt lgkmcnt(0)')
    G.srd(a, sWS, 10, G.WS_USED if not STAMP else 0x4300000)
    G.srd(a, sTAB, 10, G.TAB_SZ); G.srd(a, sSV, 4, N*512); G.srd(a, sOUT, 8, N*512); G.srd(a, sPOSP, 6, N*6)
    if STAMP: a('s_mov_b32 s98, 0')
    mark(a, True); mark(a)
    a(f's_mov_b32 s{sF0}, 0')
    a(f's_mov_b32 s{sW}, {WCAP}')
    a(f's_mov_b32 s{sFIRST}, 1')
    a('s_branch K2_ROUND_IN')
    a.label('K2_ROUND')
    a('s_barrier')
    a.label('K2_ROUND_IN')
    lane_reg(a, vLANE)
    a(f's_lshl_b32 s{sT}, s{sWAVE}, 6')
    a(f'v_add_u32 v161, s{sT}, v{vLANE}')
    SEGC, SEGB, PFX = 20, 21, 22
    a(f's_mul_i32 s{sT}, s{sWAVE}, {SEGW}')
    a(f'v_add_u32 v17, s{sT}, v{vLANE}')
    a(f'v_cmp_gt_u32 vcc, {SEGW}, v{vLANE}')
    a(f'v_mov_b32 v{SEGC}, 0')
    a(f'v_mov_b32 v18, {G.NCH}')
    a(f'v_cmp_lt_u32 s[{sT}:{sT+1}], v17, v18')
    a(f's_and_b64 vcc, vcc, s[{sT}:{sT+1}]')
    a('v_lshlrev_b32 v18, 2, v17')
    a(f's_lshl_b32 s{sT}, s{sBK}, 10')
    a(f's_add_u32 s{sT}, s{sT}, {G.SEG_OFF}')
    a(f's_and_saveexec_b64 s[{sEX}:{sEX+1}], vcc')
    a(f'buffer_load_dword v{SEGC}, v18, s[{sWS}:{sWS+3}], s{sT} offen')
    a(f's_mov_b64 exec, s[{sEX}:{sEX+1}]')
    def pos_dma(lo, hi, tag):
        a(f's_cmp_eq_u32 s{sFIRST}, 1')
        a(f's_cbranch_scc0 K2_PD_{tag}')
        a(f'v_lshlrev_b32 v34, 4, v{vLANE}')
        a(f's_mul_i32 s{sT2}, s2, 7')
        a(f's_add_u32 s{sT2}, s{sT2}, s{sWAVE}')
        for i in range(lo, hi):
            a(f's_add_u32 s{sT}, s{sT2}, {NW*i}')
            a(f's_mul_hi_u32 s{sT+1}, s{sT}, {(1<<32)//84+1}')
            a(f's_mul_i32 s{sT+1}, s{sT+1}, 84')
            a(f's_sub_u32 s{sT}, s{sT}, s{sT+1}')
            a(f's_min_u32 s{sT}, s{sT}, 72')
            a(f's_lshl_b32 s{sT+1}, s{sT}, 10')
            a(f's_add_u32 m0, s{sT+1}, {POS}')
            a('s_nop 0')
            a(f'buffer_load_dwordx4 v34, s[{sPOSP}:{sPOSP+3}], s{sT+1} offen lds')
        if hi == 7:
            a(f's_mov_b64 s[{sEX}:{sEX+1}], exec')
            a('s_mov_b64 exec, 0xffff')
            a(f's_mov_b32 s{sT+1}, {73*1024}')
            a(f's_mov_b32 m0, {POS+73*1024}')
            a('s_nop 0')
            a(f'buffer_load_dwordx4 v34, s[{sPOSP}:{sPOSP+3}], s{sT+1} offen lds')
            a(f's_mov_b64 exec, s[{sEX}:{sEX+1}]')
        a.label(f'K2_PD_{tag}')
    pos_dma(0, 3, 'A')
    a('v_lshlrev_b32 v18, 4, v161')
    a('v_mov_b32 v24, 0\nv_mov_b32 v25, 0\nv_mov_b32 v26, 0\nv_mov_b32 v27, 0')
    a(f'v_add_u32 v19, {CNT}, v18')
    a('v_cmp_gt_u32 vcc, 40, v161')
    a(f's_and_saveexec_b64 s[{sEX}:{sEX+1}], vcc')
    a('ds_write_b128 v19, v[24:27]')
    a(f's_mov_b64 exec, s[{sEX}:{sEX+1}]')
    a(f'v_mov_b32 v24, {PADMARK | (PADMARK << 16)}')
    a('v_mov_b32 v25, v24\nv_mov_b32 v26, v24\nv_mov_b32 v27, v24')
    a('ds_write_b128 v18, v[24:27]')
    a(f'v_cmp_gt_u32 vcc, {NSLOT*2//16 - 768}, v161')
    a(f's_and_saveexec_b64 s[{sEX}:{sEX+1}], vcc')
    a(f'ds_write_b128 v18, v[24:27] offset:{768*16}')
    a(f's_mov_b64 exec, s[{sEX}:{sEX+1}]')
    a(f'v_mul_u32_u24 v{SEGB}, {G.CHE}, v17')
    a(f's_cmp_eq_u32 s{sFIRST}, 1')
    a('s_cbranch_scc1 K2_WSEG')
    a('s_waitcnt vmcnt(0)')
    a.label('K2_WSEG')
    a('s_waitcnt vmcnt(3)')
    mark(a)
    a(f'v_and_b32 v18, 0xffff, v{SEGC}')
    a(f'v_add_u32 v{SEGB}, v{SEGB}, v18')
    a(f'v_lshrrev_b32 v{SEGC}, 16, v{SEGC}')
    a(f'v_mov_b32 v{PFX}, v{SEGC}')
    for sh in (1, 2, 4, 8):
        a(f'v_add_u32_dpp v{PFX}, v{PFX}, v{PFX} row_shr:{sh} row_mask:0xf bank_mask:0xf')
    a(f'v_add_u32_dpp v{PFX}, v{PFX}, v{PFX} row_bcast:15 row_mask:0xa bank_mask:0xf')
    a(f'v_readlane_b32 s{sTOT}, v{PFX}, 31')
    a(f'v_sub_u32 v{PFX}, v{PFX}, v{SEGC}')
    a(f's_mul_i32 s{sT+2}, s{sWAVE}, {MSTR}')
    a(f's_add_u32 s{sT+2}, s{sT+2}, {GS}')
    a(f'v_subrev_u32 v30, s{sF0}, v{PFX}')
    a('v_sub_u32 v31, 0, v30')
    a('v_max_i32 v31, 0, v31')
    a(f'v_sub_u32 v32, s{sW}, v30')
    a(f'v_min_i32 v32, v32, v{SEGC}')
    a('v_add_u32 v33, v30, v31')
    a('v_lshlrev_b32 v33, 2, v33')
    a(f'v_add_u32 v33, s{sT+2}, v33')
    a(f'v_add_lshl_u32 v28, v{SEGB}, v31, 2')
    a('v_sub_u32 v32, v32, v31')
    a(f'v_lshlrev_b32 v30, 2, v{vLANE}')
    a(f'v_add_u32 v30, s{sT+2}, v30')
    a.label('K2_MK')
    a('v_cmp_lt_i32 vcc, 0, v32')
    a('s_cbranch_vccz K2_MK_DONE')
    a(f's_and_saveexec_b64 s[{sEX}:{sEX+1}], vcc')
    a('ds_write_b32 v33, v28')
    a('v_add_u32 v29, 4, v28')
    a('v_cmp_lt_i32 vcc, 1, v32')
    a('s_and_b64 exec, exec, vcc')
    a('ds_write_b32 v33, v29 offset:4')
    a(f's_mov_b64 exec, s[{sEX}:{sEX+1}]')
    a('v_add_u32 v33, 8, v33')
    a('v_add_u32 v28, 8, v28')
    a('v_subrev_u32 v32, 2, v32')
    a('s_branch K2_MK')
    a.label('K2_MK_DONE')
    U = WCAP // 64
    RIDX = lambda u: 40 + u
    for u in range(U):
        a(f'ds_read_b32 v{RIDX(u)}, v30 offset:{256*u}')
    pos_dma(3, 5, 'B')
    a(f's_sub_i32 s{sT}, s{sTOT}, s{sF0}')
    a(f's_max_i32 s{sT}, s{sT}, 0')
    a(f's_min_i32 s{sNV}, s{sT}, s{sW}')
    a(f's_cmp_gt_i32 s{sT}, s{sW}')
    a(f's_cselect_b32 s{sMORE}, 1, 0')
    for u in range(U):
        a(f's_sub_i32 s{sT}, s{sNV}, {64*u}')
        a(f'v_cmp_gt_i32 s[{sMK+2*u}:{sMK+2*u+1}], s{sT}, v{vLANE}')
    a(f's_mov_b32 s{sT2}, {G.REC_OFF}')
    RR = lambda u: 48 + u
    a(f's_mov_b64 s[{sEX}:{sEX+1}], exec')
    for u in range(U):
        a(f's_waitcnt lgkmcnt({U-1-u})')
        a(f's_mov_b64 exec, s[{sMK+2*u}:{sMK+2*u+1}]')
        a(f'buffer_load_dword v{RR(u)}, v{RIDX(u)}, s[{sWS}:{sWS+3}], s{sT2} offen')
    a(f's_mov_b64 exec, s[{sEX}:{sEX+1}]')
    a(f's_cmp_eq_u32 s{sFIRST}, 1')
    a('s_cbranch_scc0 K2_NODMA')
    a(f'v_lshlrev_b32 v34, 4, v{vLANE}')
    a(f's_mul_i32 s{sT2}, s2, 5')
    a(f's_add_u32 s{sT2}, s{sT2}, s{sWAVE}')
    for i in range(5):
        a(f's_add_u32 s{sT}, s{sT2}, {NW*i}')
        a(f's_mul_hi_u32 s{sT+1}, s{sT}, {(1<<32)//60+1}')
        a(f's_mul_i32 s{sT+1}, s{sT+1}, 60')
        a(f's_sub_u32 s{sT}, s{sT}, s{sT+1}')
        a(f's_min_u32 s{sT}, s{sT}, 51')
        a(f's_lshl_b32 s{sT+1}, s{sT}, 10')
        a(f's_add_u32 m0, s{sT+1}, {W2IMG}')
        a(f's_cmp_ge_u32 s{sT}, 28')
        a(f's_mov_b32 s{sT+2}, {G.CIMG_OFF}')
        a(f's_cselect_b32 s{sT+2}, {G.GT_OFF - 28*1024}, s{sT+2}')
        a(f's_add_u32 s{sT+1}, s{sT+1}, s{sT+2}')
        a(f'buffer_load_dwordx4 v34, s[{sWS}:{sWS+3}], s{sT+1} offen lds')
    a.label('K2_NODMA')
    a('s_waitcnt lgkmcnt(0)')
    mark(a)
    a('s_barrier')
    a(f's_cmp_eq_u32 s{sFIRST}, 1')
    a('s_cbranch_scc1 K2_WREC1')
    a('s_waitcnt vmcnt(0)')
    a.label('K2_WREC1')
    a('s_waitcnt vmcnt(5)')
    mark(a)
    DL = lambda u: 56 + u
    RK = lambda u: 62 + u
    a('v_mov_b32 v28, 1')
    for u in range(U):
        a(f's_cmp_eq_u64 s[{sMK+2*u}:{sMK+2*u+1}], 0')
        a('s_cbranch_scc1 K2_AT_DONE')
        a(f's_mov_b64 exec, s[{sMK+2*u}:{sMK+2*u+1}]')
        a(f'v_lshrrev_b32 v{DL(u)}, 16, v{RR(u)}')
        a(f'v_subrev_u32 v{DL(u)}, s{sN0}, v{DL(u)}')
        a(f'v_lshlrev_b32 v36, 2, v{DL(u)}')
        a(f'v_add_u32 v36, {CNT}, v36')
        a(f'ds_add_rtn_u32 v{RK(u)}, v36, v28')
    a.label('K2_AT_DONE')
    a(f's_mov_b64 exec, s[{sEX}:{sEX+1}]')
    pos_dma(5, 7, 'C')
    if NPF:
        a(f's_lshr_b32 s{sT}, s2, 3')
        a(f's_mul_i32 s{sT}, s{sT}, {NW*NPF*1024}')
        a(f's_mul_i32 s{sT+1}, s{sWAVE}, {NPF*1024}')
        a(f's_add_u32 s{sT}, s{sT}, s{sT+1}')
        a(f's_add_u32 s{sT}, s{sT}, {G.TABB_OFF}')
        a(f'v_lshlrev_b32 v34, 4, v{vLANE}')
        for i in range(NPF):
            a(f'buffer_load_dwordx4 v[{104+4*(i%12)}:{107+4*(i%12)}], v34, s[{sTAB}:{sTAB+3}], s{sT} offen offset:{(i%4)*1024}')
            if i % 4 == 3: a(f's_add_u32 s{sT}, s{sT}, 4096')
    a('s_waitcnt lgkmcnt(0)')
    a(f's_mov_b64 s[{sOVF}:{sOVF+1}], 0')
    for u in range(U):
        a(f's_cmp_eq_u64 s[{sMK+2*u}:{sMK+2*u+1}], 0')
        a('s_cbranch_scc1 K2_PL_DONE')
        a(f's_mov_b64 exec, s[{sMK+2*u}:{sMK+2*u+1}]')
        a(f'v_cmp_gt_u32 vcc, 128, v{RK(u)}')
        a(f'v_lshl_add_u32 v34, v{DL(u)}, 7, v{RK(u)}')
        a(f's_andn2_b64 s[{sT}:{sT+1}], exec, vcc')
        a(f's_or_b64 s[{sOVF}:{sOVF+1}], s[{sOVF}:{sOVF+1}], s[{sT}:{sT+1}]')
        a('s_and_b64 exec, exec, vcc')
        a('v_lshlrev_b32 v34, 1, v34')
        a(f'ds_write_b16 v34, v{RR(u)}')
    a.label('K2_PL_DONE')
    a(f's_mov_b64 exec, s[{sEX}:{sEX+1}]')
    a(f'v_mov_b32 v35, {MISC}')
    a(f's_cmp_eq_u64 s[{sOVF}:{sOVF+1}], 0')
    a('s_cbranch_scc1 K2_NOOVF')
    a('ds_write_b32 v35, v28 offset:4')
    a.label('K2_NOOVF')
    a(f's_cmp_eq_u32 s{sMORE}, 0')
    a('s_cbranch_scc1 K2_NOMORE')
    a('ds_write_b32 v35, v28 offset:8')
    a.label('K2_NOMORE')
    a(f's_waitcnt vmcnt({NPF}) lgkmcnt(0)')
    mark(a)
    a('s_barrier')
    a('ds_read_b32 v30, v35 offset:4')
    a('ds_read_b32 v31, v35 offset:8')
    a('s_waitcnt lgkmcnt(0)')
    a(f'v_readfirstlane_b32 s{sT}, v30')
    a(f'v_readfirstlane_b32 s{sMORE}, v31')
    a(f's_cmp_eq_u32 s{sT}, 0')
    a('s_cbranch_scc1 K2_GO')
    a('s_waitcnt vmcnt(0) lgkmcnt(0)')
    a(f's_lshr_b32 s{sW}, s{sW}, 1')
    a('s_branch K2_ROUND')
    a.label('K2_GO')
    a(f's_xor_b32 s{sRLAST}, s{sMORE}, 1')
    mark(a); mark(a)
    a(f's_mov_b32 s{sPEND}, -1')
    a(f'v_mov_b32 v{vT0}, {MISC}')
    a(f'v_mov_b32 v{vT1}, 1')
    a('s_mov_b64 exec, 1')
    a(f'ds_add_rtn_u32 v{POOL}, v{vT0}, v{vT1}')
    a(f'ds_add_rtn_u32 v{POOL+1}, v{vT0}, v{vT1}')
    a(f's_mov_b64 exec, s[{sEX}:{sEX+1}]')
    a('s_waitcnt lgkmcnt(0)')
    a(f'v_readfirstlane_b32 s{sTC}, v{POOL}')
    a(f'v_readfirstlane_b32 s{sTN}, v{POOL+1}')
    a(f's_cmp_ge_u32 s{sTC}, s{sNN2}')
    a('s_cbranch_scc1 K2_WAVE_DONE')
    decode_task(a, sTC, sJC, sPH)
    a(f's_lshl_b32 s{sT}, s{sJC}, 2')
    a(f's_add_u32 s{sT}, s{sT}, {CNT}')
    a(f'v_mov_b32 v{vT0}, s{sT}')
    a(f'ds_read_b32 v{POOL}, v{vT0}')
    a(f's_lshl_b32 s{sBASE}, s{sJC}, 7')
    a(f's_lshl_b32 s{sT}, s{sBASE}, 1')
    a(f'v_add_u32 v{vT1}, s{sT}, v{vKG16}')
    a(f'ds_read_b128 {rng(DS)}, v{vT1}')
    a(f's_xor_b32 s{sT}, s{sPH}, 1')
    a(f's_mul_i32 s{sNOFF}, s{sT}, {G.TABB_OFF}')
    a('s_waitcnt lgkmcnt(0)')
    a(f'v_readfirstlane_b32 s{sCN}, v{POOL}')
    issue_loads(a)
    sv_loads(a, sJC)
    a(f's_add_u32 s{sNSTC}, s{sCN}, 31')
    a(f's_lshr_b32 s{sNSTC}, s{sNSTC}, 5')
    a(f's_max_u32 s{sNSTC}, s{sNSTC}, 1')
    a(f's_mov_b32 s{sJN}, s{sJC}')
    a(f's_cmp_eq_u32 s{sPH}, 1')
    a('s_cbranch_scc1 K2_PRE_H')
    geometry(a, sJC, sCN, 'P')
    a('s_branch K2_PRE_D')
    a.label('K2_PRE_H')
    geo_load(a, 'P')
    a('s_waitcnt vmcnt(0)')
    geo_unpack(a, POOL)
    a.label('K2_PRE_D')
    a(f's_mov_b32 s{sSLOW}, s{sSLOWN}')
    decode_task(a, sTN, sJN, sPHN)
    a.label('K2_TASK')
    a(f's_cmp_ge_u32 s{sTC}, s{sNN2}')
    a('s_cbranch_scc1 K2_WAVE_DONE')
    mark(a)
    a(f's_mov_b32 s{sK}, 0')
    a(f's_cmp_eq_u32 s{sPH}, 1')
    a('s_cbranch_scc1 K2_NODE_H')
    step(a, 0, True)
    a(f's_cmp_eq_u32 s{sLAST}, 1')
    a('s_cbranch_scc1 K2_EPI_V')
    a.label('K2_STEP_V')
    a(f's_add_u32 s{sK}, s{sK}, 1')
    step(a, 0, False)
    a(f's_cmp_eq_u32 s{sLAST}, 1')
    a('s_cbranch_scc0 K2_STEP_V')
    a.label('K2_EPI_V')
    mark(a)
    a.safe()
    a('s_waitcnt vmcnt(8)')
    flush_pending(a, 'EV', 8)
    epilogueV(a)
    a(f's_cmp_eq_u32 s{sPHN}, 1')
    a('s_cbranch_scc0 K2_EV2')
    flush_pending(a, 'EV2', 0)
    a.label('K2_EV2')
    next_prep_start(a, 'V')
    next_prep_end(a, 'V', POOL)
    rotate(a)
    a.label('K2_NODE_H')
    a(f's_add_u32 s{sT}, s{sN0}, s{sJC}')
    a(f's_lshl_b32 s{sT+1}, s{sT}, 9')
    a(f's_add_u32 s{sT+1}, s{sT+1}, {G.PART_OFF}')
    lane_reg(a, vT0)
    a(f'v_lshlrev_b32 v{vT0}, 2, v{vT0}')
    a(f'buffer_load_dword v{PT0}, v{vT0}, s[{sWS}:{sWS+3}], s{sT+1} offen sc1')
    a(f'buffer_load_dword v{PT1}, v{vT0}, s[{sWS}:{sWS+3}], s{sT+1} offen offset:256 sc1')
    step(a, 1, True)
    a(f's_cmp_eq_u32 s{sLAST}, 1')
    a('s_cbranch_scc1 K2_EPI_H')
    a.label('K2_STEP_H')
    a(f's_add_u32 s{sK}, s{sK}, 1')
    step(a, 1, False)
    a(f's_cmp_eq_u32 s{sLAST}, 1')
    a('s_cbranch_scc0 K2_STEP_H')
    a.label('K2_EPI_H')
    mark(a)
    a.safe()
    a('s_waitcnt vmcnt(8)')
    next_prep_start(a, 'H')
    epilogueH(a)
    next_prep_end(a, 'H', POOL)
    rotate(a)
    a.label('K2_WAVE_DONE')
    flush_pending(a, 'WD', 0)
    a(f's_cmp_eq_u32 s{sRLAST}, 1')
    a('s_cbranch_scc1 K2_END')
    a('s_waitcnt vmcnt(0) lgkmcnt(0)')
    a(f's_mov_b32 s{sFIRST}, 0')
    a(f's_add_u32 s{sF0}, s{sF0}, s{sW}')
    a(f's_lshl_b32 s{sW}, s{sW}, 1')
    a(f's_min_u32 s{sW}, s{sW}, {WCAP}')
    a('s_branch K2_ROUND')
    a.label('K2_END')
    if STAMP:
        a(f's_cmp_ge_u32 s2, {G.NB}')
        a('s_cbranch_scc1 K2_END2')
        a('s_waitcnt vmcnt(0)')
        mark(a); mark(a, True)
        a('s_waitcnt vmcnt(0)')
        a.label('K2_END2')
    a('s_endpgm')
    return True
```

```python
import sys, os
from asmlib import Asm

NAME = 'gather_scatter__molecular_angular_painn__graph'
N = 12500; E = 800000
NCH = 250; CHE = 3200; NB = 256
TAB_OFF = 0; TAB_SZ = N * 512
CIMG_OFF = 0x620000
SEG_OFF = 0x630000
REC_OFF = 0x700000
PART_OFF = 0x1400000
WS_USED = 0x2040000
NODE_WGS = 196
CODEPF = int(os.environ.get('CODEPF','0'))
CODEKB = int(os.environ.get('CODEKB','16'))
K1_GRID = NCH + NODE_WGS + 2
GT_OFF = 0x628000
GT_T0 = 0x3D80
GT_ROWS = 801
K1_LDS = 16384
HIST = 12800
MASKHI = 0xffff0000

def srd(a, d, base, size):
    a(f's_mov_b32 s{d}, s{base}')
    a(f's_and_b32 s{d+1}, s{base+1}, 0xffff')
    a(f's_mov_b32 s{d+2}, {size}')
    a(f's_mov_b32 s{d+3}, 0x20000')

def srd_off(a, d, base, off, size):
    a(f's_add_u32 s{d}, s{base}, {off}')
    a(f's_addc_u32 s{d+1}, s{base+1}, 0')
    a(f's_and_b32 s{d+1}, s{d+1}, 0xffff')
    a(f's_mov_b32 s{d+2}, {size}')
    a(f's_mov_b32 s{d+3}, 0x20000')

import os
STAMP = os.environ.get('STAMP','0') == '1'
STAMP_OFF = 0x3000000
class Stamper:
    def __init__(self, a, base, wsreg, kid):
        self.a=a; self.base=base; self.n=0; self.ws=wsreg; self.kid=kid
    def mark(self, real=False):
        if not STAMP: return
        a=self.a
        r=self.base+2*self.n
        a(f"{'s_memrealtime' if real else 's_memtime'} s[{r}:{r+1}]")
        a('s_waitcnt lgkmcnt(0)')
        self.n+=1
    def dump(self, vt0, wgreg='s2'):
        if not STAMP: return
        a=self.a
        b=self.base+2*self.n
        b=(b+3)//4*4
        a(f's_add_u32 s{b}, s{self.ws}, {STAMP_OFF+self.kid*0x100000}')
        a(f's_addc_u32 s{b+1}, s{self.ws+1}, 0')
        a(f's_and_b32 s{b+1}, s{b+1}, 0xffff')
        a(f's_mov_b32 s{b+2}, 0x100000')
        a(f's_mov_b32 s{b+3}, 0x20000')
        a('s_mov_b64 exec, 1')
        a(f'v_lshrrev_b32 v{vt0}, 6, v0')
        a(f'v_lshlrev_b32 v{vt0}, 7, v{vt0}')
        a(f's_lshl_b32 s{b+4}, {wgreg}, 11')
        a(f'v_add_u32 v{vt0}, s{b+4}, v{vt0}')
        for i in range(self.n):
            a(f'v_mov_b32 v{vt0+1}, s{self.base+2*i}')
            a(f'buffer_store_dword v{vt0+1}, v{vt0}, s[{b}:{b+3}], 0 offen offset:{4*i}')
        a('s_waitcnt vmcnt(0)')

def gen_k1(a):
    a.raw('.globl k1_kernel\n.p2align 8\n.type k1_kernel,@function')
    a.label('k1_kernel')
    a('s_load_dwordx4 s[4:7], s[0:1], 0')
    a('s_load_dwordx4 s[8:11], s[0:1], 16')
    a('s_load_dwordx4 s[12:15], s[0:1], 32')
    a('s_load_dwordx4 s[16:19], s[0:1], 48')
    a('s_load_dwordx2 s[20:21], s[0:1], 80')
    a(f's_cmp_ge_u32 s2, {K1_GRID}')
    a('s_cbranch_scc1 K1_END')
    a('s_mov_b32 s22, 0xffff0000')
    a('s_mov_b32 s47, 0x40a00000')
    a('s_mov_b32 s99, s2')
    a('s_waitcnt lgkmcnt(0)')
    if os.environ.get('EDGEFIRST','0') == '1':
        a(f's_add_u32 s23, s2, {NODE_WGS+2}')
        a(f's_sub_u32 s2, s2, {NCH}')
        a(f's_cmp_lt_u32 s23, {NCH+NODE_WGS+2}')
        a('s_cselect_b32 s2, s23, s2')
    a(f's_cmp_lt_u32 s2, {NODE_WGS+2}')
    a('s_cbranch_scc1 K1_NOTEDGE')
    a(f's_sub_u32 s2, s2, {NODE_WGS+2}')
    srd(a, 24, 8, E*4); srd(a, 28, 10, E*4); srd(a, 36, 20, WS_USED)
    st = Stamper(a, 48, 20, 0)
    st.mark(True); st.mark()
    a(f's_mul_i32 s3, s2, {CHE*4}')
    a('v_lshlrev_b32 v1, 4, v0')
    a('v_cmp_gt_u32 vcc, 400, v0')
    a('s_and_saveexec_b64 s[40:41], vcc')
    a('s_mov_b64 s[42:43], exec')
    a('buffer_load_dwordx4 v[4:7], v1, s[28:31], s3 offen')
    a('buffer_load_dwordx4 v[12:15], v1, s[24:27], s3 offen')
    a(f's_add_u32 s4, s3, {1600*4}')
    a('buffer_load_dwordx4 v[8:11], v1, s[28:31], s4 offen')
    a('buffer_load_dwordx4 v[16:19], v1, s[24:27], s4 offen')
    a('s_mov_b64 exec, s[40:41]')
    if CODEPF:
        a('v_lshrrev_b32 v2, 6, v0')
        a('v_readfirstlane_b32 s5, v2')
        a('s_cmp_lg_u32 s5, 7')
        a('s_cbranch_scc1 K1_NOCPF')
        a(f's_cmp_ge_u32 s2, {CODEPF}')
        a('s_cbranch_scc1 K1_NOCPF')
        a('s_getpc_b64 s[6:7]')
        a.label('K1_PCREF')
        a('s_add_u32 s6, s6, k2_kernel-K1_PCREF')
        a('s_addc_u32 s7, s7, 0')
        a('v_and_b32 v2, 63, v0')
        a('v_lshlrev_b32 v2, 4, v2')
        for i in range(CODEKB):
            a(f'global_load_dwordx4 v[{64+4*(i%8)}:{67+4*(i%8)}], v2, s[6:7] offset:{(i%4)*1024}')
            if i % 4 == 3:
                a('s_add_u32 s6, s6, 4096')
                a('s_addc_u32 s7, s7, 0')
        a.label('K1_NOCPF')
    a('v_mov_b32 v60, 0\nv_mov_b32 v61, 0\nv_mov_b32 v62, 0\nv_mov_b32 v63, 0')
    a('v_cmp_gt_u32 vcc, 64, v0')
    a('s_and_saveexec_b64 s[44:45], vcc')
    a(f'v_add_u32 v2, {HIST}, v1')
    a('ds_write_b128 v2, v[60:63]')
    a('s_mov_b64 exec, s[40:41]')
    a('s_mov_b32 s46, 87960931')
    a('v_mov_b32 v40, 1')
    a('s_waitcnt lgkmcnt(0)')
    a('s_barrier')
    st.mark()
    a('s_mov_b64 exec, s[42:43]')
    DST = lambda e: 4+e
    SRC = lambda e: 12+e
    BK = lambda e: 20+e
    RK = lambda e: 28+e
    REC = lambda e: 44+e
    for e in range(8):
        if e == 0: a('s_waitcnt vmcnt(3)')
        if e == 4: a('s_waitcnt vmcnt(1)')
        a(f'v_mul_hi_u32 v{BK(e)}, v{DST(e)}, s46')
        a(f'v_lshlrev_b32 v{BK(e)}, 2, v{BK(e)}')
        a(f'v_add_u32 v{BK(e)}, {HIST}, v{BK(e)}')
        a(f'ds_add_rtn_u32 v{RK(e)}, v{BK(e)}, v40')
    a('s_waitcnt vmcnt(0)')
    for e in range(8):
        a(f'v_lshl_or_b32 v{REC(e)}, v{DST(e)}, 16, v{SRC(e)}')
    a('s_mov_b64 exec, s[40:41]')
    a('s_waitcnt lgkmcnt(0)')
    st.mark()
    a('s_barrier')
    st.mark()
    a('v_lshrrev_b32 v1, 6, v0')
    a('v_readfirstlane_b32 s4, v1')
    a('s_cmp_lg_u32 s4, 0')
    a('s_cbranch_scc1 K1_E_SCANDONE')
    a('v_lshlrev_b32 v1, 4, v0')
    a(f'v_add_u32 v2, {HIST}, v1')
    a('ds_read_b128 v[80:83], v2')
    a('s_waitcnt lgkmcnt(0)')
    a('v_add_u32 v84, v80, v81')
    a('v_add_u32 v85, v84, v82')
    a('v_add_u32 v86, v85, v83')
    a('v_mov_b32 v87, v86')
    for sh in (1, 2, 4, 8):
        a(f'v_add_u32_dpp v87, v87, v87 row_shr:{sh} row_mask:0xf bank_mask:0xf')
    a('v_add_u32_dpp v87, v87, v87 row_bcast:15 row_mask:0xa bank_mask:0xf')
    a('v_add_u32_dpp v87, v87, v87 row_bcast:31 row_mask:0xc bank_mask:0xf')
    a('v_sub_u32 v88, v87, v86')
    a('v_add_u32 v89, v88, v80')
    a('v_add_u32 v90, v88, v84')
    a('v_add_u32 v91, v88, v85')
    a('ds_write_b128 v2, v[88:91]')
    a('v_lshlrev_b32 v1, 12, v0')
    a('s_lshl_b32 s4, s2, 2')
    a(f's_add_u32 s4, s4, {SEG_OFF}')
    for i in range(4):
        a(f'v_lshl_or_b32 v{92+i}, v{80+i}, 16, v{88+i}')
        a(f'buffer_store_dword v{92+i}, v1, s[36:39], s4 offen offset:{1024*i}')
    a('s_waitcnt lgkmcnt(0)')
    a.label('K1_E_SCANDONE')
    a('s_barrier')
    st.mark()
    a('s_mov_b64 exec, s[42:43]')
    for e in range(8):
        a(f'ds_read_b32 v{BK(e)}, v{BK(e)}')
    for e in range(8):
        a(f's_waitcnt lgkmcnt({7-e})')
        a(f'v_add_lshl_u32 v{BK(e)}, v{BK(e)}, v{RK(e)}, 2')
        a(f'ds_write_b32 v{BK(e)}, v{REC(e)}')
    a('s_mov_b64 exec, s[40:41]')
    a('s_waitcnt lgkmcnt(0)')
    a('s_barrier')
    st.mark()
    a('v_lshlrev_b32 v1, 4, v0')
    a(f's_mul_i32 s4, s2, {CHE*4}')
    a(f's_add_u32 s4, s4, {REC_OFF}')
    a('ds_read_b128 v[80:83], v1')
    a('v_cmp_gt_u32 vcc, 288, v0')
    a('s_and_saveexec_b64 s[44:45], vcc')
    a('ds_read_b128 v[84:87], v1 offset:8192')
    a('s_mov_b64 exec, s[40:41]')
    a('s_waitcnt lgkmcnt(0)')
    a('buffer_store_dwordx4 v[80:83], v1, s[36:39], s4 offen')
    a('s_add_u32 s4, s4, 8192')
    a('s_mov_b64 exec, s[44:45]') if False else None
    a('v_cmp_gt_u32 vcc, 288, v0')
    a('s_and_saveexec_b64 s[44:45], vcc')
    a('buffer_store_dwordx4 v[84:87], v1, s[36:39], s4 offen')
    if STAMP:
        st.mark()
        a('s_waitcnt vmcnt(0)')
        st.mark(); st.mark(True)
        st.dump(110, 's99')
    a('s_endpgm')

    a.label('K1_NOTEDGE')
    a(f's_cmp_ge_u32 s2, {NODE_WGS}')
    a('s_cbranch_scc1 K1_CONST')
    srd(a, 24, 4, N*512); srd(a, 28, 14, 64*64*2); srd(a, 32, 16, 64*192*2); srd(a, 36, 20, TAB_SZ)
    st = Stamper(a, 48, 20, 0)
    st.mark(True); st.mark()
    a('v_lshlrev_b32 v1, 4, v0')
    a('buffer_load_dwordx4 v[4:7], v1, s[28:31], 0 offen')
    a('v_lshrrev_b32 v2, 3, v0')
    a('v_mul_u32_u24 v2, 384, v2')
    a('v_and_b32 v3, 7, v0')
    a('v_lshl_add_u32 v2, v3, 4, v2')
    a('buffer_load_dwordx4 v[8:11], v2, s[32:35], 0 offen offset:128')
    a('s_barrier')
    a('v_and_b32 v12, 63, v0')
    a('v_lshrrev_b32 v13, 6, v0')
    a('v_and_b32 v14, 15, v12')
    a('v_lshrrev_b32 v15, 4, v12')
    a('s_lshl_b32 s3, s2, 6')
    a('v_lshl_add_u32 v16, v13, 4, v14')
    a('v_add_u32 v16, s3, v16')
    a('v_lshlrev_b32 v17, 9, v16')
    a('v_lshl_add_u32 v18, v15, 4, v17')
    a('v_readfirstlane_b32 s4, v13')
    a('s_cmp_ge_u32 s4, 4')
    a('s_cbranch_scc1 K1_N_HELP')
    a('buffer_load_dwordx4 v[20:23], v18, s[24:27], 0 offen')
    a('buffer_load_dwordx4 v[24:27], v18, s[24:27], 0 offen offset:64')
    VV = lambda k, t2: 28 + 4*(2*k+t2)
    for k in range(3):
        for t2 in range(2):
            a(f'buffer_load_dwordx4 v[{VV(k,t2)}:{VV(k,t2)+3}], v18, s[24:27], 0 offen offset:{128*(k+1)+64*t2}')
    a('s_waitcnt vmcnt(8)')
    a('s_branch K1_N_W')
    a.label('K1_N_HELP')
    a('s_waitcnt vmcnt(0)')
    a('ds_write_b128 v1, v[4:7]')
    a('ds_write_b128 v1, v[8:11] offset:8192')
    a('s_waitcnt lgkmcnt(0)')
    a('s_barrier')
    a('s_endpgm')
    a.label('K1_N_W')
    a('ds_write_b128 v1, v[4:7]')
    a('ds_write_b128 v1, v[8:11] offset:8192')
    a('v_lshrrev_b32 v2, 2, v14')
    a('v_and_b32 v3, 3, v14')
    a('v_lshl_add_u32 v4, v15, 3, v2')
    a('v_lshlrev_b32 v4, 7, v4')
    a('v_lshl_add_u32 v4, v3, 4, v4')
    a('s_waitcnt lgkmcnt(0)')
    st.mark()
    a('s_barrier')
    st.mark()
    def rd_ops(base):
        for t in range(4):
            t2, b = t >> 1, t & 1
            for kp in range(2):
                r = 52 + 4*(2*t+kp)
                o = base + kp*4096 + 64*t2 + 8*b
                a(f'ds_read_b64_tr_b16 v[{r}:{r+1}], v4 offset:{o}')
                a(f'ds_read_b64_tr_b16 v[{r+2}:{r+3}], v4 offset:{o+512}')
    rd_ops(0)
    a('s_waitcnt vmcnt(6) lgkmcnt(0)')
    D1 = lambda t: 84 + 4*t
    for t in range(4):
        a(f'v_mfma_f32_16x16x32_bf16 v[{D1(t)}:{D1(t)+3}], v[{52+8*t}:{55+8*t}], v[20:23], 0')
    for t in range(4):
        a(f'v_mfma_f32_16x16x32_bf16 v[{D1(t)}:{D1(t)+3}], v[{56+8*t}:{59+8*t}], v[24:27], v[{D1(t)}:{D1(t)+3}]')
    rd_ops(8192)
    HP = lambda t: 100 + 2*t
    for t in range(4):
        for hq in range(2):
            x, y = D1(t)+2*hq, D1(t)+2*hq+1
            t7, t8 = (7, 8) if hq == 0 else (9, 10)
            a(f'v_cvt_pk_bf16_f32 v6, v{x}, v{y}')
            a(f'v_lshlrev_b32 v{x}, 16, v6')
            a(f'v_and_b32 v{y}, s22, v6')
            a(f'v_mul_f32 v{t7}, 0xbfb8aa3b, v{x}')
            a(f'v_mul_f32 v{t8}, 0xbfb8aa3b, v{y}')
            a(f'v_exp_f32 v{t7}, v{t7}')
            a(f'v_exp_f32 v{t8}, v{t8}')
            a(f'v_add_f32 v{t7}, 1.0, v{t7}')
            a(f'v_add_f32 v{t8}, 1.0, v{t8}')
            a(f'v_rcp_f32 v{t7}, v{t7}')
            a(f'v_rcp_f32 v{t8}, v{t8}')
            a(f'v_mul_f32 v{t7}, v{t7}, v{x}')
            a(f'v_mul_f32 v{t8}, v{t8}, v{y}')
            a(f'v_cvt_pk_bf16_f32 v{HP(t)+hq}, v{t7}, v{t8}')
    a('s_waitcnt lgkmcnt(0)')
    D2 = lambda t: 84 + 4*t
    for t in range(4):
        a(f'v_mfma_f32_16x16x32_bf16 v[{D2(t)}:{D2(t)+3}], v[{52+8*t}:{55+8*t}], v[100:103], 0')
    for t in range(4):
        a(f'v_mfma_f32_16x16x32_bf16 v[{D2(t)}:{D2(t)+3}], v[{56+8*t}:{59+8*t}], v[104:107], v[{D2(t)}:{D2(t)+3}]')
    a('s_waitcnt vmcnt(0)')
    a('v_lshl_add_u32 v18, v15, 5, v17')
    for t in range(4):
        t2, b = t >> 1, t & 1
        for hq in range(2):
            x, y = D2(t)+2*hq, D2(t)+2*hq+1
            a(f'v_cvt_pk_bf16_f32 v6, v{x}, v{y}')
            a(f'v_lshlrev_b32 v{x}, 16, v6')
            a(f'v_and_b32 v{y}, s22, v6')
        o = 52 + 8*t
        for k in range(3):
            for hq in range(2):
                vr = VV(k,t2)+2*b+hq
                t7, t8 = (7, 8) if hq == 0 else (9, 10)
                a(f'v_lshlrev_b32 v{t7}, 16, v{vr}')
                a(f'v_and_b32 v{t8}, s22, v{vr}')
                a(f'v_mul_f32 v{t7}, v{t7}, v{D2(t)+2*hq}')
                a(f'v_mul_f32 v{t8}, v{t8}, v{D2(t)+2*hq+1}')
                a(f'v_cvt_pk_bf16_f32 v{o+2*k+hq}, v{t7}, v{t8}')
        a(f'v_mov_b32 v{o+6}, v{HP(t)}')
        a(f'v_mov_b32 v{o+7}, v{HP(t)+1}')
        a(f'buffer_store_dwordx4 v[{o}:{o+3}], v18, s[36:39], 0 offen offset:{128*t2+16*b}')
        a(f'buffer_store_dwordx4 v[{o+4}:{o+7}], v18, s[36:39], 0 offen offset:{256+128*t2+16*b}')
    if STAMP:
        st.mark()
        a('s_waitcnt vmcnt(0)')
        st.mark(); st.mark(True)
        st.dump(110, 's99')
    a('s_endpgm')

    a.label('K1_CONST')
    a(f's_cmp_eq_u32 s2, {NODE_WGS+1}')
    a('s_cbranch_scc1 K1_GT')
    srd(a, 28, 18, 16*192*2); srd(a, 32, 16, 64*192*2); srd_off(a, 36, 20, CIMG_OFF, 28672)
    a('v_and_b32 v1, 63, v0')
    a('v_and_b32 v2, 15, v1')
    a('v_lshrrev_b32 v3, 4, v1')
    a('v_bfe_u32 v4, v0, 6, 2')
    a('v_bfe_u32 v5, v0, 8, 1')
    a('v_lshlrev_b32 v6, 4, v3')
    a('v_lshl_add_u32 v6, v5, 1, v6')
    a('v_mul_u32_u24 v6, 384, v6')
    a('v_lshl_add_u32 v7, v2, 2, v4')
    a('v_lshl_add_u32 v6, v7, 1, v6')
    for part in range(2):
        for jj in range(8):
            off = (4*(jj & 3) + (jj >> 2))*384 + 256*part
            a(f'v_add_u32 v8, {off}, v6')
            a(f'buffer_load_ushort v{16+8*part+jj}, v8, s[32:35], 0 offen')
    a('v_lshlrev_b32 v9, 2, v3')
    a('v_mul_u32_u24 v9, 384, v9')
    a('v_lshl_add_u32 v9, v7, 1, v9')
    a('v_lshl_add_u32 v10, v5, 7, v9')
    for q in range(4):
        a(f'buffer_load_ushort v{32+q}, v10, s[28:31], 0 offen offset:{q*384}')
    for q in range(4):
        a(f'buffer_load_ushort v{36+q}, v9, s[28:31], 0 offen offset:{q*384+256}')
    a('s_waitcnt vmcnt(0)')
    a('v_lshlrev_b32 v11, 4, v0')
    for part in range(2):
        for h in range(4):
            a(f'v_lshl_or_b32 v{40+4*part+h}, v{16+8*part+2*h+1}, 16, v{16+8*part+2*h}')
        a(f'buffer_store_dwordx4 v[{40+4*part}:{43+4*part}], v11, s[36:39], 0 offen') if part == 0 else None
    a('v_add_u32 v12, 8192, v11')
    a('buffer_store_dwordx4 v[44:47], v12, s[36:39], 0 offen')
    for q in range(8):
        a(f'v_lshlrev_b32 v{32+q}, 16, v{32+q}')
    a('v_add_u32 v12, 16384, v11')
    a('buffer_store_dwordx4 v[32:35], v12, s[36:39], 0 offen')
    a('v_cmp_gt_u32 vcc, 256, v0')
    a('s_and_saveexec_b64 s[44:45], vcc')
    a('v_add_u32 v12, 24576, v11')
    a('buffer_store_dwordx4 v[36:39], v12, s[36:39], 0 offen')
    a('s_endpgm')
    a.label('K1_GT')
    srd_off(a, 36, 20, GT_OFF, GT_ROWS*32)
    a('s_load_dwordx8 s[24:31], s[12:13], 0')
    a('s_waitcnt lgkmcnt(0)')
    for it in range(2):
        a(f'v_add_u32 v1, {512*it}, v0')
        a(f'v_add_u32 v2, {GT_T0-1}, v1')
        a('v_lshlrev_b32 v2, 16, v2')
        def rnd1(x):
            a(f'v_cvt_pk_bf16_f32 v{x}, v{x}, v{x}')
            a(f'v_and_b32 v{x}, s22, v{x}')
        a('v_rcp_f32 v3, v2')
        a('v_mul_f32 v4, 0x40490fdb, v2'); rnd1(4)
        a('v_mul_f32 v4, 0x3e4ccccd, v4'); rnd1(4)
        a('v_mul_f32 v4, 0.15915494, v4')
        a('v_cos_f32 v4, v4'); rnd1(4)
        a('v_add_f32 v4, 1.0, v4'); rnd1(4)
        a('v_mul_f32 v3, 0.5, v3')
        a('v_mul_f32 v4, v4, v3')
        a('v_cmp_eq_u32 vcc, 0, v1')
        a('v_cndmask_b32 v4, v4, 0, vcc') if False else None
        a('v_mov_b32 v5, 0')
        a('v_cndmask_b32 v4, v4, v5, vcc')
        a('v_cndmask_b32 v2, v2, v5, vcc')
        for h in range(8):
            a(f's_lshl_b32 s4, s{24+h}, 16')
            a(f's_and_b32 s5, s{24+h}, s22')
            a('v_mul_f32 v6, s4, v2')
            a('v_mul_f32 v7, s5, v2')
            a('v_cvt_pk_bf16_f32 v8, v6, v7')
            a('v_lshlrev_b32 v6, 16, v8')
            a('v_and_b32 v7, s22, v8')
            a('v_mul_f32 v6, 0.15915494, v6')
            a('v_mul_f32 v7, 0.15915494, v7')
            a('v_sin_f32 v6, v6')
            a('v_sin_f32 v7, v7')
            a('v_mul_f32 v6, v6, v4')
            a('v_mul_f32 v7, v7, v4')
            a(f'v_cvt_pk_bf16_f32 v{16+h}, v6, v7')
        a('v_lshlrev_b32 v9, 5, v1')
        a('buffer_store_dwordx4 v[16:19], v9, s[36:39], 0 offen')
        a('buffer_store_dwordx4 v[20:23], v9, s[36:39], 0 offen offset:16')
        a('s_nop 2')
    a.label('K1_END')
    a('s_endpgm')

def kd(name, vgpr, sgpr):
    return f'''.amdhsa_kernel {name}
  .amdhsa_next_free_vgpr {vgpr}
  .amdhsa_next_free_sgpr {sgpr}
  .amdhsa_accum_offset {(vgpr+3)//4*4}
  .amdhsa_group_segment_fixed_size 0
  .amdhsa_kernarg_size 88
  .amdhsa_user_sgpr_count 2
  .amdhsa_user_sgpr_kernarg_segment_ptr 1
  .amdhsa_system_sgpr_workgroup_id_x 1
.end_amdhsa_kernel
'''

def main():
    import gen_k2
    a = Asm()
    gen_k1(a)
    k2 = gen_k2.gen_k2(a)
    hdr = open('cdna_kernels/%s.s.ref' % NAME).read().split('; Override')[0]
    hdr += f'; @launch kernel=k1_kernel grid=({K1_GRID},1,1) block=(512,1,1) lds={K1_LDS}\n'
    if k2:
        hdr += f'; @launch kernel=k2_kernel grid=({NB},1,1) block=(512,1,1) lds={gen_k2.K2_LDS}\n'
    hdr += '.amdgcn_target "amdgcn-amd-amdhsa--gfx950"\n.text\n'
    body = a.finish()
    tail = '.section .rodata,"a"\n.p2align 6\n' + kd('k1_kernel', 120, 102)
    if k2:
        tail += '.p2align 6\n' + kd('k2_kernel', 256, 102)
    out = sys.argv[1] if len(sys.argv) > 1 else 'cdna_kernels/%s.s' % NAME
    open(out, 'w').write(hdr + body + tail)
    print('wrote', out, 'nops inserted', a.nops_inserted)

if __name__ == '__main__':
    main()
```
